```python
import torch

def _softmax(x, axis=-1):
    return torch.softmax(x, dim=axis)
def _gelu(x):
    return torch.nn.functional.gelu(x, approximate="tanh")
def _silu(x):
    return torch.nn.functional.silu(x)
def _sigmoid(x):
    return torch.sigmoid(x)
def _layernorm(x, axis=-1, eps=1e-5):
    m = x.mean(dim=axis, keepdim=True)
    v = x.var(dim=axis, keepdim=True, unbiased=False)
    return (x - m) / torch.sqrt(v + eps)
def _scatter_add(tgt, idx, src, axis=0):
    return tgt.clone().index_add_(axis, idx, src)
def _segment_sum(src, seg, n):
    out = torch.zeros((n,) + src.shape[1:], dtype=src.dtype)
    return out.index_add_(0, seg, src)
def _pad(x, pw):
    flat = tuple(v for pair in reversed(pw) for v in pair)
    return torch.nn.functional.pad(x, flat)

kernel_name = 'gated_mix__gqa_block_cached__dense_activation_silu__decode'

def setup_inputs():

    _w = (lambda a: (lambda t: t.to(torch.bfloat16) if t.is_floating_point() else t)(torch.as_tensor(a)))
    def _A_setup():
        B, Sq, D = 4, 1, 640
        Hq, Hkv, Sk, Dh = 32, 32, 4096, 192
        assert Hq % Hkv == 0, (Hq, Hkv)
        return {
            "x": _w((lambda *s: torch.randn(*s, dtype=torch.bfloat16) * 0.1)(B, Sq, D)),
            "k_cache": _w((lambda *s: torch.randn(*s, dtype=torch.bfloat16) * 3.2)(B, Hkv, Sk, Dh)),
            "v_cache": _w((lambda *s: torch.randn(*s, dtype=torch.bfloat16) * 3.2)(B, Hkv, Sk, Dh)),
            "wq": _w((lambda *s: torch.randn(*s, dtype=torch.bfloat16) * 3.2)(D, Hq * Dh) * (D ** -0.5)),
            "wo": _w((lambda *s: torch.randn(*s, dtype=torch.bfloat16) * 3.2)(Hq * Dh, D) * ((Hq * Dh) ** -0.5)),
        }
    _A_in = _A_setup()

    def _B_setup():
        B, S, D, F = 4, 1, 640, 1536
        return {
            "x": _w((lambda *s: torch.randn(*s, dtype=torch.bfloat16) * 0.1)(B, S, D)),
            "w1": _w((lambda *s: torch.randn(*s, dtype=torch.bfloat16) * 3.2)(D, F) * (D ** -0.5)),
            "w2": _w((lambda *s: torch.randn(*s, dtype=torch.bfloat16) * 3.2)(F, D) * (F ** -0.5)),
        }
    _B_in = _B_setup()

    return {
        "A_x": _A_in["x"],
        "A_k_cache": _A_in["k_cache"],
        "A_v_cache": _A_in["v_cache"],
        "A_wq": _A_in["wq"],
        "A_wo": _A_in["wo"],
        "B_x": _B_in["x"],
        "B_w1": _B_in["w1"],
        "B_w2": _B_in["w2"],
        "gate_w": _w((lambda *s: torch.randn(*s, dtype=torch.bfloat16) * 0.1)(640) * 16.0),
    }

def reference(A_x, A_k_cache, A_v_cache, A_wq, A_wo, B_x, B_w1, B_w2, gate_w):
    def _A_ref(x, k_cache, v_cache, wq, wo):
        B, Sq, D = x.shape
        Hq, Dh = 32, 192
        Hkv = k_cache.shape[1]
        rep = Hq // Hkv
        q = (lambda x, *d: x.permute(*d))((x @ wq).reshape(B, Sq, Hq, Dh), 0, 2, 1, 3)
        k = (lambda x, n, axis: torch.repeat_interleave(x, n, dim=axis))(k_cache, rep, axis=1)
        v = (lambda x, n, axis: torch.repeat_interleave(x, n, dim=axis))(v_cache, rep, axis=1)
        scores = torch.einsum("bhqd,bhkd->bhqk", q, k) * (Dh ** -0.5)
        p = _softmax(scores, axis=-1)
        o = torch.einsum("bhqk,bhkd->bhqd", p, v)
        return (lambda x, *d: x.permute(*d))(o, 0, 2, 1, 3).reshape(B, Sq, Hq * Dh) @ wo

    def _B_ref(x, w1, w2):
        h = torch.einsum("bsd,df->bsf", x, w1)
        h = _silu(h)
        out = torch.einsum("bsf,fd->bsd", h, w2)
        return out

    x = A_x
    g = _sigmoid((x * gate_w).sum(-1, keepdims=True))
    a = _A_ref(x, A_k_cache, A_v_cache, A_wq, A_wo)
    b = _B_ref(x, B_w1, B_w2)
    return g * a + (1 - g) * b
```

```python
import re
TRANS = ("v_exp_f32", "v_log_f32", "v_rcp_f32", "v_rsq_f32", "v_sqrt_f32", "v_sin_f32", "v_cos_f32")

def regs(tok):
    tok = tok.strip()
    tok = tok.lstrip("-").strip("|")
    m = re.fullmatch(r"([vs])(\d+)", tok)
    if m: return [(m.group(1), int(m.group(2)))]
    m = re.fullmatch(r"([vs])\[(\d+):(\d+)\]", tok)
    if m: return [(m.group(1), i) for i in range(int(m.group(2)), int(m.group(3)) + 1)]
    if tok == "vcc": return [("s", 106), ("s", 107)]
    if tok == "vcc_lo": return [("s", 106)]
    if tok == "vcc_hi": return [("s", 107)]
    if tok == "exec": return [("s", 126), ("s", 127)]
    if tok == "m0": return [("s", 124)]
    return []

class Asm:
    def __init__(self):
        self.L = []
        self.n = 0
        self.vw = {}
        self.sw = {}
        self.stw = {}
        self.m0w = -100
        self.vm = []
        self.lg = []
        self.maxv = 0
        self.nops = 0
        self.pend = {}
    def raw(self, s): self.L.append(s)
    def comment(self, s): self.L.append("; " + s)
    def label(self, s):
        self.fence(); self.L.append(s + ":")
    def fence(self):
        need = 0
        for (sl, k, o) in self.vw.values(): need = max(need, 3 - (self.n - sl - 1))
        for sl in self.sw.values(): need = max(need, 5 - (self.n - sl - 1))
        for sl in self.stw.values(): need = max(need, 2 - (self.n - sl - 1))
        if need > 0: self.nop(need)
    def nop(self, k):
        while k > 0:
            c = min(k, 16); self.L.append(f"s_nop {c-1}"); self.n += c; k -= c; self.nops += 1
    def __call__(self, s, tag=None):
        s = s.strip()
        op, _, rest = s.partition(" ")
        parts = [p.strip() for p in re.split(r",(?![^\[]*\])", rest)] if rest else []
        mods = ""
        if parts:
            last = parts[-1].split(None, 1)
            if len(last) > 1: parts[-1] = last[0]; mods = last[1]
        m = re.search(r"offset:(\d+)", s)
        if m and op.startswith("buffer"): assert int(m.group(1)) < 4096, s
        if m and op.startswith("ds_"): assert int(m.group(1)) < 65536, s
        isv = op.startswith("v_"); isbuf = op.startswith("buffer_") or op.startswith("global_"); isds = op.startswith("ds_")
        dst = []; src = []; srcC = []
        if isv:
            base = op.replace("_e64", "").replace("_e32", "").replace("_dpp", "")
            if "permlane" in op and "swap" in op:
                dst = regs(parts[0]) + regs(parts[1]); src = list(dst)
            else:
                dst = regs(parts[0]); src = [r for p in parts[1:] for r in regs(p)]
                if base in ("v_add_co_u32", "v_addc_co_u32"): dst += regs(parts[1])
                if base.startswith("v_dot2c") or base.startswith("v_fmac"):
                    srcC = regs(parts[0])
                elif base.startswith("v_dot2_"):
                    srcC = regs(parts[3]); src = regs(parts[1]) + regs(parts[2])
                if base == "v_cndmask_b32" and len(parts) == 3: src += regs("vcc")
        elif isbuf:
            if "load" in op and " lds" not in s and not s.endswith("lds"):
                dst = regs(parts[0]); src = [r for p in parts[1:] for r in regs(p)]
            else:
                src = [r for p in parts for r in regs(p)]
                if "atomic" in op and ("sc0" in mods): dst = regs(parts[0])
        elif isds:
            if "read" in op or "permute" in op or "swizzle" in op or "rtn" in op:
                dst = regs(parts[0]); src = [r for p in parts[1:] for r in regs(p)]
            else: src = [r for p in parts for r in regs(p)]
        else:
            if op in ("s_waitcnt", "s_nop", "s_barrier", "s_endpgm", "s_sleep", "s_setprio") or op.startswith("s_cbranch") or op == "s_branch":
                pass
            elif op.startswith("s_cmp"): src = [r for p in parts for r in regs(p)]
            else:
                dst = regs(parts[0]); src = [r for p in parts[1:] for r in regs(p)]
        isdpp = isv and ("_dpp" in op or "quad_perm" in s or "row_" in s)
        isperm = isv and "permlane" in op
        isrl = op.startswith("v_readlane") or op.startswith("v_readfirstlane")
        base = op.replace("_e64", "").replace("_e32", "").replace("_dpp", "")
        need = 0
        def req(slot, ws):
            nonlocal need
            need = max(need, ws - (self.n - slot - 1))
        for r in src + srcC + dst:
            if r[0] == "v":
                self.maxv = max(self.maxv, r[1])
                assert r[1] not in self.pend, f"use of v{r[1]} with outstanding load {self.pend[r[1]]}: {s}"
        for r in src + srcC:
            if r[0] == "v" and r[1] in self.vw:
                sl, k, o = self.vw[r[1]]
                if k == "dot":
                    if not (o == base and r in srcC and r not in src): req(sl, 3)
                if isdpp or isperm: req(sl, 2)
                if isrl: req(sl, 1)
                if k == "trans" and isv and base not in TRANS: req(sl, 1)
                if k == "trans" and not isv: req(sl, 1)
            if r[0] == "s" and r[1] in self.sw:
                sl = self.sw[r[1]]
                if isv: req(sl, 4 if (op.startswith("v_readlane") or op.startswith("v_writelane")) else 2)
                if isbuf: req(sl, 5)
                if not isv and not isbuf: req(sl, 1)
        if isdpp and 126 in self.sw: req(self.sw[126], 5)
        for r in dst:
            if r[0] == "v":
                if r[1] in self.vw and self.vw[r[1]][1] == "dot" and not (self.vw[r[1]][2] == base and r in srcC): req(self.vw[r[1]][0], 3)
                if isdpp and r[1] in self.vw: req(self.vw[r[1]][0], 2)
                if r[1] in self.stw: req(self.stw[r[1]], 2)
        if op.startswith("s_cbranch_vcc") and 106 in self.sw: req(self.sw[106], 5)
        if isbuf and "lds" in mods.split(): req(self.m0w, 1)
        if need > 0: self.nop(need)
        self.L.append(s)
        slot = self.n; self.n += 1
        if isv:
            k = "dot" if base.startswith("v_dot") else ("trans" if base in TRANS else "valu")
            for r in dst:
                if r[0] == "v": self.vw[r[1]] = (slot, k, base)
                else: self.sw[r[1]] = slot
        else:
            for r in dst:
                if r[0] == "v": self.vw.pop(r[1], None)
                elif r[1] in self.sw: self.sw.pop(r[1])
                if r == ("s", 124): self.m0w = slot
        if isbuf:
            if "store" in op and ("x3" in op or "x4" in op):
                for r in regs(parts[0]): self.stw[r[1]] = slot
            t = tag if tag is not None else object()
            self.vm.append(t)
            assert len(self.vm) <= 63, f"too many outstanding vmem at {s}"
            for r in dst: self.pend[r[1]] = t
        if isds:
            t = tag if tag is not None else object()
            self.lg.append(t)
            for r in dst: self.pend[r[1]] = t
            if len(self.lg) > 15:
                raise AssertionError("too many outstanding lds ops")
    def _retire(self, q, k):
        done = q[:k]; del q[:k]
        for r, t in list(self.pend.items()):
            if any(t is d or t == d for d in done): del self.pend[r]
    def waitv(self, tag):
        idx = [i for i, t in enumerate(self.vm) if t == tag]
        if not idx: return
        i = idx[-1]; n = len(self.vm) - 1 - i
        self.L.append(f"s_waitcnt vmcnt({n})"); self.n += 1
        self._retire(self.vm, i + 1)
    def waitv_all(self):
        self.L.append("s_waitcnt vmcnt(0)"); self.n += 1
        self._retire(self.vm, len(self.vm))
    def waitl(self, tag=None):
        if tag is None:
            self.L.append("s_waitcnt lgkmcnt(0)"); self.n += 1
            self._retire(self.lg, len(self.lg)); return
        idx = [i for i, t in enumerate(self.lg) if t == tag]
        if not idx: return
        i = idx[-1]; n = len(self.lg) - 1 - i
        self.L.append(f"s_waitcnt lgkmcnt({n})"); self.n += 1
        self._retire(self.lg, i + 1)
    def text(self): return "\n".join(self.L) + "\n"
```

```python
import sys, struct
from asmlib import Asm
KN = "gated_mix__gqa_block_cached__dense_activation_silu__decode"
def f2u(f): return struct.unpack("<I", struct.pack("<f", f))[0]
LOG2E = f2u(1.4426950408889634)
SCALE = f2u(192 ** -0.5)
MLOFF = 1 << 20
STOFF = 2 << 20
LDS_Q, LDS_O, LDS_F, LDS_P, LDS_OB = 0, 8192, 16384, 17408, 21504
LDS_SIZE = 25600

def gen(NK0=4, stamps=False, kvflags="nt", wflags="", spin=200000):
    a = Asm()
    hdr = open("cdna_kernels/" + KN + ".s.ref").read().split("; Override launch")[0]
    a.raw(hdr.rstrip())
    a.raw(f"; @launch grid=(256,1,1) block=(512,1,1) lds={LDS_SIZE}")
    a.raw('.amdgcn_target "amdgcn-amd-amdhsa--gfx950"')
    a.raw(".text"); a.raw(f".globl {KN}_kernel"); a.raw(".p2align 8"); a.raw(f".type {KN}_kernel,@function"); a.raw(f"{KN}_kernel:")
    K, V, WQ, WO, W1, W2, XQ, XF, GW, P, ML, DBG, RP, OUT = [40 + 4 * i for i in range(14)]
    def srd(n): return f"s[{n}:{n+3}]"
    SLO, SHI, MB1, MB0 = 96, 97, 98, 100
    RA = lambda s: 128 + 4 * s
    HA = lambda s: 128 + 4 * s + 3
    RB = lambda s: 32 + 4 * s
    HB = lambda s: 32 + 4 * s + 3
    def x3(r): return f"v[{r}:{r+2}]"
    def x4(r): return f"v[{r}:{r+3}]"
    nst = [0]
    def stamp():
        if not stamps: return
        a("s_memrealtime s[14:15]"); a.waitl()
        a(f"v_writelane_b32 v3, s14, {nst[0]}")
        nst[0] += 1

    a("s_cmp_ge_u32 s2, 256"); a("s_cbranch_scc1 L_end")
    a("s_load_dwordx16 s[16:31], s[0:1], 0")
    a("s_load_dwordx8 s[32:39], s[0:1], 64")
    a("v_lshrrev_b32 v1, 6, v0")
    a("v_lshlrev_b32 v11, 8, v0")
    a("v_readfirstlane_b32 s3, v1")
    a("v_and_b32 v0, 63, v0")
    a("s_and_b32 s8, s2, 7"); a("s_lshr_b32 s9, s2, 3"); a("s_and_b32 s10, s9, 7")
    a("s_lshr_b32 s4, s10, 1"); a("s_and_b32 s6, s10, 1")
    a("s_andn2_b32 s5, s9, 7"); a("s_add_u32 s5, s5, s8")
    a("s_lshl_b32 s7, s5, 1"); a("s_add_u32 s7, s7, s6")
    a("s_lshl_b32 s11, s4, 6"); a("s_add_u32 s11, s11, s7")
    a("s_mul_i32 s12, s11, 786432"); a("s_mul_i32 s13, s3, 768"); a("s_add_u32 s12, s12, s13")
    a(f"s_mov_b32 s{SLO}, 0x05040100"); a(f"s_mov_b32 s{SHI}, 0x07060302")
    a(f"s_mov_b32 s{MB1}, 0xcccccccc"); a(f"s_mov_b32 s{MB1+1}, 0xcccccccc")
    a(f"s_mov_b32 s{MB0}, 0xaaaaaaaa"); a(f"s_mov_b32 s{MB0+1}, 0xaaaaaaaa")
    a("v_mul_u32_u24 v1, 12, v0")
    a("v_lshrrev_b32 v6, 5, v0")
    a("v_and_b32 v7, 31, v0")
    a("v_mul_u32_u24 v7, 12, v7")
    a(f"v_mul_u32_u24 v2, {40*12288}, v6"); a("v_add_u32 v2, v2, v7")
    a("v_mul_u32_u24 v10, 80, v6")
    a("v_lshrrev_b32 v6, 2, v0"); a("v_mul_u32_u24 v6, 6, v6")
    a("s_mul_i32 s13, s3, 96"); a("v_add_u32 v6, s13, v6")
    a("v_lshlrev_b32 v5, 1, v6")
    a("v_mul_u32_u24 v4, 3072, v6"); a("v_and_b32 v7, 3, v0"); a("v_mul_u32_u24 v7, 12, v7"); a("v_add_u32 v4, v4, v7")
    for n in (K, V, WQ, WO, W1, W2, XQ, XF, GW, P, ML, DBG): a(f"s_mov_b32 s{n+3}, 0x20000")
    a(f"s_mov_b32 s{K+2}, {786432-7*768}"); a(f"s_mov_b32 s{V+2}, {786432-7*768}")
    a(f"s_mov_b32 s{WQ+2}, {79*12288+384}")
    a(f"s_mov_b32 s{WO+2}, {191*1280+160}")
    a("s_mul_i32 s13, s7, 48"); a(f"s_sub_u32 s{W1+2}, {640*3072}, s13")
    a(f"s_mov_b32 s{W2+2}, {23*1280+160}")
    a(f"s_mov_b32 s{XQ+2}, 160"); a(f"s_mov_b32 s{XF+2}, 1280"); a(f"s_mov_b32 s{GW+2}, 1280")
    a(f"s_mov_b32 s{P+2}, 320"); a(f"s_mov_b32 s{ML+2}, 128"); a(f"s_mov_b32 s{DBG+2}, 256")
    a("s_mul_i32 s8, s3, 160")
    a("s_mul_i32 s9, s4, 1280")
    if stamps: a("v_mov_b32 v3, 0")
    a.waitl()
    stamp()
    def mk(n, ptr, off):
        a(f"s_add_u32 s{n}, s{ptr}, {off}"); a(f"s_addc_u32 s{n+1}, s{ptr+1}, 0")
    mk(K, 18, "s12")
    kn = [0]
    def kload(slot):
        t = kn[0]; kn[0] += 1
        if t < 128:
            a(f"s_mov_b32 s16, {t*6144}") if t*6144 > 32767 or True else None
            a(f"buffer_load_dwordx3 {x3(RA(slot))}, v1, {srd(K)}, s16 offen {kvflags}", tag=("kv", t))
        elif t < 256:
            a(f"s_mov_b32 s16, {(t-128)*6144}")
            a(f"buffer_load_dwordx3 {x3(RA(slot))}, v1, {srd(V)}, s16 offen {kvflags}", tag=("kv", t))
    mk(XF, 16, "s9")
    a("s_add_u32 s9, s9, s8"); mk(XQ, 16, "s9")
    for t in range(NK0): kload(t)
    mk(W1, 28, "s13")
    mk(GW, 32, "0")
    for i in range(5): a(f"buffer_load_dwordx4 {x4(12+4*i)}, v10, {srd(XQ)}, 0 offen offset:{16*i}", tag=("xq", i))
    a(f"buffer_load_dwordx3 {x3(RA(14))}, v5, {srd(XF)}, 0 offen", tag="xf")
    a(f"buffer_load_dwordx3 {x3(RA(15))}, v5, {srd(GW)}, 0 offen", tag="gw")
    a("s_movk_i32 s17, 6144"); a("s_movk_i32 s18, 12288")
    for i in range(6):
        so = ["0", "s17", "s18"][i // 2]
        a(f"buffer_load_dwordx3 {x3(RA(8+i))}, v4, {srd(W1)}, {so} offen offset:{3072*(i%2)} {wflags}", tag=("w1", i))
    a(f"s_mul_i32 s13, s3, {80*12288}"); a("s_mul_i32 s14, s5, 384"); a("s_add_u32 s13, s13, s14"); mk(WQ, 22, "s13")
    def wqreg(i): return RA(16 + i) if i < 16 else RB(i - 16)
    for i in range(40):
        a(f"s_mov_b32 s17, {i*12288}")
        a(f"buffer_load_dwordx3 {x3(wqreg(i))}, v2, {srd(WQ)}, s17 offen {wflags}", tag=("wq", i))
    mk(V, 20, "s12")
    a(f"s_mul_i32 s13, s5, {192*1280}"); a("s_add_u32 s13, s13, s8"); mk(WO, 24, "s13")
    a(f"s_mul_i32 s13, s7, {24*1280}"); a("s_add_u32 s13, s13, s8"); mk(W2, 30, "s13")
    a("s_mul_i32 s13, s11, 2560"); a("s_lshl_b32 s14, s8, 1"); a("s_add_u32 s13, s13, s14"); mk(P, 38, "s13")
    a("s_lshr_b32 s13, s11, 1"); a("s_lshl_b32 s13, s13, 7"); a(f"s_add_u32 s13, s13, {MLOFF}"); mk(ML, 38, "s13")
    mk(DBG, 36, "0")
    for i in range(6, 10): a(f"v_mov_b32 v{i}, -1")
    a("v_lshlrev_b32 v10, 4, v0")
    a("s_lshl_b32 s13, s6, 3"); a("s_add_u32 s13, s13, s3"); a("s_lshl_b32 s13, s13, 3")
    a("v_lshlrev_b32 v4, 7, v0"); a("v_add_u32 v4, s13, v4")
    a(f"buffer_store_dwordx4 v[6:9], v10, {srd(P)}, 0 offen sc1", tag="clr0")
    a(f"buffer_store_dwordx2 v[6:7], v4, {srd(ML)}, 0 offen sc1", tag="clr1")
    a("v_mov_b32 v5, v4")
    a.waitv(("w1", 5))
    for t in range(NK0, 8): kload(t)
    F = [HA(8 + i) for i in range(8)]
    T = [HB(i) for i in range(12)]
    for k in range(3):
        for d in range(3):
            A_, B_ = RA(8 + 2 * k) + d, RA(9 + 2 * k) + d
            a(f"v_perm_b32 v{T[2*d]}, v{B_}, v{A_}, s{SLO}"); a(f"v_perm_b32 v{T[2*d+1]}, v{B_}, v{A_}, s{SHI}")
        for j in range(6):
            a(f"v_dot2_f32_bf16 v{F[j]}, v{T[j]}, v{RA(14)+k}, {'0' if k == 0 else 'v%d' % F[j]}")
    a("s_mov_b32 s13, 0x3f803f80"); a("s_mov_b32 s14, 0xffff0000")
    for k in range(3):
        xr, gr = RA(14) + k, RA(15) + k
        a(f"v_lshlrev_b32 v{T[0]}, 16, v{xr}"); a(f"v_and_b32 v{T[1]}, s14, v{xr}")
        a(f"v_lshlrev_b32 v{T[2]}, 16, v{gr}"); a(f"v_and_b32 v{T[3]}, s14, v{gr}")
        a(f"v_mul_f32 v{T[0]}, v{T[0]}, v{T[2]}"); a(f"v_mul_f32 v{T[1]}, v{T[1]}, v{T[3]}")
        a(f"v_cvt_pk_bf16_f32 v{T[4]}, v{T[0]}, v{T[1]}")
        a(f"v_dot2_f32_bf16 v{F[6]}, v{T[4]}, s13, {'0' if k == 0 else 'v%d' % F[6]}")
    a(f"v_mov_b32 v{F[7]}, 0")
    for i in range(6, 12): a(f"v_mov_b32 v{i if i != 10 and i != 11 else T[i]}, 0")
    QA = [6, 7, 8, 9, T[10], T[11]]
    for j in range(4): a(f"v_permlane32_swap_b32 v{F[j]}, v{F[j+4]}")
    for j in range(4): a(f"v_add_f32 v{T[j]}, v{F[j]}, v{F[j+4]}")
    for t in range(8, 16): kload(t)
    for j in range(2): a(f"v_permlane16_swap_b32 v{T[j]}, v{T[j+2]}")
    for j in range(2): a(f"v_add_f32 v{T[j]}, v{T[j]}, v{T[j+2]}")
    a(f"v_add_f32_dpp v{T[0]}, v{T[0]}, v{T[0]} row_ror:8 row_mask:0xf bank_mask:0x3")
    a(f"v_add_f32_dpp v{T[0]}, v{T[1]}, v{T[1]} row_ror:8 row_mask:0xf bank_mask:0xc")
    a(f"v_add_f32_dpp v{T[1]}, v{T[0]}, v{T[0]} row_shl:4 row_mask:0xf bank_mask:0x5")
    a(f"v_add_f32_dpp v{T[1]}, v{T[0]}, v{T[0]} row_shr:4 row_mask:0xf bank_mask:0xa")
    a(f"v_lshrrev_b32 v{T[2]}, 3, v0"); a(f"v_lshlrev_b32 v{T[2]}, 4, v{T[2]}")
    a(f"v_and_b32 v{T[3]}, 3, v0"); a(f"v_lshl_add_u32 v{T[2]}, v{T[3]}, 2, v{T[2]}")
    a("s_lshl_b32 s13, s3, 7"); a(f"v_add_u32 v{T[2]}, s13, v{T[2]}")
    a(f"ds_write_b32 v{T[2]}, v{T[1]} offset:{LDS_F}")
    for k in range(20):
        a.waitv(("wq", 2 * k + 1))
        A_, B_ = wqreg(2 * k), wqreg(2 * k + 1)
        for d in range(3):
            a(f"v_perm_b32 v{T[2*d]}, v{B_+d}, v{A_+d}, s{SLO}"); a(f"v_perm_b32 v{T[2*d+1]}, v{B_+d}, v{A_+d}, s{SHI}")
        if k < 8: kload(16 + 2 * k); kload(17 + 2 * k)
        for j in range(6): a(f"v_dot2c_f32_bf16 v{QA[j]}, v{T[j]}, v{12+k}")
    for j in range(3): a(f"v_permlane32_swap_b32 v{QA[j]}, v{QA[j+3]}")
    for j in range(3): a(f"v_add_f32 v{QA[j]}, v{QA[j]}, v{QA[j+3]}")
    a("s_lshl_b32 s13, s3, 10"); a(f"v_add_u32 v{T[0]}, s13, v10")
    a(f"ds_write_b128 v{T[0]}, v[6:9] offset:{LDS_Q}")
    a.waitv("clr1")
    a.waitl()
    a("s_barrier")
    for w in range(8): a(f"ds_read_b128 {x4(RB(w))}, v10 offset:{LDS_Q+1024*w}", tag=("qr", w))
    a("v_mov_b32 v12, 1")
    a(f"buffer_atomic_add v12, v11, {srd(DBG)}, 0 offen sc1", tag="flag")
    a("v_lshrrev_b32 v13, 3, v0"); a("v_and_b32 v14, 7, v0"); a("v_mul_u32_u24 v14, 20, v14")
    a(f"v_mul_u32_u24 v2, {24*1280}, v13"); a("v_add_u32 v2, v2, v14")
    a(f"v_mul_u32_u24 v11, {3*1280}, v13"); a("v_add_u32 v11, v11, v14")
    for w in range(1, 8):
        a.waitl(("qr", w))
        for j in range(3): a(f"v_add_f32 v{RB(0)+j}, v{RB(0)+j}, v{RB(w)+j}")
    for j in range(3): a(f"v_mov_b32 v{RB(1)+j}, v{RB(0)+j}")
    for j in range(3): a(f"v_permlane32_swap_b32 v{RB(0)+j}, v{RB(1)+j}")
    Q = [6, 7, 8]
    a(f"v_cvt_pk_bf16_f32 v6, v{RB(0)}, v{RB(0)+1}")
    a(f"v_cvt_pk_bf16_f32 v7, v{RB(0)+2}, v{RB(1)}")
    a(f"v_cvt_pk_bf16_f32 v8, v{RB(1)+1}, v{RB(1)+2}")
    stamp()
    ACC = list(range(12, 22)); SC = [22, 23, 24, 25]
    hooksK = {t: [] for t in range(128)}; hooksV = {k: [] for k in range(64)}
    def w2loads():
        for i in range(3):
            a(f"buffer_load_dwordx4 {x4(RB(i))}, v11, {srd(W2)}, 0 offen offset:{1280*i} {wflags}", tag=("w2", 2*i))
            a(f"buffer_load_dword v{RB(3)+i}, v11, {srd(W2)}, 0 offen offset:{1280*i+16} {wflags}", tag=("w2", 2*i+1))
    def woload4(i):
        def f():
            a(f"s_mov_b32 s17, {(i//3)*3840}")
            a(f"buffer_load_dwordx4 {x4(RB(i))}, v2, {srd(WO)}, s17 offen offset:{1280*(i%3)} {wflags}", tag=("wo4", i))
        return f
    def woload1(i):
        def f():
            a(f"s_mov_b32 s17, {(i//3)*3840}")
            a(f"buffer_load_dword v{HA(i)}, v2, {srd(WO)}, s17 offen offset:{1280*(i%3)+16} {wflags}", tag=("wo1", i))
        return f
    hooksK[0].append(w2loads)
    for i in range(4, 24): hooksK[i].append(woload4(i))
    def ffn2():
        t = [26, 27, 28, 29, 30, 31, 4, 9]
        a.waitv(("w2", 5))
        a("v_and_b32 v4, 31, v0"); a("v_lshlrev_b32 v4, 2, v4")
        for w in range(8): a(f"ds_read_b32 v{ACC[w]}, v4 offset:{LDS_F+128*w}")
        a.waitl()
        for w in range(1, 8): a(f"v_add_f32 v{ACC[0]}, v{ACC[0]}, v{ACC[w]}")
        a(f"v_cvt_pk_bf16_f32 v26, v{ACC[0]}, v{ACC[0]}"); a("v_lshlrev_b32 v26, 16, v26")
        a(f"v_mul_f32 v27, {LOG2E ^ 0x80000000:#x}, v26"); a("v_exp_f32 v27, v27"); a("v_add_f32 v27, 1.0, v27"); a("v_rcp_f32 v27, v27")
        a("v_mul_f32 v28, v26, v27"); a("v_cvt_pk_bf16_f32 v28, v28, v28")
        a("v_cvt_pk_bf16_f32 v27, v27, v27"); a("v_lshlrev_b32 v27, 16, v27")
        a("v_sub_f32 v29, 1.0, v27"); a("v_cvt_pk_bf16_f32 v29, v29, v29"); a("v_lshlrev_b32 v29, 16, v29")
        a("v_readlane_b32 s22, v27, 24"); a("v_readlane_b32 s23, v29, 24")
        a("v_bfe_u32 v4, v0, 3, 1"); a("v_mul_u32_u24 v4, 48, v4"); a("v_lshrrev_b32 v9, 4, v0"); a("v_lshl_add_u32 v4, v9, 2, v4")
        for i in range(3):
            a(f"v_add_u32 v9, {16*i}, v4")
            a(f"ds_bpermute_b32 v{29+i}, v9, v28")
        a.waitl()
        a("s_mov_b32 s13, 0xffff"); a("s_mov_b32 s14, 0xffff0000")
        for i in range(3):
            a(f"v_and_b32 v26, s13, v{29+i}"); a(f"v_and_b32 v27, s14, v{29+i}")
            for d in range(5):
                r = RB(i) + d if d < 4 else RB(3) + i
                a(f"v_dot2_f32_bf16 v{ACC[2*d]}, v{r}, v26, {'0' if i == 0 else 'v%d' % ACC[2*d]}")
                a(f"v_dot2_f32_bf16 v{ACC[2*d+1]}, v{r}, v27, {'0' if i == 0 else 'v%d' % ACC[2*d+1]}")
        for j in range(10): a(f"v_mul_f32 v{ACC[j]}, s23, v{ACC[j]}")
    hooksK[40].append(ffn2)
    for i in range(4): hooksK[41 + i].append(woload4(i))
    WP = [[None] * 10 for _ in range(12)]
    spare = [31]
    def woperm(k, ds):
        def f():
            for d in ds:
                if d < 4:
                    a.waitv(("wo4", 2 * k)); a.waitv(("wo4", 2 * k + 1)); A_, B_ = RB(2 * k) + d, RB(2 * k + 1) + d
                else:
                    a.waitv(("wo1", 2 * k + 1)); A_, B_ = HA(2 * k), HA(2 * k + 1)
                s = spare[0]
                a(f"v_perm_b32 v{s}, v{B_}, v{A_}, s{SLO}"); a(f"v_perm_b32 v{B_}, v{B_}, v{A_}, s{SHI}")
                WP[k][2 * d] = s; WP[k][2 * d + 1] = B_; spare[0] = A_
        return f
    for k in range(12): hooksK[90 + ((k + 2) % 12) * 2].append(woperm(k, range(4)))
    hooksK[96].append(lambda: a(f"buffer_load_dword v30, off, {srd(DBG)}, 0 sc1", tag="flagld"))
    for t in range(128):
        s = t % 32; r = RA(s); hreg = HA(s)
        a.waitv(("kv", t))
        a(f"v_dot2_f32_bf16 v{hreg}, v{r}, v{Q[0]}, 0")
        a(f"v_dot2_f32_bf16 v{hreg}, v{r+1}, v{Q[1]}, v{hreg}")
        a(f"v_dot2_f32_bf16 v{hreg}, v{r+2}, v{Q[2]}, v{hreg}")
        kload(s)
        def lvl(s_):
            if s_ % 2 == 1:
                x, y = HA(s_ - 1), HA(s_)
                a(f"v_permlane16_swap_b32 v{x}, v{y}"); a(f"v_add_f32 v{x}, v{x}, v{y}")
            if s_ % 4 == 3:
                x, y = HA(s_ - 3), HA(s_ - 1)
                a(f"v_add_f32_dpp v{x}, v{x}, v{x} row_ror:8 row_mask:0xf bank_mask:0x3")
                a(f"v_add_f32_dpp v{x}, v{y}, v{y} row_ror:8 row_mask:0xf bank_mask:0xc")
            if s_ % 8 == 7:
                x, y = HA(s_ - 7), HA(s_ - 3)
                a(f"v_add_f32_dpp v{x}, v{x}, v{x} row_shl:4 row_mask:0xf bank_mask:0x5")
                a(f"v_add_f32_dpp v{x}, v{y}, v{y} row_shr:4 row_mask:0xf bank_mask:0xa")
                a(f"v_add_f32_dpp v{x}, v{x}, v{x} quad_perm:[2,3,0,1] row_mask:0xf bank_mask:0xf")
            if s_ % 16 == 15:
                x, y = HA(s_ - 15), HA(s_ - 7)
                a(f"v_cndmask_b32_e64 v{x}, v{x}, v{y}, s[{MB1}:{MB1+1}]")
                a(f"v_add_f32_dpp v{x}, v{x}, v{x} quad_perm:[1,0,3,2] row_mask:0xf bank_mask:0xf")
            if s_ == 31:
                a(f"v_cndmask_b32_e64 v{SC[t//32]}, v{HA(0)}, v{HA(16)}, s[{MB0}:{MB0+1}]")
        if s > 0: lvl(s - 1)
        if s == 31: lvl(31)
        for f in hooksK[t]: f()
    stamp()
    a("s_mov_b32 s14, 0xffff0000")
    for j in (0, 2):
        a(f"v_cvt_pk_bf16_f32 v26, v{SC[j]}, v{SC[j+1]}")
        a(f"v_lshlrev_b32 v{SC[j]}, 16, v26"); a(f"v_and_b32 v{SC[j+1]}, s14, v26")
        a(f"v_mul_f32 v{SC[j]}, {SCALE:#x}, v{SC[j]}"); a(f"v_mul_f32 v{SC[j+1]}, {SCALE:#x}, v{SC[j+1]}")
        a(f"v_cvt_pk_bf16_f32 v26, v{SC[j]}, v{SC[j+1]}")
        a(f"v_lshlrev_b32 v{SC[j]}, 16, v26"); a(f"v_and_b32 v{SC[j+1]}, s14, v26")
    def wave_red(op, r, sdst):
        for m in ("quad_perm:[1,0,3,2] row_mask:0xf", "quad_perm:[2,3,0,1] row_mask:0xf", "row_half_mirror row_mask:0xf", "row_mirror row_mask:0xf",
                  "row_bcast:15 row_mask:0xa", "row_bcast:31 row_mask:0xc"):
            a(f"{op}_dpp v{r}, v{r}, v{r} {m} bank_mask:0xf")
        a(f"v_readlane_b32 s{sdst}, v{r}, 63")
    a(f"v_max3_f32 v26, v{SC[0]}, v{SC[1]}, v{SC[2]}"); a(f"v_max_f32 v26, v26, v{SC[3]}")
    wave_red("v_max_f32", 26, 20)
    a(f"v_mov_b32 v27, {LOG2E:#x}")
    a("v_mul_f32 v26, s20, v27")
    for j in range(4): a(f"v_fma_f32 v{SC[j]}, v{SC[j]}, v27, -v26")
    for j in range(4): a(f"v_exp_f32 v{SC[j]}, v{SC[j]}")
    a("v_bfrev_b32 v4, v0"); a("v_lshrrev_b32 v4, 27, v4"); a("v_lshlrev_b32 v4, 1, v4")
    a("v_lshrrev_b32 v9, 5, v0"); a("v_lshlrev_b32 v9, 8, v9"); a("s_lshl_b32 s13, s3, 9"); a("v_add_u32 v9, s13, v9")
    a("v_add_u32 v4, v4, v9")
    a(f"v_cvt_pk_bf16_f32 v28, v{SC[0]}, v{SC[1]}"); a(f"v_cvt_pk_bf16_f32 v29, v{SC[2]}, v{SC[3]}")
    a(f"ds_write_b16 v4, v28 offset:{LDS_P}"); a(f"ds_write_b16_d16_hi v4, v28 offset:{LDS_P+64}")
    a(f"ds_write_b16 v4, v29 offset:{LDS_P+128}"); a(f"ds_write_b16_d16_hi v4, v29 offset:{LDS_P+192}")
    a(f"v_add_f32 v26, v{SC[0]}, v{SC[1]}"); a(f"v_add_f32 v27, v{SC[2]}, v{SC[3]}"); a("v_add_f32 v26, v26, v27")
    wave_red("v_add_f32", 26, 21)
    a("v_mov_b32 v11, v9")
    PB = [4, 22]
    a("v_mov_b32 v26, s20"); a("v_mov_b32 v27, s21")
    a(f"buffer_store_dwordx2 v[26:27], v5, {srd(ML)}, 0 offen sc1", tag="mlst")
    a.waitv("flagld")
    a("v_readfirstlane_b32 s13, v30")
    a("s_cmp_eq_u32 s13, 256"); a("s_cbranch_scc0 L_flag_slow")
    a.label("L_flag_ok")
    VA = [26, 27, 28, 29, 30, HA(30)]
    T = [HA(24 + i) for i in range(6)]
    a.waitl()
    a(f"ds_read_b128 {x4(PB[0])}, v11 offset:{LDS_P}", tag=("pb", 0))
    a(f"ds_read_b128 {x4(PB[1])}, v11 offset:{LDS_P+16}", tag=("pb", 1))
    for j in range(6): a(f"v_mov_b32 v{VA[j]}, 0")
    for i in range(24): hooksV[i].append(woload1(i))
    for k in range(12): hooksV[44 + k].append(woperm(k, [4]))
    def mlload():
        a("v_lshlrev_b32 v8, 3, v0")
        a(f"buffer_load_dwordx2 v[8:9], v8, {srd(ML)}, 0 offen sc1", tag="ml")
    hooksV[30].append(mlload)
    def mlproc():
        a.waitv("ml")
        a(f"v_max_u32 v{HA(31)}, v8, v9"); a(f"v_cmp_eq_u32 vcc, -1, v{HA(31)}")
        a("s_cbranch_vccnz L_ml_slow")
        a.label("L_ml_ok")
        r = HA(31)
        a(f"v_mov_b32 v{r}, v8")
        for m in ("quad_perm:[1,0,3,2]", "quad_perm:[2,3,0,1]", "row_half_mirror", "row_mirror"):
            a(f"v_max_f32_dpp v{r}, v{r}, v{r} {m} row_mask:0xf bank_mask:0xf")
        a(f"v_sub_f32 v8, v8, v{r}"); a(f"v_mul_f32 v8, {LOG2E:#x}, v8"); a("v_exp_f32 v8, v8"); a("v_mul_f32 v8, v8, v9")
        for m in ("quad_perm:[1,0,3,2]", "quad_perm:[2,3,0,1]", "row_half_mirror", "row_mirror"):
            a(f"v_add_f32_dpp v8, v8, v8 {m} row_mask:0xf bank_mask:0xf")
        a(f"v_sub_f32 v{r}, s20, v{r}"); a(f"v_mul_f32 v{r}, {LOG2E:#x}, v{r}"); a(f"v_exp_f32 v{r}, v{r}")
        a("v_rcp_f32 v8, v8"); a(f"v_mul_f32 v{r}, v{r}, v8"); a(f"v_mul_f32 v{r}, s22, v{r}")
        a(f"v_readfirstlane_b32 s24, v{r}")
        a("s_lshl_b32 s13, s3, 10"); a("v_add_u32 v8, s13, v10")
        a("v_and_b32 v9, 31, v0"); a("v_lshlrev_b32 v9, 1, v9"); a(f"v_lshrrev_b32 v{r}, 5, v0"); a(f"v_add_u32 v9, v9, v{r}"); a("v_mul_u32_u24 v9, 6, v9")
        a("s_lshl_b32 s13, s3, 9"); a("v_add_u32 v9, s13, v9")
        a("v_lshrrev_b32 v2, 3, v0"); a("v_mul_u32_u24 v2, 48, v2"); a("v_add_u32 v2, s13, v2")
    hooksV[57].append(mlproc)
    for k in range(64):
        s = (2 * k) % 32
        a.waitv(("kv", 128 + 2 * k + 1))
        A_, B_ = RA(s), RA(s + 1)
        for d in range(3):
            a(f"v_perm_b32 v{T[2*d]}, v{B_+d}, v{A_+d}, s{SLO}"); a(f"v_perm_b32 v{T[2*d+1]}, v{B_+d}, v{A_+d}, s{SHI}")
        kload(s); kload(s + 1)
        j4 = k // 4
        a.waitl(("pb", j4))
        pr = PB[j4 % 2] + k % 4
        for j in range(6): a(f"v_dot2c_f32_bf16 v{VA[j]}, v{T[j]}, v{pr}")
        if k % 4 == 3 and j4 + 2 < 16:
            a(f"ds_read_b128 {x4(PB[j4%2])}, v11 offset:{LDS_P+16*(j4+2)}", tag=("pb", j4 + 2))
        for f in hooksV[k]: f()
    stamp()
    for j in range(3): a(f"v_permlane32_swap_b32 v{VA[j]}, v{VA[j+3]}")
    for j in range(3): a(f"v_add_f32 v{VA[j]}, v{VA[j]}, v{VA[j+3]}")
    for j in range(3): a(f"v_mul_f32 v{4+j}, s24, v{VA[j]}")
    a(f"ds_write_b128 v8, v[4:7] offset:{LDS_O}")
    a.waitl(); a("s_barrier")
    for w in range(8): a(f"ds_read_b96 {x3(RA(w))}, v10 offset:{LDS_O+1024*w}", tag=("or", w))
    a("v_lshrrev_b32 v1, 2, v0"); a("v_lshlrev_b32 v1, 4, v1")
    a("v_lshrrev_b32 v11, 5, v0"); a("v_lshlrev_b32 v11, 5, v11"); a("v_and_b32 v8, 4, v0"); a("v_lshl_add_u32 v11, v8, 2, v11")
    for w in range(1, 8):
        a.waitl(("or", w))
        for j in range(3): a(f"v_add_f32 v{RA(0)+j}, v{RA(0)+j}, v{RA(w)+j}")
    a(f"v_cvt_pk_bf16_f32 v4, v{RA(0)}, v{RA(0)+1}"); a(f"v_cvt_pk_bf16_f32 v5, v{RA(0)+2}, v{RA(0)+2}")
    a(f"ds_write_b16 v9, v4 offset:{LDS_OB}"); a(f"ds_write_b16_d16_hi v9, v4 offset:{LDS_OB+2}"); a(f"ds_write_b16 v9, v5 offset:{LDS_OB+4}")
    a.waitl()
    OP = [4, 22, 26]
    for i in range(3): a(f"ds_read_b128 {x4(OP[i])}, v2 offset:{LDS_OB+16*i}", tag=("ob", i))
    for k in range(12):
        a.waitl(("ob", k // 4))
        for j in range(10): a(f"v_dot2c_f32_bf16 v{ACC[j]}, v{WP[k][j]}, v{OP[k//4]+k%4}")
    for j in range(5): a(f"v_permlane32_swap_b32 v{ACC[j]}, v{ACC[j+5]}")
    for j in range(5): a(f"v_add_f32 v{ACC[j]}, v{ACC[j]}, v{ACC[j+5]}")
    a(f"v_mov_b32 v{ACC[5]}, v{ACC[4]}")
    for j in (0, 2, 4): a(f"v_permlane16_swap_b32 v{ACC[j]}, v{ACC[j+1]}")
    for j in (0, 2, 4): a(f"v_add_f32 v{ACC[j]}, v{ACC[j]}, v{ACC[j+1]}")
    a(f"v_add_f32_dpp v{ACC[0]}, v{ACC[0]}, v{ACC[0]} row_ror:8 row_mask:0xf bank_mask:0x3")
    a(f"v_add_f32_dpp v{ACC[4]}, v{ACC[4]}, v{ACC[4]} row_ror:8 row_mask:0xf bank_mask:0xf")
    a(f"v_add_f32_dpp v{ACC[0]}, v{ACC[2]}, v{ACC[2]} row_ror:8 row_mask:0xf bank_mask:0xc")
    a(f"v_min_u32 v{ACC[4]}, -2, v{ACC[4]}"); a(f"v_min_u32 v{ACC[0]}, -2, v{ACC[0]}")
    for i in range(4): a(f"v_mov_b32_dpp v{22+i}, v{ACC[4]} quad_perm:[{i},{i},{i},{i}] row_mask:0xf bank_mask:0xf")
    for i in range(4): a(f"v_mov_b32_dpp v{4+i}, v{ACC[0]} quad_perm:[{i},{i},{i},{i}] row_mask:0xf bank_mask:0xf")
    a("s_mov_b32 exec_lo, 0x11111111"); a("s_mov_b32 exec_hi, 0x11111111")
    a(f"buffer_store_dwordx4 v[4:7], v1, {srd(P)}, 0 offen sc1")
    a("s_mov_b32 exec_lo, 0x11"); a("s_mov_b32 exec_hi, 0x11")
    a(f"buffer_store_dwordx4 v[22:25], v11, {srd(P)}, 0 offen offset:256 sc1")
    a("s_mov_b64 exec, -1")
    stamp()
    a("s_cmp_lg_u32 s3, 0"); a("s_cbranch_scc1 L_fin")
    a("s_cmp_ge_u32 s2, 160"); a("s_cbranch_scc1 L_fin")
    a("s_mul_i32 s8, s2, 1639"); a("s_lshr_b32 s8, s8, 16")
    a("s_mul_i32 s9, s8, 40"); a("s_sub_u32 s9, s2, s9")
    a("s_mul_i32 s10, s9, 52"); a("s_lshr_b32 s10, s10, 8")
    a("s_mul_i32 s12, s10, 5"); a("s_sub_u32 s12, s9, s12")
    a(f"s_mul_i32 s13, s8, {64*2560}"); a("s_lshl_b32 s14, s9, 6"); a("s_add_u32 s13, s13, s14"); mk(RP, 38, "s13")
    a(f"s_mov_b32 s{RP+2}, {63*2560+64}"); a(f"s_mov_b32 s{RP+3}, 0x20000")
    a("v_lshrrev_b32 v1, 2, v0"); a("v_mul_u32_u24 v1, 2560, v1"); a("v_and_b32 v2, 3, v0"); a("v_lshl_add_u32 v1, v2, 4, v1")
    a("s_mov_b32 s16, 40960"); a("s_mov_b32 s17, 81920"); a("s_mov_b32 s18, 122880")
    a(f"s_mov_b32 s19, {spin}")
    a("s_lshr_b32 s13, s12, 1"); a("s_mul_i32 s13, s13, 5"); a("s_and_b32 s14, s12, 1"); a("s_add_u32 s13, s13, s14"); a("s_mov_b32 s14, 2")
    a("s_cmp_eq_u32 s12, 4"); a("s_cselect_b32 s13, 4, s13"); a("s_cselect_b32 s14, 5, s14")
    a("s_mul_i32 s10, s10, 80"); a("s_add_u32 s13, s13, s10")
    a("v_lshrrev_b32 v4, 4, v0"); a("v_lshl_add_u32 v4, v2, 2, v4")
    a("v_and_b32 v5, 7, v4"); a("v_mul_u32_u24 v5, 10, v5"); a("v_lshrrev_b32 v4, 3, v4"); a("v_mul_u32_u24 v4, s14, v4")
    a("v_add3_u32 v2, v4, v5, s13"); a("v_lshlrev_b32 v2, 1, v2")
    a("s_mul_i32 s13, s8, 1280"); mk(OUT, 34, "s13"); a(f"s_mov_b32 s{OUT+2}, 1280"); a(f"s_mov_b32 s{OUT+3}, 0x20000")
    a.waitv_all()
    a.label("L_poll")
    for i in range(4):
        a(f"buffer_load_dwordx4 {x4(32+4*i)}, v1, {srd(RP)}, {['0','s16','s17','s18'][i]} offen sc1")
    a.waitv_all()
    a("v_max3_u32 v4, v32, v33, v34")
    for i in range(35, 47, 2): a(f"v_max3_u32 v4, v4, v{i}, v{i+1}")
    a("v_max_u32 v4, v4, v47")
    a("v_cmp_eq_u32 vcc, -1, v4")
    a("s_sub_u32 s19, s19, 1"); a("s_cbranch_scc1 L_red")
    a("s_cbranch_vccnz L_poll")
    a.label("L_red")
    for j in range(4):
        a(f"v_add_f32 v{32+j}, v{32+j}, v{36+j}"); a(f"v_add_f32 v{40+j}, v{40+j}, v{44+j}")
    for j in range(4): a(f"v_add_f32 v{32+j}, v{32+j}, v{40+j}")
    a("v_permlane32_swap_b32 v32, v34"); a("v_permlane32_swap_b32 v33, v35")
    a("v_add_f32 v32, v32, v34"); a("v_add_f32 v33, v33, v35")
    a("v_permlane16_swap_b32 v32, v33"); a("v_add_f32 v32, v32, v33")
    a("v_add_f32_dpp v32, v32, v32 row_ror:8 row_mask:0xf bank_mask:0xf")
    a("v_add_f32_dpp v32, v32, v32 row_ror:4 row_mask:0xf bank_mask:0xf")
    a("v_cvt_pk_bf16_f32 v32, v32, v32")
    a("s_mov_b32 exec_lo, 0x000f000f"); a("s_mov_b32 exec_hi, 0x000f000f")
    a(f"buffer_store_short v32, v2, {srd(OUT)}, 0 offen")
    a("s_mov_b64 exec, -1")
    if stamps:
        a.waitv_all()
        a("s_memrealtime s[14:15]"); a.waitl(); a(f"v_writelane_b32 v3, s14, {nst[0]}")
    a.label("L_fin")
    if stamps:
        a("s_lshl_b32 s13, s2, 3"); a("s_add_u32 s13, s13, s3"); a("s_lshl_b32 s13, s13, 5"); a(f"s_add_u32 s13, s13, {STOFF}")
        mk(RP, 38, "s13"); a(f"s_mov_b32 s{RP+2}, 32"); a(f"s_mov_b32 s{RP+3}, 0x20000")
        a("v_lshlrev_b32 v1, 2, v0")
        a(f"buffer_store_dword v3, v1, {srd(RP)}, 0 offen")
    a.label("L_end")
    a("s_endpgm")
    a.vm = []; a.lg = []; a.pend = {}
    a.label("L_flag_slow")
    a(f"s_mov_b32 s19, {spin}")
    a.label("L_flag_loop")
    a("s_sleep 8")
    a(f"buffer_load_dword v30, off, {srd(DBG)}, 0 sc1"); a.waitv_all()
    a("v_readfirstlane_b32 s13, v30")
    a("s_sub_u32 s19, s19, 1"); a("s_cbranch_scc1 L_flag_ok")
    a("s_cmp_eq_u32 s13, 256"); a("s_cbranch_scc0 L_flag_loop")
    a("s_branch L_flag_ok")
    a.label("L_ml_slow")
    a(f"s_mov_b32 s19, {spin}")
    a.label("L_ml_loop")
    a("s_sleep 8")
    a("v_lshlrev_b32 v8, 3, v0")
    a(f"buffer_load_dwordx2 v[8:9], v8, {srd(ML)}, 0 offen sc1"); a.waitv_all()
    a(f"v_max_u32 v{HA(31)}, v8, v9"); a(f"v_cmp_eq_u32 vcc, -1, v{HA(31)}")
    a("s_sub_u32 s19, s19, 1"); a("s_cbranch_scc1 L_ml_ok")
    a("s_cbranch_vccnz L_ml_loop")
    a("s_branch L_ml_ok")
    a.raw('.section .rodata,"a"'); a.raw(".p2align 6"); a.raw(f".amdhsa_kernel {KN}_kernel")
    for l in ["next_free_vgpr 256", "next_free_sgpr 102", "accum_offset 256", "group_segment_fixed_size 0", "kernarg_size 96", "user_sgpr_count 2",
              "user_sgpr_kernarg_segment_ptr 1", "system_sgpr_workgroup_id_x 1"]: a.raw("  .amdhsa_" + l)
    a.raw(".end_amdhsa_kernel")
    sys.stderr.write(f"slots {a.n} nops {a.nops} maxv {a.maxv}\n")
    return a.text()

if __name__ == "__main__":
    out = sys.argv[1]
    kw = {}
    for kv in sys.argv[2:]:
        k, v = kv.split("=")
        kw[k] = int(v) if v.lstrip("-").isdigit() else v.replace("+", " ")
    open(out, "w").write(gen(**kw))
```

```python
import sys, struct
from asmlib import Asm
KN = "gated_mix__gqa_block_cached__dense_activation_silu__decode"
def f2u(f): return struct.unpack("<I", struct.pack("<f", f))[0]
LOG2E = f2u(1.4426950408889634)
SCALE = f2u(192 ** -0.5)
MLOFF = 1 << 20
STOFF = 2 << 20
LDS_Q, LDS_O, LDS_F, LDS_P, LDS_OB, LDS_H = 0, 8192, 16384, 17408, 21504, 25600
LDS_SIZE = 26112

def gen(D=16, NP=48, WR=8, k0=2, pbar=2, bar=16, shr=3, stamps=0, kvflags="nt", wflags="nt", spin=200000,
        f1st=40, f1step=2, wost=60, wostep=4, mlld=30, mlpr=50, proto=1):
    a = Asm()
    hdr = open("cdna_kernels/" + KN + ".s.ref").read().split("; Override launch")[0]
    a.raw(hdr.rstrip())
    a.raw(f"; @launch grid=(256,1,1) block=(512,1,1) lds={LDS_SIZE}")
    a.raw('.amdgcn_target "amdgcn-amd-amdhsa--gfx950"')
    a.raw(".text"); a.raw(f".globl {KN}_kernel"); a.raw(".p2align 8"); a.raw(f".type {KN}_kernel,@function"); a.raw(f"{KN}_kernel:")
    K, V, WQ, WO, W1, W2, XQ, XF, GW, P, ML, DBG, RP, OUT = [40 + 4 * i for i in range(14)]
    def srd(n): return f"s[{n}:{n+3}]"
    SLO, SHI, MB1, MB0 = 96, 97, 98, 100
    S = lambda s: 32 + 4 * s
    H = lambda s: 32 + 4 * s + 3
    def x2(r): return f"v[{r}:{r+1}]"
    def x3(r): return f"v[{r}:{r+2}]"
    def x4(r): return f"v[{r}:{r+3}]"
    HR = [H(56 - 16 + i) for i in range(16)]
    nst = [0]
    def stamp():
        if not stamps: return
        a("s_memrealtime s[14:15]"); a.waitl()
        a(f"v_writelane_b32 v3, s14, {nst[0]}")
        nst[0] += 1

    a("s_cmp_ge_u32 s2, 256"); a("s_cbranch_scc1 L_end")
    a("s_load_dwordx16 s[16:31], s[0:1], 0")
    a("s_load_dwordx8 s[32:39], s[0:1], 64")
    a("v_lshrrev_b32 v1, 6, v0")
    a("v_lshlrev_b32 v11, 8, v0")
    a("v_readfirstlane_b32 s3, v1")
    a("v_and_b32 v0, 63, v0")
    a("s_and_b32 s8, s2, 7"); a("s_lshr_b32 s9, s2, 3"); a("s_and_b32 s10, s9, 7")
    a("s_lshr_b32 s4, s10, 1"); a("s_and_b32 s6, s10, 1")
    a("s_andn2_b32 s5, s9, 7"); a("s_add_u32 s5, s5, s8")
    a("s_lshl_b32 s7, s5, 1"); a("s_add_u32 s7, s7, s6")
    a("s_lshl_b32 s11, s4, 6"); a("s_add_u32 s11, s11, s7")
    a("s_mul_i32 s12, s11, 786432"); a("s_mul_i32 s13, s3, 768"); a("s_add_u32 s12, s12, s13")
    a("v_mul_u32_u24 v1, 12, v0")
    a("v_lshrrev_b32 v6, 5, v0")
    a("v_and_b32 v7, 31, v0")
    a("v_mul_u32_u24 v7, 12, v7")
    a(f"v_mul_u32_u24 v2, {40*12288}, v6"); a("v_add_u32 v2, v2, v7")
    a("v_mul_u32_u24 v10, 80, v6")
    for n in (K, WQ, XQ): a(f"s_mov_b32 s{n+3}, 0x20000")
    a(f"s_mov_b32 s{K+2}, {786432-7*768}")
    a(f"s_mov_b32 s{WQ+2}, {79*12288+384}")
    a(f"s_mov_b32 s{XQ+2}, 160")
    a("s_lshl_b32 s7, s8, 3"); a("s_lshr_b32 s9, s9, 3"); a("s_lshl_b32 s9, s9, 1"); a("s_add_u32 s7, s7, s9"); a("s_add_u32 s7, s7, s6")
    a("s_mul_i32 s8, s3, 160")
    a("s_mul_i32 s9, s4, 1280")
    a(f"s_mul_i32 s13, s3, {80*12288}"); a("s_mul_i32 s10, s5, 384"); a("s_add_u32 s13, s13, s10")
    a("s_add_u32 s10, s9, s8")
    if stamps: a("v_mov_b32 v3, 0")
    a.waitl()
    stamp()
    def mk(n, ptr, off):
        a(f"s_add_u32 s{n}, s{ptr}, {off}"); a(f"s_addc_u32 s{n+1}, s{ptr+1}, 0")
    mk(K, 18, "s12")
    free = []; slot = {}
    init = list(range(56 - D, 56)) + list(range(55 - D, WR - 1, -1))
    assert NP <= len(init)
    kn = [0]
    def kload(sl):
        t = kn[0]
        if t >= 256: return
        kn[0] += 1; slot[t] = sl
        a(f"s_mov_b32 s18, {(t%128)*6144}")
        a(f"buffer_load_dwordx3 {x3(S(sl))}, v1, {srd(K if t < 128 else V)}, s18 offen {kvflags}", tag=("kv", t))
    def wqload(i):
        a(f"s_mov_b32 s19, {i*12288}")
        a(f"buffer_load_dwordx3 {x3(S(i%WR))}, v2, {srd(WQ)}, s19 offen {wflags}", tag=("wq", i))
    for t in range(k0): kload(init[kn[0]])
    mk(XQ, 16, "s10"); mk(WQ, 22, "s13")
    for i in range(5): a(f"buffer_load_dwordx4 {x4(12+4*i)}, v10, {srd(XQ)}, 0 offen offset:{16*i} {wflags}", tag=("xq", i))
    npair = 20
    def kfill(p):
        tgt = k0 + (NP - k0) * (p + 1) // npair
        while kn[0] < tgt: kload(init[kn[0]])
    def setup2():
        a(f"s_mov_b32 s{SLO}, 0x05040100"); a(f"s_mov_b32 s{SHI}, 0x07060302")
        a(f"s_mov_b32 s{MB1}, 0xcccccccc"); a(f"s_mov_b32 s{MB1+1}, 0xcccccccc")
        a(f"s_mov_b32 s{MB0}, 0xaaaaaaaa"); a(f"s_mov_b32 s{MB0+1}, 0xaaaaaaaa")
        for n in (V, WO, W1, W2, XF, GW, P, ML, DBG): a(f"s_mov_b32 s{n+3}, 0x20000")
        a(f"s_mov_b32 s{V+2}, {786432-7*768}")
        a(f"s_mov_b32 s{WO+2}, {191*1280+160}")
        a("s_mul_i32 s13, s7, 48"); a(f"s_sub_u32 s{W1+2}, {640*3072}, s13"); mk(W1, 28, "s13")
        a(f"s_mov_b32 s{W2+2}, {23*1280+160}")
        a(f"s_mov_b32 s{XF+2}, 1280"); a(f"s_mov_b32 s{GW+2}, 1280")
        a(f"s_mov_b32 s{P+2}, 320"); a(f"s_mov_b32 s{ML+2}, 128"); a(f"s_mov_b32 s{DBG+2}, 256")
        mk(XF, 16, "s9"); mk(GW, 32, "0"); mk(V, 20, "s12")
        a(f"s_mul_i32 s13, s5, {192*1280}"); a("s_add_u32 s13, s13, s8"); mk(WO, 24, "s13")
        a(f"s_mul_i32 s13, s7, {24*1280}"); a("s_add_u32 s13, s13, s8"); mk(W2, 30, "s13")
        a("s_mul_i32 s13, s11, 2560"); a("s_lshl_b32 s14, s8, 1"); a("s_add_u32 s13, s13, s14"); mk(P, 38, "s13")
        a("s_lshr_b32 s13, s11, 1"); a("s_lshl_b32 s13, s13, 7"); a(f"s_add_u32 s13, s13, {MLOFF}"); mk(ML, 38, "s13")
        mk(DBG, 36, "0")
        for i in range(6, 10): a(f"v_mov_b32 v{i}, -1")
        a("v_lshlrev_b32 v10, 4, v0")
        a("s_lshl_b32 s13, s6, 3"); a("s_add_u32 s13, s13, s3"); a("s_lshl_b32 s13, s13, 3")
        a("v_lshlrev_b32 v5, 7, v0"); a("v_add_u32 v5, s13, v5")
        if proto:
            a(f"buffer_store_dwordx4 v[6:9], v10, {srd(P)}, 0 offen sc1", tag="clr0")
            a(f"buffer_store_dwordx2 v[6:7], v5, {srd(ML)}, 0 offen sc1", tag="clr1")
    for p in range(WR // 2):
        wqload(2 * p); wqload(2 * p + 1); kfill(p)
        if p == 0: setup2()
        if pbar and p % pbar == pbar - 1: a("s_barrier")
    T = HR[0:6]; QA = [6, 7, 8, 9, HR[6], HR[7]]
    for j in range(6): a(f"v_mov_b32 v{QA[j]}, 0")
    stamp()
    for k in range(npair):
        a.waitv(("wq", 2 * k + 1))
        A_, B_ = S((2 * k) % WR), S((2 * k + 1) % WR)
        for d in range(3):
            a(f"v_perm_b32 v{T[2*d]}, v{B_+d}, v{A_+d}, s{SLO}"); a(f"v_perm_b32 v{T[2*d+1]}, v{B_+d}, v{A_+d}, s{SHI}")
        pn = k + WR // 2
        if pn < npair:
            wqload(2 * pn); wqload(2 * pn + 1); kfill(pn)
        for j in range(6): a(f"v_dot2c_f32_bf16 v{QA[j]}, v{T[j]}, v{12+k}")
        if pbar and pn < npair and pn % pbar == pbar - 1: a("s_barrier")
    for j in range(3): a(f"v_permlane32_swap_b32 v{QA[j]}, v{QA[j+3]}")
    for j in range(3): a(f"v_add_f32 v{QA[j]}, v{QA[j]}, v{QA[j+3]}")
    a("s_lshl_b32 s13, s3, 10"); a(f"v_add_u32 v{T[0]}, s13, v10")
    a(f"ds_write_b128 v{T[0]}, v[6:9] offset:{LDS_Q}")
    a.waitv("clr1")
    a.waitl()
    a("s_barrier")
    for w in range(8): a(f"ds_read_b96 {x3(S(w))}, v10 offset:{LDS_Q+1024*w}", tag=("qr", w))
    if proto:
        a("v_mov_b32 v12, 1")
        a(f"buffer_atomic_add v12, v11, {srd(DBG)}, 0 offen sc1", tag="flag")
    a("v_and_b32 v13, 15, v0"); a("v_mul_u32_u24 v14, 52, v13"); a("v_lshrrev_b32 v14, 8, v14")
    a("v_mul_u32_u24 v15, 5, v14"); a("v_sub_u32 v13, v13, v15")
    a("v_bfe_u32 v15, v0, 4, 1"); a("v_mad_u32_u24 v13, v15, 5, v13")
    a("v_lshrrev_b32 v15, 5, v0"); a("v_mad_u32_u24 v16, v15, 3, v14")
    a("v_cmp_eq_u32 vcc, 3, v14"); a("v_cndmask_b32_e64 v16, v16, 6, vcc")
    a("v_lshlrev_b32 v17, 4, v13")
    a(f"v_mul_u32_u24 v2, {32*1280}, v16"); a("v_add_u32 v2, v2, v17")
    a(f"v_mul_u32_u24 v11, {4*1280}, v16"); a("v_add_u32 v11, v11, v17")
    a("v_lshlrev_b32 v17, 1, v17"); a("v_lshl_add_u32 v31, v15, 4, v17")
    a("v_mov_b32 v30, v16")
    for w in range(1, 8):
        a.waitl(("qr", w))
        for j in range(3): a(f"v_add_f32 v{S(0)+j}, v{S(0)+j}, v{S(w)+j}")
    for j in range(3): a(f"v_mov_b32 v{S(1)+j}, v{S(0)+j}")
    for j in range(3): a(f"v_permlane32_swap_b32 v{S(0)+j}, v{S(1)+j}")
    Q = [20, 21, 22]
    a(f"v_cvt_pk_bf16_f32 v20, v{S(0)}, v{S(0)+1}")
    a(f"v_cvt_pk_bf16_f32 v21, v{S(0)+2}, v{S(1)}")
    a(f"v_cvt_pk_bf16_f32 v22, v{S(1)+1}, v{S(1)+2}")
    stamp()
    ACC = list(range(12, 20)); SC = [24, 25, 26, 27]
    X = HR[0:4]; Y = HR[4:6]; Z = HR[6:8]; W_ = HR[8:10]; U = HR[10:12]
    hooks = {t: [] for t in range(256)}
    FS = list(range(0, 8))
    def f1addr():
        a("v_lshrrev_b32 v6, 2, v0"); a("v_mul_u32_u24 v6, 6, v6")
        a("s_mul_i32 s13, s3, 96"); a("v_add_u32 v6, s13, v6")
        a("v_lshlrev_b32 v7, 1, v6")
        a("v_mul_u32_u24 v6, 3072, v6"); a("v_and_b32 v8, 3, v0"); a("v_mad_u32_u24 v6, v8, 12, v6")
        a(f"buffer_load_dwordx3 {x3(S(FS[6]))}, v7, {srd(XF)}, 0 offen {wflags}", tag="xf")
        a(f"buffer_load_dwordx3 {x3(S(FS[7]))}, v7, {srd(GW)}, 0 offen {wflags}", tag="gw")
    hooks[f1st].append(f1addr)
    def w1load(i):
        def f():
            a(f"s_mov_b32 s19, {i*3072}")
            a(f"buffer_load_dwordx3 {x3(S(FS[i]))}, v6, {srd(W1)}, s19 offen {wflags}", tag=("w1", i))
        return f
    for i in range(6): hooks[f1st + 1 + f1step * i].append(w1load(i))
    tf1 = f1st + 1 + f1step * 5 + D + 2
    def ffn1():
        a.waitv(("w1", 5))
        F = [H(FS[i]) for i in range(8)]
        T = [4, 6, 7, 8, 9, 29]
        for k in range(3):
            for d in range(3):
                A_, B_ = S(FS[2 * k]) + d, S(FS[2 * k + 1]) + d
                a(f"v_perm_b32 v{T[2*d]}, v{B_}, v{A_}, s{SLO}"); a(f"v_perm_b32 v{T[2*d+1]}, v{B_}, v{A_}, s{SHI}")
            for j in range(6):
                a(f"v_dot2_f32_bf16 v{F[j]}, v{T[j]}, v{S(FS[6])+k}, {'0' if k == 0 else 'v%d' % F[j]}")
        a("s_mov_b32 s13, 0x3f803f80"); a("s_mov_b32 s14, 0xffff0000")
        for k in range(3):
            xr, gr = S(FS[6]) + k, S(FS[7]) + k
            a(f"v_lshlrev_b32 v{T[0]}, 16, v{xr}"); a(f"v_and_b32 v{T[1]}, s14, v{xr}")
            a(f"v_lshlrev_b32 v{T[2]}, 16, v{gr}"); a(f"v_and_b32 v{T[3]}, s14, v{gr}")
            a(f"v_mul_f32 v{T[0]}, v{T[0]}, v{T[2]}"); a(f"v_mul_f32 v{T[1]}, v{T[1]}, v{T[3]}")
            a(f"v_cvt_pk_bf16_f32 v{T[4]}, v{T[0]}, v{T[1]}")
            a(f"v_dot2_f32_bf16 v{F[6]}, v{T[4]}, s13, {'0' if k == 0 else 'v%d' % F[6]}")
        a(f"v_mov_b32 v{F[7]}, 0")
        for j in range(4): a(f"v_permlane32_swap_b32 v{F[j]}, v{F[j+4]}")
        for j in range(4): a(f"v_add_f32 v{T[j]}, v{F[j]}, v{F[j+4]}")
        for j in range(2): a(f"v_permlane16_swap_b32 v{T[j]}, v{T[j+2]}")
        for j in range(2): a(f"v_add_f32 v{T[j]}, v{T[j]}, v{T[j+2]}")
        a(f"v_lshrrev_b32 v{T[2]}, 3, v0"); a(f"v_lshlrev_b32 v{T[2]}, 4, v{T[2]}")
        a(f"v_add_f32_dpp v{T[0]}, v{T[0]}, v{T[0]} row_ror:8 row_mask:0xf bank_mask:0x3")
        a(f"v_and_b32 v{T[3]}, 3, v0"); a(f"v_lshl_add_u32 v{T[2]}, v{T[3]}, 2, v{T[2]}")
        a(f"v_add_f32_dpp v{T[0]}, v{T[1]}, v{T[1]} row_ror:8 row_mask:0xf bank_mask:0xc")
        a("s_lshl_b32 s13, s3, 7"); a(f"v_add_u32 v{T[2]}, s13, v{T[2]}")
        a(f"v_add_f32_dpp v{T[1]}, v{T[0]}, v{T[0]} row_shl:4 row_mask:0xf bank_mask:0x5")
        a(f"v_add_f32_dpp v{T[1]}, v{T[0]}, v{T[0]} row_shr:4 row_mask:0xf bank_mask:0xa")
        a(f"ds_write_b32 v{T[2]}, v{T[1]} offset:{LDS_F}")
        a.waitl()
    hooks[tf1].append(ffn1)
    def w2load(i):
        def f(): a(f"buffer_load_dwordx4 {x4(S(FS[i]))}, v11, {srd(W2)}, 0 offen offset:{1280*i} {wflags}", tag=("w2", i))
        return f
    for i in range(4): hooks[tf1 + 1 + 2 * i].append(w2load(i))
    tf2 = tf1 + 8 + D + 2
    assert bar and (tf2 // bar) > (tf1 // bar) and tf2 < 127, (tf1, tf2)
    def ffn2():
        a.waitv(("w2", 3))
        a("v_and_b32 v4, 31, v0"); a("v_lshlrev_b32 v4, 2, v4")
        for w in range(8): a(f"ds_read_b32 v{ACC[w]}, v4 offset:{LDS_F+128*w}")
        a("v_and_b32 v6, 3, v0"); a("v_mul_u32_u24 v6, 12, v6"); a("v_bfe_u32 v7, v0, 2, 3"); a("v_lshl_add_u32 v6, v7, 1, v6")
        a("v_cmp_lt_u32 vcc, 5, v7"); a("v_cndmask_b32_e64 v6, v6, 56, vcc")
        a("s_lshl_b32 s13, s3, 6"); a("v_add_u32 v6, s13, v6")
        a("v_lshl_add_u32 v4, v30, 3, s13")
        a.waitl()
        for w in range(1, 8): a(f"v_add_f32 v{ACC[0]}, v{ACC[0]}, v{ACC[w]}")
        a(f"v_cvt_pk_bf16_f32 v7, v{ACC[0]}, v{ACC[0]}"); a("v_lshlrev_b32 v7, 16, v7")
        a(f"v_mul_f32 v8, {LOG2E ^ 0x80000000:#x}, v7"); a("v_exp_f32 v8, v8"); a("v_add_f32 v8, 1.0, v8"); a("v_rcp_f32 v8, v8")
        a("v_mul_f32 v9, v7, v8"); a("v_cvt_pk_bf16_f32 v9, v9, v9")
        a(f"ds_write_b16 v6, v9 offset:{LDS_H}")
        a("v_cvt_pk_bf16_f32 v8, v8, v8"); a("v_lshlrev_b32 v8, 16, v8")
        a("v_sub_f32 v29, 1.0, v8"); a("v_cvt_pk_bf16_f32 v29, v29, v29"); a("v_lshlrev_b32 v29, 16, v29")
        a("v_readlane_b32 s22, v8, 24"); a("v_readlane_b32 s23, v29, 24")
        a.waitl()
        a(f"ds_read_b64 v[6:7], v4 offset:{LDS_H}")
        a.waitl()
        for k in range(2):
            for d in range(4):
                A_, B_ = S(FS[2 * k]) + d, S(FS[2 * k + 1]) + d
                a(f"v_perm_b32 v8, v{B_}, v{A_}, s{SLO}"); a(f"v_perm_b32 v9, v{B_}, v{A_}, s{SHI}")
                a(f"v_dot2_f32_bf16 v{ACC[2*d]}, v8, v{6+k}, {'0' if k == 0 else 'v%d' % ACC[2*d]}")
                a(f"v_dot2_f32_bf16 v{ACC[2*d+1]}, v9, v{6+k}, {'0' if k == 0 else 'v%d' % ACC[2*d+1]}")
        for j in range(8): a(f"v_mul_f32 v{ACC[j]}, s23, v{ACC[j]}")
    hooks[tf2].append(ffn2)
    WS = list(range(8, 40))
    assert wost >= NP
    WP = [[None] * 8 for _ in range(16)]
    spare = [23]
    def woload(i):
        def f():
            a(f"s_mov_b32 s19, {i*1280}")
            a(f"buffer_load_dwordx4 {x4(S(WS[i]))}, v2, {srd(WO)}, s19 offen {wflags}", tag=("wo", i))
        return f
    def woperm(k):
        def f():
            a.waitv(("wo", 2 * k + 1))
            for d in range(4):
                A_, B_ = S(WS[2 * k]) + d, S(WS[2 * k + 1]) + d
                s = spare[0]
                a(f"v_perm_b32 v{s}, v{B_}, v{A_}, s{SLO}"); a(f"v_perm_b32 v{B_}, v{B_}, v{A_}, s{SHI}")
                WP[k][2 * d] = s; WP[k][2 * d + 1] = B_; spare[0] = A_
        return f
    for i in range(32): hooks[wost + wostep * i].append(woload(i))
    for k in range(16): hooks[min(255, wost + wostep * (2 * k + 1) + D + 3)].append(woperm(k))
    if proto: hooks[100].append(lambda: a(f"buffer_load_dword v28, off, {srd(DBG)}, 0 sc1", tag="flagld"))
    def release(t):
        if slot[t] >= 56 - D: free.append(slot[t])
        if free and (kn[0] - t - 1 < D or t % shr == shr - 1): kload(free.pop(0))
    def lvl(s_, t):
        if s_ % 2 == 1:
            x, y = X[(s_ - 1) % 4], X[s_ % 4]
            a(f"v_permlane16_swap_b32 v{x}, v{y}"); a(f"v_add_f32 v{Y[(s_>>1)&1]}, v{x}, v{y}")
        if s_ % 4 == 3:
            z = Z[(s_ >> 2) & 1]
            a(f"v_add_f32_dpp v{z}, v{Y[0]}, v{Y[0]} row_ror:8 row_mask:0xf bank_mask:0x3")
            a(f"v_add_f32_dpp v{z}, v{Y[1]}, v{Y[1]} row_ror:8 row_mask:0xf bank_mask:0xc")
        if s_ % 8 == 7:
            w = W_[(s_ >> 3) & 1]
            a(f"v_add_f32_dpp v{w}, v{Z[0]}, v{Z[0]} row_shl:4 row_mask:0xf bank_mask:0x5")
            a(f"v_add_f32_dpp v{w}, v{Z[1]}, v{Z[1]} row_shr:4 row_mask:0xf bank_mask:0xa")
            a(f"v_add_f32_dpp v{w}, v{w}, v{w} quad_perm:[2,3,0,1] row_mask:0xf bank_mask:0xf")
        if s_ % 16 == 15:
            u = U[(s_ >> 4) & 1]
            a(f"v_cndmask_b32_e64 v{u}, v{W_[0]}, v{W_[1]}, s[{MB1}:{MB1+1}]")
            a(f"v_add_f32_dpp v{u}, v{u}, v{u} quad_perm:[1,0,3,2] row_mask:0xf bank_mask:0xf")
        if s_ == 31:
            a(f"v_cndmask_b32_e64 v{SC[t//32]}, v{U[0]}, v{U[1]}, s[{MB0}:{MB0+1}]")
    for t in range(128):
        r = S(slot[t]); hreg = X[t % 4]
        a.waitv(("kv", t))
        a(f"v_dot2_f32_bf16 v{hreg}, v{r}, v{Q[0]}, 0")
        a(f"v_dot2_f32_bf16 v{hreg}, v{r+1}, v{Q[1]}, v{hreg}")
        a(f"v_dot2_f32_bf16 v{hreg}, v{r+2}, v{Q[2]}, v{hreg}")
        release(t)
        if t > 0: lvl((t - 1) % 32, t - 1)
        if t == 127: lvl(31, t)
        for f in hooks[t]: f()
        if bar and t % bar == bar - 1: a("s_barrier")
    stamp()
    a("s_mov_b32 s14, 0xffff0000")
    for j in (0, 2):
        a(f"v_cvt_pk_bf16_f32 v6, v{SC[j]}, v{SC[j+1]}")
        a(f"v_lshlrev_b32 v{SC[j]}, 16, v6"); a(f"v_and_b32 v{SC[j+1]}, s14, v6")
        a(f"v_mul_f32 v{SC[j]}, {SCALE:#x}, v{SC[j]}"); a(f"v_mul_f32 v{SC[j+1]}, {SCALE:#x}, v{SC[j+1]}")
        a(f"v_cvt_pk_bf16_f32 v6, v{SC[j]}, v{SC[j+1]}")
        a(f"v_lshlrev_b32 v{SC[j]}, 16, v6"); a(f"v_and_b32 v{SC[j+1]}, s14, v6")
    def wave_red(op, r, sdst):
        for m in ("quad_perm:[1,0,3,2] row_mask:0xf", "quad_perm:[2,3,0,1] row_mask:0xf", "row_half_mirror row_mask:0xf", "row_mirror row_mask:0xf",
                  "row_bcast:15 row_mask:0xa", "row_bcast:31 row_mask:0xc"):
            a(f"{op}_dpp v{r}, v{r}, v{r} {m} bank_mask:0xf")
        a(f"v_readlane_b32 s{sdst}, v{r}, 63")
    a(f"v_max3_f32 v6, v{SC[0]}, v{SC[1]}, v{SC[2]}"); a(f"v_max_f32 v6, v6, v{SC[3]}")
    wave_red("v_max_f32", 6, 20)
    a(f"v_mov_b32 v7, {LOG2E:#x}")
    a("v_mul_f32 v6, s20, v7")
    for j in range(4): a(f"v_fma_f32 v{SC[j]}, v{SC[j]}, v7, -v6")
    for j in range(4): a(f"v_exp_f32 v{SC[j]}, v{SC[j]}")
    a("v_bfrev_b32 v4, v0"); a("v_lshrrev_b32 v4, 27, v4"); a("v_lshlrev_b32 v4, 1, v4")
    a("v_lshrrev_b32 v11, 5, v0"); a("v_lshlrev_b32 v11, 8, v11"); a("s_lshl_b32 s13, s3, 9"); a("v_add_u32 v11, s13, v11")
    a("v_add_u32 v4, v4, v11")
    a(f"v_cvt_pk_bf16_f32 v8, v{SC[0]}, v{SC[1]}"); a(f"v_cvt_pk_bf16_f32 v9, v{SC[2]}, v{SC[3]}")
    a(f"ds_write_b16 v4, v8 offset:{LDS_P}"); a(f"ds_write_b16_d16_hi v4, v8 offset:{LDS_P+64}")
    a(f"ds_write_b16 v4, v9 offset:{LDS_P+128}"); a(f"ds_write_b16_d16_hi v4, v9 offset:{LDS_P+192}")
    a(f"v_add_f32 v6, v{SC[0]}, v{SC[1]}"); a(f"v_add_f32 v7, v{SC[2]}, v{SC[3]}"); a("v_add_f32 v6, v6, v7")
    wave_red("v_add_f32", 6, 21)
    a("v_mov_b32 v20, s20"); a("v_mov_b32 v21, s21")
    a(f"buffer_store_dwordx2 v[20:21], v5, {srd(ML)}, 0 offen sc1", tag="mlst")
    if proto:
        a.waitv("flagld")
        a("v_readfirstlane_b32 s13, v28")
        a("s_cmp_ge_u32 s13, 256"); a("s_cbranch_scc0 L_flag_slow")
        a.label("L_flag_ok")
    PB = [4, 24]
    VA = HR[6:12]; T = HR[0:6]; R_ = HR[12]
    a.waitl()
    a(f"ds_read_b128 {x4(PB[0])}, v11 offset:{LDS_P}", tag=("pb", 0))
    a(f"ds_read_b128 {x4(PB[1])}, v11 offset:{LDS_P+16}", tag=("pb", 1))
    for j in range(6): a(f"v_mov_b32 v{VA[j]}, 0")
    def mlload():
        a("v_lshlrev_b32 v8, 3, v0")
        a(f"buffer_load_dwordx2 v[8:9], v8, {srd(ML)}, 0 offen sc1", tag="ml")
    hooks[128 + 2 * mlld + 1].append(mlload)
    def mlproc():
        a.waitv("ml")
        r = R_
        if proto:
            a(f"v_max_u32 v{r}, v8, v9"); a(f"v_cmp_eq_u32 vcc, -1, v{r}")
            a("s_cbranch_vccnz L_ml_slow")
            a.label("L_ml_ok")
        a(f"v_mov_b32 v{r}, v8")
        for m in ("quad_perm:[1,0,3,2]", "quad_perm:[2,3,0,1]", "row_half_mirror", "row_mirror"):
            a(f"v_max_f32_dpp v{r}, v{r}, v{r} {m} row_mask:0xf bank_mask:0xf")
        a(f"v_sub_f32 v8, v8, v{r}"); a(f"v_mul_f32 v8, {LOG2E:#x}, v8"); a("v_exp_f32 v8, v8"); a("v_mul_f32 v8, v8, v9")
        for m in ("quad_perm:[1,0,3,2]", "quad_perm:[2,3,0,1]", "row_half_mirror", "row_mirror"):
            a(f"v_add_f32_dpp v8, v8, v8 {m} row_mask:0xf bank_mask:0xf")
        a(f"v_sub_f32 v{r}, s20, v{r}"); a(f"v_mul_f32 v{r}, {LOG2E:#x}, v{r}"); a(f"v_exp_f32 v{r}, v{r}")
        a("v_rcp_f32 v8, v8"); a(f"v_mul_f32 v{r}, v{r}, v8"); a(f"v_mul_f32 v{r}, s22, v{r}")
        a(f"v_readfirstlane_b32 s24, v{r}")
        a("s_lshl_b32 s13, s3, 10"); a("v_add_u32 v8, s13, v10")
        a("v_and_b32 v9, 31, v0"); a("v_lshlrev_b32 v9, 1, v9"); a(f"v_lshrrev_b32 v{r}, 5, v0"); a(f"v_add_u32 v9, v9, v{r}"); a("v_mul_u32_u24 v9, 6, v9")
        a("s_lshl_b32 s13, s3, 9"); a("v_add_u32 v9, s13, v9")
        a("v_lshl_add_u32 v29, v30, 6, s13")
        a("s_mul_i32 s8, s2, 1639"); a("s_lshr_b32 s8, s8, 16")
        a("s_mul_i32 s9, s8, 40"); a("s_sub_u32 s9, s2, s9")
        a(f"s_mul_i32 s13, s8, {64*2560}"); a("s_lshl_b32 s14, s9, 6"); a("s_add_u32 s13, s13, s14"); mk(RP, 38, "s13")
        a(f"s_mov_b32 s{RP+2}, {63*2560+64}"); a(f"s_mov_b32 s{RP+3}, 0x20000")
        a("s_mul_i32 s13, s8, 1280"); a("s_lshl_b32 s14, s9, 5"); a("s_add_u32 s13, s13, s14")
        mk(OUT, 34, "s13"); a(f"s_mov_b32 s{OUT+2}, 32"); a(f"s_mov_b32 s{OUT+3}, 0x20000")
        a("v_lshrrev_b32 v20, 2, v0"); a("v_mul_u32_u24 v20, 2560, v20"); a("v_and_b32 v21, 3, v0"); a("v_lshl_add_u32 v20, v21, 4, v20")
        a("v_lshrrev_b32 v22, 4, v0"); a("v_lshl_add_u32 v21, v21, 2, v22"); a("v_lshlrev_b32 v21, 1, v21")
        a("s_mov_b32 s25, 40960"); a("s_mov_b32 s26, 81920"); a("s_mov_b32 s27, 122880")
        a(f"s_mov_b32 s28, {spin}")
    hooks[128 + 2 * mlpr + 1].append(mlproc)
    for k in range(64):
        t = 128 + 2 * k
        a.waitv(("kv", t + 1))
        A_, B_ = S(slot[t]), S(slot[t + 1])
        for d in range(3):
            a(f"v_perm_b32 v{T[2*d]}, v{B_+d}, v{A_+d}, s{SLO}"); a(f"v_perm_b32 v{T[2*d+1]}, v{B_+d}, v{A_+d}, s{SHI}")
        release(t); release(t + 1)
        j4 = k // 4
        a.waitl(("pb", j4))
        pr = PB[j4 % 2] + k % 4
        for j in range(6): a(f"v_dot2c_f32_bf16 v{VA[j]}, v{T[j]}, v{pr}")
        if k % 4 == 3 and j4 + 2 < 16:
            a(f"ds_read_b128 {x4(PB[j4%2])}, v11 offset:{LDS_P+16*(j4+2)}", tag=("pb", j4 + 2))
        for f in hooks[t] + hooks[t + 1]: f()
        if bar and (t + 1) % bar == bar - 1 and t + 1 < 255 - D: a("s_barrier")
    stamp()
    for j in range(3): a(f"v_permlane32_swap_b32 v{VA[j]}, v{VA[j+3]}")
    for j in range(3): a(f"v_add_f32 v{VA[j]}, v{VA[j]}, v{VA[j+3]}")
    for j in range(3): a(f"v_mul_f32 v{4+j}, s24, v{VA[j]}")
    a(f"ds_write_b96 v8, v[4:6] offset:{LDS_O}")
    a.waitl(); a("s_barrier")
    RS = lambda w: S(40 + w)
    for w in range(8): a(f"ds_read_b96 {x3(RS(w))}, v10 offset:{LDS_O+1024*w}", tag=("or", w))
    for w in range(1, 8):
        a.waitl(("or", w))
        for j in range(3): a(f"v_add_f32 v{RS(0)+j}, v{RS(0)+j}, v{RS(w)+j}")
    a(f"v_cvt_pk_bf16_f32 v4, v{RS(0)}, v{RS(0)+1}"); a(f"v_cvt_pk_bf16_f32 v5, v{RS(0)+2}, v{RS(0)+2}")
    a(f"ds_write_b16 v9, v4 offset:{LDS_OB}"); a(f"ds_write_b16_d16_hi v9, v4 offset:{LDS_OB+2}"); a(f"ds_write_b16 v9, v5 offset:{LDS_OB+4}")
    a.waitl()
    OP = [S(48 + i) for i in range(4)]
    for i in range(4): a(f"ds_read_b128 {x4(OP[i])}, v29 offset:{LDS_OB+16*i}", tag=("ob", i))
    for k in range(16):
        a.waitl(("ob", k // 4))
        for j in range(8): a(f"v_dot2c_f32_bf16 v{ACC[j]}, v{WP[k][j]}, v{OP[k//4]+k%4}")
    for j in range(4): a(f"v_permlane32_swap_b32 v{ACC[j]}, v{ACC[j+4]}")
    for j in range(4): a(f"v_add_f32 v{ACC[j]}, v{ACC[j]}, v{ACC[j+4]}")
    for j in range(4): a(f"v_add_f32_dpp v{4+j}, v{ACC[j]}, v{ACC[j]} row_shl:5 row_mask:0xf bank_mask:0xf")
    for j in range(4): a(f"v_add_f32_dpp v{4+j}, v{ACC[j]}, v{4+j} row_shl:10 row_mask:0xf bank_mask:0xf")
    for j in range(4): a(f"v_min_u32 v{4+j}, -2, v{4+j}")
    a("s_mov_b32 exec_lo, 0x001f001f"); a("s_mov_b32 exec_hi, 0x001f001f")
    a(f"buffer_store_dwordx4 v[4:7], v31, {srd(P)}, 0 offen sc1")
    a("s_mov_b64 exec, -1")
    stamp()
    a("s_cmp_lg_u32 s3, 0"); a("s_cbranch_scc1 L_fin")
    a("s_cmp_ge_u32 s2, 160"); a("s_cbranch_scc1 L_fin")
    a.label("L_poll")
    for i in range(4):
        a(f"buffer_load_dwordx4 {x4(32+4*i)}, v20, {srd(RP)}, {['0','s25','s26','s27'][i]} offen sc1")
    a.waitv_all()
    a("v_max3_u32 v4, v32, v33, v34")
    for i in range(35, 47, 2): a(f"v_max3_u32 v4, v4, v{i}, v{i+1}")
    a("v_max_u32 v4, v4, v47")
    a("v_cmp_eq_u32 vcc, -1, v4")
    a("s_sub_u32 s28, s28, 1"); a("s_cbranch_scc1 L_red")
    a("s_cbranch_vccnz L_poll")
    a.label("L_red")
    for j in range(4):
        a(f"v_add_f32 v{32+j}, v{32+j}, v{36+j}"); a(f"v_add_f32 v{40+j}, v{40+j}, v{44+j}")
    for j in range(4): a(f"v_add_f32 v{32+j}, v{32+j}, v{40+j}")
    a("v_permlane32_swap_b32 v32, v34"); a("v_permlane32_swap_b32 v33, v35")
    a("v_add_f32 v32, v32, v34"); a("v_add_f32 v33, v33, v35")
    a("v_permlane16_swap_b32 v32, v33"); a("v_add_f32 v32, v32, v33")
    a("v_add_f32_dpp v32, v32, v32 row_ror:8 row_mask:0xf bank_mask:0xf")
    a("v_add_f32_dpp v32, v32, v32 row_ror:4 row_mask:0xf bank_mask:0xf")
    a("v_cvt_pk_bf16_f32 v32, v32, v32")
    a("s_mov_b32 exec_lo, 0x000f000f"); a("s_mov_b32 exec_hi, 0x000f000f")
    a(f"buffer_store_short v32, v21, {srd(OUT)}, 0 offen")
    a("s_mov_b64 exec, -1")
    if stamps:
        a.waitv_all()
        a("s_memrealtime s[14:15]"); a.waitl(); a(f"v_writelane_b32 v3, s14, {nst[0]}")
    a.label("L_fin")
    if stamps:
        a("s_lshl_b32 s13, s2, 3"); a("s_add_u32 s13, s13, s3"); a("s_lshl_b32 s13, s13, 5"); a(f"s_add_u32 s13, s13, {STOFF}")
        mk(RP, 38, "s13"); a(f"s_mov_b32 s{RP+2}, 32"); a(f"s_mov_b32 s{RP+3}, 0x20000")
        a("v_lshlrev_b32 v1, 2, v0")
        a(f"buffer_store_dword v3, v1, {srd(RP)}, 0 offen")
    a.label("L_end")
    a("s_endpgm")
    if proto:
        a.vm = []; a.lg = []; a.pend = {}
        a.label("L_flag_slow")
        a(f"s_mov_b32 s28, {spin}")
        a.label("L_flag_loop")
        a("s_sleep 8")
        a(f"buffer_load_dword v28, off, {srd(DBG)}, 0 sc1"); a.waitv_all()
        a("v_readfirstlane_b32 s13, v28")
        a("s_sub_u32 s28, s28, 1"); a("s_cbranch_scc1 L_flag_ok")
        a("s_cmp_ge_u32 s13, 256"); a("s_cbranch_scc0 L_flag_loop")
        a("s_branch L_flag_ok")
        a.label("L_ml_slow")
        a(f"s_mov_b32 s28, {spin}")
        a.label("L_ml_loop")
        a("s_sleep 8")
        a("v_lshlrev_b32 v8, 3, v0")
        a(f"buffer_load_dwordx2 v[8:9], v8, {srd(ML)}, 0 offen sc1"); a.waitv_all()
        a(f"v_max_u32 v{HR[12]}, v8, v9"); a(f"v_cmp_eq_u32 vcc, -1, v{HR[12]}")
        a("s_sub_u32 s28, s28, 1"); a("s_cbranch_scc1 L_ml_ok")
        a("s_cbranch_vccnz L_ml_loop")
        a("s_branch L_ml_ok")
    a.raw('.section .rodata,"a"'); a.raw(".p2align 6"); a.raw(f".amdhsa_kernel {KN}_kernel")
    for l in ["next_free_vgpr 256", "next_free_sgpr 102", "accum_offset 256", "group_segment_fixed_size 0", "kernarg_size 96", "user_sgpr_count 2",
              "user_sgpr_kernarg_segment_ptr 1", "system_sgpr_workgroup_id_x 1"]: a.raw("  .amdhsa_" + l)
    a.raw(".end_amdhsa_kernel")
    sys.stderr.write(f"slots {a.n} nops {a.nops} maxv {a.maxv} tf1 {tf1} tf2 {tf2}\n")
    return a.text()

if __name__ == "__main__":
    out = sys.argv[1]
    kw = {}
    for kv in sys.argv[2:]:
        k, v = kv.split("=")
        kw[k] = int(v) if v.lstrip("-").isdigit() else v.replace("+", " ")
    open(out, "w").write(gen(**kw))
```

```python
import sys, struct
from asmlib import Asm
KN = "gated_mix__gqa_block_cached__dense_activation_silu__decode"
def f2u(f): return struct.unpack("<I", struct.pack("<f", f))[0]
LOG2E = f2u(1.4426950408889634)
SCALE = f2u(192 ** -0.5)
MLOFF = 1 << 20
STOFF = 2 << 20
LDS_Q, LDS_O, LDS_F, LDS_P, LDS_OB, LDS_H = 0, 8192, 16384, 17408, 21504, 25600
LDS_SIZE = 26112

def gen(D=16, NP=48, WR=8, k0=2, pbar=2, bar=16, shr=3, stamps=0, kflags="nt", vflags="nt", wflags="nt", vsw=0, ksw=128, spin=200000,
        f1st=40, f1step=2, wost=60, wostep=4, mlld=30, mlpr=50, proto=1):
    a = Asm()
    hdr = open("cdna_kernels/" + KN + ".s.ref").read().split("; Override launch")[0]
    a.raw(hdr.rstrip())
    a.raw(f"; @launch grid=(256,1,1) block=(512,1,1) lds={LDS_SIZE}")
    a.raw('.amdgcn_target "amdgcn-amd-amdhsa--gfx950"')
    a.raw(".text"); a.raw(f".globl {KN}_kernel"); a.raw(".p2align 8"); a.raw(f".type {KN}_kernel,@function"); a.raw(f"{KN}_kernel:")
    K, V, WQ, WO, W1, W2, XQ, XF, GW, P, ML, DBG, RP, OUT = [40 + 4 * i for i in range(14)]
    def srd(n): return f"s[{n}:{n+3}]"
    SLO, SHI, MB1, MB0 = 96, 97, 98, 100
    S = lambda s: 32 + 4 * s
    H = lambda s: 32 + 4 * s + 3
    def x2(r): return f"v[{r}:{r+1}]"
    def x3(r): return f"v[{r}:{r+2}]"
    def x4(r): return f"v[{r}:{r+3}]"
    HR = [H(56 - 16 + i) for i in range(16)]
    nst = [0]
    def stamp():
        if not stamps: return
        a("s_memrealtime s[14:15]"); a.waitl()
        a(f"v_writelane_b32 v3, s14, {nst[0]}")
        nst[0] += 1

    a("s_cmp_ge_u32 s2, 256"); a("s_cbranch_scc1 L_end")
    a("s_load_dwordx16 s[16:31], s[0:1], 0")
    a("s_load_dwordx8 s[32:39], s[0:1], 64")
    a("v_lshrrev_b32 v1, 6, v0")
    a("v_lshlrev_b32 v11, 8, v0")
    a("v_readfirstlane_b32 s3, v1")
    a("v_and_b32 v0, 63, v0")
    a("s_and_b32 s8, s2, 7"); a("s_lshr_b32 s9, s2, 3"); a("s_and_b32 s10, s9, 7")
    a("s_lshr_b32 s4, s10, 1"); a("s_and_b32 s6, s10, 1")
    a("s_andn2_b32 s5, s9, 7"); a("s_add_u32 s5, s5, s8")
    a("s_lshl_b32 s7, s5, 1"); a("s_add_u32 s7, s7, s6")
    a("s_lshl_b32 s11, s4, 6"); a("s_add_u32 s11, s11, s7")
    a("s_mul_i32 s12, s11, 786432"); a("s_mul_i32 s13, s3, 768"); a("s_add_u32 s12, s12, s13")
    a("v_mul_u32_u24 v1, 12, v0")
    a("v_lshrrev_b32 v6, 5, v0")
    a("v_and_b32 v7, 31, v0")
    a("v_mul_u32_u24 v7, 12, v7")
    a(f"v_mul_u32_u24 v2, {40*12288}, v6"); a("v_add_u32 v2, v2, v7")
    a("v_mul_u32_u24 v10, 80, v6")
    for n in (K, WQ, XQ): a(f"s_mov_b32 s{n+3}, 0x20000")
    a(f"s_mov_b32 s{K+2}, {786432-7*768}")
    a(f"s_mov_b32 s{WQ+2}, {79*12288+384}")
    a(f"s_mov_b32 s{XQ+2}, 160")
    a("s_lshl_b32 s7, s8, 3"); a("s_lshr_b32 s9, s9, 3"); a("s_lshl_b32 s9, s9, 1"); a("s_add_u32 s7, s7, s9"); a("s_add_u32 s7, s7, s6")
    a("s_mul_i32 s8, s3, 160")
    a("s_mul_i32 s9, s4, 1280")
    a(f"s_mul_i32 s13, s3, {80*12288}"); a("s_mul_i32 s10, s5, 384"); a("s_add_u32 s13, s13, s10")
    a("s_add_u32 s10, s9, s8")
    if stamps: a("v_mov_b32 v3, 0")
    a.waitl()
    stamp()
    def mk(n, ptr, off):
        a(f"s_add_u32 s{n}, s{ptr}, {off}"); a(f"s_addc_u32 s{n+1}, s{ptr+1}, 0")
    mk(K, 18, "s12")
    free = []; slot = {}
    init = list(range(56 - D, 56)) + list(range(55 - D, WR - 1, -1))
    assert NP <= len(init)
    kn = [0]
    def kvf(t):
        fl = (kflags if t < ksw else "nt") if t < 128 else (vflags if t - 128 >= vsw else "nt")
        return "" if fl == "-" else fl
    if wflags == "-": wflags = ""
    def kload(sl):
        t = kn[0]
        if t >= 256: return
        kn[0] += 1; slot[t] = sl
        a(f"s_mov_b32 s18, {(t%128)*6144}")
        a(f"buffer_load_dwordx3 {x3(S(sl))}, v1, {srd(K if t < 128 else V)}, s18 offen {kvf(t)}", tag=("kv", t))
    def wqload(i):
        a(f"s_mov_b32 s19, {i*12288}")
        a(f"buffer_load_dwordx3 {x3(S(i%WR))}, v2, {srd(WQ)}, s19 offen {wflags}", tag=("wq", i))
    for t in range(k0): kload(init[kn[0]])
    mk(XQ, 16, "s10"); mk(WQ, 22, "s13")
    for i in range(5): a(f"buffer_load_dwordx4 {x4(12+4*i)}, v10, {srd(XQ)}, 0 offen offset:{16*i} {wflags}", tag=("xq", i))
    npair = 20
    def kfill(p):
        tgt = k0 + (NP - k0) * (p + 1) // npair
        while kn[0] < tgt: kload(init[kn[0]])
    def setup2():
        a(f"s_mov_b32 s{SLO}, 0x05040100"); a(f"s_mov_b32 s{SHI}, 0x07060302")
        a(f"s_mov_b32 s{MB1}, 0xcccccccc"); a(f"s_mov_b32 s{MB1+1}, 0xcccccccc")
        a(f"s_mov_b32 s{MB0}, 0xaaaaaaaa"); a(f"s_mov_b32 s{MB0+1}, 0xaaaaaaaa")
        for n in (V, WO, W1, W2, XF, GW, P, ML, DBG): a(f"s_mov_b32 s{n+3}, 0x20000")
        a(f"s_mov_b32 s{V+2}, {786432-7*768}")
        a(f"s_mov_b32 s{WO+2}, {191*1280+160}")
        a("s_mul_i32 s13, s7, 48"); a(f"s_sub_u32 s{W1+2}, {640*3072}, s13"); mk(W1, 28, "s13")
        a(f"s_mov_b32 s{W2+2}, {23*1280+160}")
        a(f"s_mov_b32 s{XF+2}, 1280"); a(f"s_mov_b32 s{GW+2}, 1280")
        a(f"s_mov_b32 s{P+2}, 320"); a(f"s_mov_b32 s{ML+2}, 128"); a(f"s_mov_b32 s{DBG+2}, 256")
        mk(XF, 16, "s9"); mk(GW, 32, "0"); mk(V, 20, "s12")
        a(f"s_mul_i32 s13, s5, {192*1280}"); a("s_add_u32 s13, s13, s8"); mk(WO, 24, "s13")
        a(f"s_mul_i32 s13, s7, {24*1280}"); a("s_add_u32 s13, s13, s8"); mk(W2, 30, "s13")
        a("s_mul_i32 s13, s11, 2560"); a("s_lshl_b32 s14, s8, 1"); a("s_add_u32 s13, s13, s14"); mk(P, 38, "s13")
        a("s_lshr_b32 s13, s11, 1"); a("s_lshl_b32 s13, s13, 7"); a(f"s_add_u32 s13, s13, {MLOFF}"); mk(ML, 38, "s13")
        mk(DBG, 36, "0")
        for i in range(6, 10): a(f"v_mov_b32 v{i}, -1")
        a("v_lshlrev_b32 v10, 4, v0")
        a("s_lshl_b32 s13, s6, 3"); a("s_add_u32 s13, s13, s3"); a("s_lshl_b32 s13, s13, 3")
        a("v_lshlrev_b32 v5, 7, v0"); a("v_add_u32 v5, s13, v5")
        if proto:
            a(f"buffer_store_dwordx4 v[6:9], v10, {srd(P)}, 0 offen sc1", tag="clr0")
            a(f"buffer_store_dwordx2 v[6:7], v5, {srd(ML)}, 0 offen sc1", tag="clr1")
    for p in range(WR // 2):
        wqload(2 * p); wqload(2 * p + 1); kfill(p)
        if p == 0: setup2()
        if pbar and p % pbar == pbar - 1: a("s_barrier")
    T = HR[0:6]; QA = [6, 7, 8, 9, HR[6], HR[7]]
    for j in range(6): a(f"v_mov_b32 v{QA[j]}, 0")
    stamp()
    for k in range(npair):
        a.waitv(("wq", 2 * k + 1))
        A_, B_ = S((2 * k) % WR), S((2 * k + 1) % WR)
        for d in range(3):
            a(f"v_perm_b32 v{T[2*d]}, v{B_+d}, v{A_+d}, s{SLO}"); a(f"v_perm_b32 v{T[2*d+1]}, v{B_+d}, v{A_+d}, s{SHI}")
        pn = k + WR // 2
        if pn < npair:
            wqload(2 * pn); wqload(2 * pn + 1); kfill(pn)
        for j in range(6): a(f"v_dot2c_f32_bf16 v{QA[j]}, v{T[j]}, v{12+k}")
        if pbar and pn < npair and pn % pbar == pbar - 1: a("s_barrier")
    for j in range(3): a(f"v_permlane32_swap_b32 v{QA[j]}, v{QA[j+3]}")
    for j in range(3): a(f"v_add_f32 v{QA[j]}, v{QA[j]}, v{QA[j+3]}")
    a("s_lshl_b32 s13, s3, 10"); a(f"v_add_u32 v{T[0]}, s13, v10")
    a(f"ds_write_b128 v{T[0]}, v[6:9] offset:{LDS_Q}")
    a.waitv("clr1")
    a.waitl()
    a("s_barrier")
    for w in range(8): a(f"ds_read_b96 {x3(S(w))}, v10 offset:{LDS_Q+1024*w}", tag=("qr", w))
    if proto:
        a("v_mov_b32 v12, 1")
        a(f"buffer_atomic_add v12, v11, {srd(DBG)}, 0 offen sc1", tag="flag")
    a("v_and_b32 v13, 15, v0"); a("v_mul_u32_u24 v14, 52, v13"); a("v_lshrrev_b32 v14, 8, v14")
    a("v_mul_u32_u24 v15, 5, v14"); a("v_sub_u32 v13, v13, v15")
    a("v_bfe_u32 v15, v0, 4, 1"); a("v_mad_u32_u24 v13, v15, 5, v13")
    a("v_lshrrev_b32 v15, 5, v0"); a("v_mad_u32_u24 v16, v15, 3, v14")
    a("v_cmp_eq_u32 vcc, 3, v14"); a("v_cndmask_b32_e64 v16, v16, 6, vcc")
    a("v_lshlrev_b32 v17, 4, v13")
    a(f"v_mul_u32_u24 v2, {32*1280}, v16"); a("v_add_u32 v2, v2, v17")
    a(f"v_mul_u32_u24 v11, {4*1280}, v16"); a("v_add_u32 v11, v11, v17")
    a("v_lshlrev_b32 v17, 1, v17"); a("v_lshl_add_u32 v31, v15, 4, v17")
    a("v_mov_b32 v30, v16")
    for w in range(1, 8):
        a.waitl(("qr", w))
        for j in range(3): a(f"v_add_f32 v{S(0)+j}, v{S(0)+j}, v{S(w)+j}")
    for j in range(3): a(f"v_mov_b32 v{S(1)+j}, v{S(0)+j}")
    for j in range(3): a(f"v_permlane32_swap_b32 v{S(0)+j}, v{S(1)+j}")
    Q = [20, 21, 22]
    a(f"v_cvt_pk_bf16_f32 v20, v{S(0)}, v{S(0)+1}")
    a(f"v_cvt_pk_bf16_f32 v21, v{S(0)+2}, v{S(1)}")
    a(f"v_cvt_pk_bf16_f32 v22, v{S(1)+1}, v{S(1)+2}")
    stamp()
    ACC = list(range(12, 20)); SC = [24, 25, 26, 27]
    X = HR[0:4]; Y = HR[4:6]; Z = HR[6:8]; W_ = HR[8:10]; U = HR[10:12]
    hooks = {t: [] for t in range(256)}
    FS = list(range(0, 8))
    def f1addr():
        a("v_lshrrev_b32 v6, 2, v0"); a("v_mul_u32_u24 v6, 6, v6")
        a("s_mul_i32 s13, s3, 96"); a("v_add_u32 v6, s13, v6")
        a("v_lshlrev_b32 v7, 1, v6")
        a("v_mul_u32_u24 v6, 3072, v6"); a("v_and_b32 v8, 3, v0"); a("v_mad_u32_u24 v6, v8, 12, v6")
        a(f"buffer_load_dwordx3 {x3(S(FS[6]))}, v7, {srd(XF)}, 0 offen {wflags}", tag="xf")
        a(f"buffer_load_dwordx3 {x3(S(FS[7]))}, v7, {srd(GW)}, 0 offen {wflags}", tag="gw")
    hooks[f1st].append(f1addr)
    def w1load(i):
        def f():
            a(f"s_mov_b32 s19, {i*3072}")
            a(f"buffer_load_dwordx3 {x3(S(FS[i]))}, v6, {srd(W1)}, s19 offen {wflags}", tag=("w1", i))
        return f
    for i in range(6): hooks[f1st + 1 + f1step * i].append(w1load(i))
    tf1 = f1st + 1 + f1step * 5 + D + 2
    def ffn1():
        a.waitv(("w1", 5))
        F = [H(FS[i]) for i in range(8)]
        T = [4, 6, 7, 8, 9, 29]
        for k in range(3):
            for d in range(3):
                A_, B_ = S(FS[2 * k]) + d, S(FS[2 * k + 1]) + d
                a(f"v_perm_b32 v{T[2*d]}, v{B_}, v{A_}, s{SLO}"); a(f"v_perm_b32 v{T[2*d+1]}, v{B_}, v{A_}, s{SHI}")
            for j in range(6):
                a(f"v_dot2_f32_bf16 v{F[j]}, v{T[j]}, v{S(FS[6])+k}, {'0' if k == 0 else 'v%d' % F[j]}")
        a("s_mov_b32 s13, 0x3f803f80"); a("s_mov_b32 s14, 0xffff0000")
        for k in range(3):
            xr, gr = S(FS[6]) + k, S(FS[7]) + k
            a(f"v_lshlrev_b32 v{T[0]}, 16, v{xr}"); a(f"v_and_b32 v{T[1]}, s14, v{xr}")
            a(f"v_lshlrev_b32 v{T[2]}, 16, v{gr}"); a(f"v_and_b32 v{T[3]}, s14, v{gr}")
            a(f"v_mul_f32 v{T[0]}, v{T[0]}, v{T[2]}"); a(f"v_mul_f32 v{T[1]}, v{T[1]}, v{T[3]}")
            a(f"v_cvt_pk_bf16_f32 v{T[4]}, v{T[0]}, v{T[1]}")
            a(f"v_dot2_f32_bf16 v{F[6]}, v{T[4]}, s13, {'0' if k == 0 else 'v%d' % F[6]}")
        a(f"v_mov_b32 v{F[7]}, 0")
        for j in range(4): a(f"v_permlane32_swap_b32 v{F[j]}, v{F[j+4]}")
        for j in range(4): a(f"v_add_f32 v{T[j]}, v{F[j]}, v{F[j+4]}")
        for j in range(2): a(f"v_permlane16_swap_b32 v{T[j]}, v{T[j+2]}")
        for j in range(2): a(f"v_add_f32 v{T[j]}, v{T[j]}, v{T[j+2]}")
        a(f"v_lshrrev_b32 v{T[2]}, 3, v0"); a(f"v_lshlrev_b32 v{T[2]}, 4, v{T[2]}")
        a(f"v_add_f32_dpp v{T[0]}, v{T[0]}, v{T[0]} row_ror:8 row_mask:0xf bank_mask:0x3")
        a(f"v_and_b32 v{T[3]}, 3, v0"); a(f"v_lshl_add_u32 v{T[2]}, v{T[3]}, 2, v{T[2]}")
        a(f"v_add_f32_dpp v{T[0]}, v{T[1]}, v{T[1]} row_ror:8 row_mask:0xf bank_mask:0xc")
        a("s_lshl_b32 s13, s3, 7"); a(f"v_add_u32 v{T[2]}, s13, v{T[2]}")
        a(f"v_add_f32_dpp v{T[1]}, v{T[0]}, v{T[0]} row_shl:4 row_mask:0xf bank_mask:0x5")
        a(f"v_add_f32_dpp v{T[1]}, v{T[0]}, v{T[0]} row_shr:4 row_mask:0xf bank_mask:0xa")
        a(f"ds_write_b32 v{T[2]}, v{T[1]} offset:{LDS_F}")
        a.waitl()
    hooks[tf1].append(ffn1)
    def w2load(i):
        def f(): a(f"buffer_load_dwordx4 {x4(S(FS[i]))}, v11, {srd(W2)}, 0 offen offset:{1280*i} {wflags}", tag=("w2", i))
        return f
    for i in range(4): hooks[tf1 + 1 + 2 * i].append(w2load(i))
    tf2 = tf1 + 8 + D + 2
    assert bar and (tf2 // bar) > (tf1 // bar) and tf2 < 127, (tf1, tf2)
    def ffn2():
        a.waitv(("w2", 3))
        a("v_and_b32 v4, 31, v0"); a("v_lshlrev_b32 v4, 2, v4")
        for w in range(8): a(f"ds_read_b32 v{ACC[w]}, v4 offset:{LDS_F+128*w}")
        a("v_and_b32 v6, 3, v0"); a("v_mul_u32_u24 v6, 12, v6"); a("v_bfe_u32 v7, v0, 2, 3"); a("v_lshl_add_u32 v6, v7, 1, v6")
        a("v_cmp_lt_u32 vcc, 5, v7"); a("v_cndmask_b32_e64 v6, v6, 56, vcc")
        a("s_lshl_b32 s13, s3, 6"); a("v_add_u32 v6, s13, v6")
        a("v_lshl_add_u32 v4, v30, 3, s13")
        a.waitl()
        for w in range(1, 8): a(f"v_add_f32 v{ACC[0]}, v{ACC[0]}, v{ACC[w]}")
        a(f"v_cvt_pk_bf16_f32 v7, v{ACC[0]}, v{ACC[0]}"); a("v_lshlrev_b32 v7, 16, v7")
        a(f"v_mul_f32 v8, {LOG2E ^ 0x80000000:#x}, v7"); a("v_exp_f32 v8, v8"); a("v_add_f32 v8, 1.0, v8"); a("v_rcp_f32 v8, v8")
        a("v_mul_f32 v9, v7, v8"); a("v_cvt_pk_bf16_f32 v9, v9, v9")
        a(f"ds_write_b16 v6, v9 offset:{LDS_H}")
        a("v_cvt_pk_bf16_f32 v8, v8, v8"); a("v_lshlrev_b32 v8, 16, v8")
        a("v_sub_f32 v29, 1.0, v8"); a("v_cvt_pk_bf16_f32 v29, v29, v29"); a("v_lshlrev_b32 v29, 16, v29")
        a("v_readlane_b32 s22, v8, 24"); a("v_readlane_b32 s23, v29, 24")
        a.waitl()
        a(f"ds_read_b64 v[6:7], v4 offset:{LDS_H}")
        a.waitl()
        for k in range(2):
            for d in range(4):
                A_, B_ = S(FS[2 * k]) + d, S(FS[2 * k + 1]) + d
                a(f"v_perm_b32 v8, v{B_}, v{A_}, s{SLO}"); a(f"v_perm_b32 v9, v{B_}, v{A_}, s{SHI}")
                a(f"v_dot2_f32_bf16 v{ACC[2*d]}, v8, v{6+k}, {'0' if k == 0 else 'v%d' % ACC[2*d]}")
                a(f"v_dot2_f32_bf16 v{ACC[2*d+1]}, v9, v{6+k}, {'0' if k == 0 else 'v%d' % ACC[2*d+1]}")
        for j in range(8): a(f"v_mul_f32 v{ACC[j]}, s23, v{ACC[j]}")
    hooks[tf2].append(ffn2)
    WS = list(range(8, 40))
    assert wost >= NP
    WP = [[None] * 8 for _ in range(16)]
    spare = [23]
    def woload(i):
        def f():
            a(f"s_mov_b32 s19, {i*1280}")
            a(f"buffer_load_dwordx4 {x4(S(WS[i]))}, v2, {srd(WO)}, s19 offen {wflags}", tag=("wo", i))
        return f
    def woperm(k):
        def f():
            a.waitv(("wo", 2 * k + 1))
            for d in range(4):
                A_, B_ = S(WS[2 * k]) + d, S(WS[2 * k + 1]) + d
                s = spare[0]
                a(f"v_perm_b32 v{s}, v{B_}, v{A_}, s{SLO}"); a(f"v_perm_b32 v{B_}, v{B_}, v{A_}, s{SHI}")
                WP[k][2 * d] = s; WP[k][2 * d + 1] = B_; spare[0] = A_
        return f
    for i in range(32): hooks[wost + wostep * i].append(woload(i))
    for k in range(16): hooks[min(255, wost + wostep * (2 * k + 1) + D + 3)].append(woperm(k))
    if proto: hooks[100].append(lambda: a(f"buffer_load_dword v28, off, {srd(DBG)}, 0 sc1", tag="flagld"))
    def release(t):
        if slot[t] >= 56 - D: free.append(slot[t])
        if free and (kn[0] - t - 1 < D or t % shr == shr - 1): kload(free.pop(0))
    def lvl(s_, t):
        if s_ % 2 == 1:
            x, y = X[(s_ - 1) % 4], X[s_ % 4]
            a(f"v_permlane16_swap_b32 v{x}, v{y}"); a(f"v_add_f32 v{Y[(s_>>1)&1]}, v{x}, v{y}")
        if s_ % 4 == 3:
            z = Z[(s_ >> 2) & 1]
            a(f"v_add_f32_dpp v{z}, v{Y[0]}, v{Y[0]} row_ror:8 row_mask:0xf bank_mask:0x3")
            a(f"v_add_f32_dpp v{z}, v{Y[1]}, v{Y[1]} row_ror:8 row_mask:0xf bank_mask:0xc")
        if s_ % 8 == 7:
            w = W_[(s_ >> 3) & 1]
            a(f"v_add_f32_dpp v{w}, v{Z[0]}, v{Z[0]} row_shl:4 row_mask:0xf bank_mask:0x5")
            a(f"v_add_f32_dpp v{w}, v{Z[1]}, v{Z[1]} row_shr:4 row_mask:0xf bank_mask:0xa")
            a(f"v_add_f32_dpp v{w}, v{w}, v{w} quad_perm:[2,3,0,1] row_mask:0xf bank_mask:0xf")
        if s_ % 16 == 15:
            u = U[(s_ >> 4) & 1]
            a(f"v_cndmask_b32_e64 v{u}, v{W_[0]}, v{W_[1]}, s[{MB1}:{MB1+1}]")
            a(f"v_add_f32_dpp v{u}, v{u}, v{u} quad_perm:[1,0,3,2] row_mask:0xf bank_mask:0xf")
        if s_ == 31:
            a(f"v_cndmask_b32_e64 v{SC[t//32]}, v{U[0]}, v{U[1]}, s[{MB0}:{MB0+1}]")
    for t in range(128):
        r = S(slot[t]); hreg = X[t % 4]
        a.waitv(("kv", t))
        a(f"v_dot2_f32_bf16 v{hreg}, v{r}, v{Q[0]}, 0")
        a(f"v_dot2_f32_bf16 v{hreg}, v{r+1}, v{Q[1]}, v{hreg}")
        a(f"v_dot2_f32_bf16 v{hreg}, v{r+2}, v{Q[2]}, v{hreg}")
        release(t)
        if t > 0: lvl((t - 1) % 32, t - 1)
        if t == 127: lvl(31, t)
        for f in hooks[t]: f()
        if bar and t % bar == bar - 1: a("s_barrier")
    stamp()
    a("s_mov_b32 s14, 0xffff0000")
    for j in (0, 2):
        a(f"v_cvt_pk_bf16_f32 v6, v{SC[j]}, v{SC[j+1]}")
        a(f"v_lshlrev_b32 v{SC[j]}, 16, v6"); a(f"v_and_b32 v{SC[j+1]}, s14, v6")
        a(f"v_mul_f32 v{SC[j]}, {SCALE:#x}, v{SC[j]}"); a(f"v_mul_f32 v{SC[j+1]}, {SCALE:#x}, v{SC[j+1]}")
        a(f"v_cvt_pk_bf16_f32 v6, v{SC[j]}, v{SC[j+1]}")
        a(f"v_lshlrev_b32 v{SC[j]}, 16, v6"); a(f"v_and_b32 v{SC[j+1]}, s14, v6")
    def wave_red(op, r, sdst):
        for m in ("quad_perm:[1,0,3,2] row_mask:0xf", "quad_perm:[2,3,0,1] row_mask:0xf", "row_half_mirror row_mask:0xf", "row_mirror row_mask:0xf",
                  "row_bcast:15 row_mask:0xa", "row_bcast:31 row_mask:0xc"):
            a(f"{op}_dpp v{r}, v{r}, v{r} {m} bank_mask:0xf")
        a(f"v_readlane_b32 s{sdst}, v{r}, 63")
    a(f"v_max3_f32 v6, v{SC[0]}, v{SC[1]}, v{SC[2]}"); a(f"v_max_f32 v6, v6, v{SC[3]}")
    wave_red("v_max_f32", 6, 20)
    a(f"v_mov_b32 v7, {LOG2E:#x}")
    a("v_mul_f32 v6, s20, v7")
    for j in range(4): a(f"v_fma_f32 v{SC[j]}, v{SC[j]}, v7, -v6")
    for j in range(4): a(f"v_exp_f32 v{SC[j]}, v{SC[j]}")
    a("v_bfrev_b32 v4, v0"); a("v_lshrrev_b32 v4, 27, v4"); a("v_lshlrev_b32 v4, 1, v4")
    a("v_lshrrev_b32 v11, 5, v0"); a("v_lshlrev_b32 v11, 8, v11"); a("s_lshl_b32 s13, s3, 9"); a("v_add_u32 v11, s13, v11")
    a("v_add_u32 v4, v4, v11")
    a(f"v_cvt_pk_bf16_f32 v8, v{SC[0]}, v{SC[1]}"); a(f"v_cvt_pk_bf16_f32 v9, v{SC[2]}, v{SC[3]}")
    a(f"ds_write_b16 v4, v8 offset:{LDS_P}"); a(f"ds_write_b16_d16_hi v4, v8 offset:{LDS_P+64}")
    a(f"ds_write_b16 v4, v9 offset:{LDS_P+128}"); a(f"ds_write_b16_d16_hi v4, v9 offset:{LDS_P+192}")
    a(f"v_add_f32 v6, v{SC[0]}, v{SC[1]}"); a(f"v_add_f32 v7, v{SC[2]}, v{SC[3]}"); a("v_add_f32 v6, v6, v7")
    wave_red("v_add_f32", 6, 21)
    a("v_mov_b32 v20, s20"); a("v_mov_b32 v21, s21")
    a(f"buffer_store_dwordx2 v[20:21], v5, {srd(ML)}, 0 offen sc1", tag="mlst")
    if proto:
        a.waitv("flagld")
        a("v_readfirstlane_b32 s13, v28")
        a("s_cmp_ge_u32 s13, 256"); a("s_cbranch_scc0 L_flag_slow")
        a.label("L_flag_ok")
    PB = [4, 24]
    VA = HR[6:12]; T = HR[0:6]; R_ = HR[12]
    a.waitl()
    a(f"ds_read_b128 {x4(PB[0])}, v11 offset:{LDS_P}", tag=("pb", 0))
    a(f"ds_read_b128 {x4(PB[1])}, v11 offset:{LDS_P+16}", tag=("pb", 1))
    for j in range(6): a(f"v_mov_b32 v{VA[j]}, 0")
    def mlload():
        a("v_lshlrev_b32 v8, 3, v0")
        a(f"buffer_load_dwordx2 v[8:9], v8, {srd(ML)}, 0 offen sc1", tag="ml")
    hooks[128 + 2 * mlld + 1].append(mlload)
    def mlproc():
        a.waitv("ml")
        r = R_
        if proto:
            a(f"v_max_u32 v{r}, v8, v9"); a(f"v_cmp_eq_u32 vcc, -1, v{r}")
            a("s_cbranch_vccnz L_ml_slow")
            a.label("L_ml_ok")
        a(f"v_mov_b32 v{r}, v8")
        for m in ("quad_perm:[1,0,3,2]", "quad_perm:[2,3,0,1]", "row_half_mirror", "row_mirror"):
            a(f"v_max_f32_dpp v{r}, v{r}, v{r} {m} row_mask:0xf bank_mask:0xf")
        a(f"v_sub_f32 v8, v8, v{r}"); a(f"v_mul_f32 v8, {LOG2E:#x}, v8"); a("v_exp_f32 v8, v8"); a("v_mul_f32 v8, v8, v9")
        for m in ("quad_perm:[1,0,3,2]", "quad_perm:[2,3,0,1]", "row_half_mirror", "row_mirror"):
            a(f"v_add_f32_dpp v8, v8, v8 {m} row_mask:0xf bank_mask:0xf")
        a(f"v_sub_f32 v{r}, s20, v{r}"); a(f"v_mul_f32 v{r}, {LOG2E:#x}, v{r}"); a(f"v_exp_f32 v{r}, v{r}")
        a("v_rcp_f32 v8, v8"); a(f"v_mul_f32 v{r}, v{r}, v8"); a(f"v_mul_f32 v{r}, s22, v{r}")
        a(f"v_readfirstlane_b32 s24, v{r}")
        a("s_lshl_b32 s13, s3, 10"); a("v_add_u32 v8, s13, v10")
        a("v_and_b32 v9, 31, v0"); a("v_lshlrev_b32 v9, 1, v9"); a(f"v_lshrrev_b32 v{r}, 5, v0"); a(f"v_add_u32 v9, v9, v{r}"); a("v_mul_u32_u24 v9, 6, v9")
        a("s_lshl_b32 s13, s3, 9"); a("v_add_u32 v9, s13, v9")
        a("v_lshl_add_u32 v29, v30, 6, s13")
        a("s_mul_i32 s8, s2, 1639"); a("s_lshr_b32 s8, s8, 16")
        a("s_mul_i32 s9, s8, 40"); a("s_sub_u32 s9, s2, s9")
        a(f"s_mul_i32 s13, s8, {64*2560}"); a("s_lshl_b32 s14, s9, 6"); a("s_add_u32 s13, s13, s14"); mk(RP, 38, "s13")
        a(f"s_mov_b32 s{RP+2}, {63*2560+64}"); a(f"s_mov_b32 s{RP+3}, 0x20000")
        a("s_mul_i32 s13, s8, 1280"); a("s_lshl_b32 s14, s9, 5"); a("s_add_u32 s13, s13, s14")
        mk(OUT, 34, "s13"); a(f"s_mov_b32 s{OUT+2}, 32"); a(f"s_mov_b32 s{OUT+3}, 0x20000")
        a("v_lshrrev_b32 v20, 2, v0"); a("v_mul_u32_u24 v20, 2560, v20"); a("v_and_b32 v21, 3, v0"); a("v_lshl_add_u32 v20, v21, 4, v20")
        a("v_lshrrev_b32 v22, 4, v0"); a("v_lshl_add_u32 v21, v21, 2, v22"); a("v_lshlrev_b32 v21, 1, v21")
        a("s_mov_b32 s25, 40960"); a("s_mov_b32 s26, 81920"); a("s_mov_b32 s27, 122880")
        a(f"s_mov_b32 s28, {spin}")
    hooks[128 + 2 * mlpr + 1].append(mlproc)
    for k in range(64):
        t = 128 + 2 * k
        a.waitv(("kv", t + 1))
        A_, B_ = S(slot[t]), S(slot[t + 1])
        for d in range(3):
            a(f"v_perm_b32 v{T[2*d]}, v{B_+d}, v{A_+d}, s{SLO}"); a(f"v_perm_b32 v{T[2*d+1]}, v{B_+d}, v{A_+d}, s{SHI}")
        release(t); release(t + 1)
        j4 = k // 4
        a.waitl(("pb", j4))
        pr = PB[j4 % 2] + k % 4
        for j in range(6): a(f"v_dot2c_f32_bf16 v{VA[j]}, v{T[j]}, v{pr}")
        if k % 4 == 3 and j4 + 2 < 16:
            a(f"ds_read_b128 {x4(PB[j4%2])}, v11 offset:{LDS_P+16*(j4+2)}", tag=("pb", j4 + 2))
        for f in hooks[t] + hooks[t + 1]: f()
        if bar and (t + 1) % bar == bar - 1 and t + 1 < 255 - D: a("s_barrier")
    stamp()
    for j in range(3): a(f"v_permlane32_swap_b32 v{VA[j]}, v{VA[j+3]}")
    for j in range(3): a(f"v_add_f32 v{VA[j]}, v{VA[j]}, v{VA[j+3]}")
    for j in range(3): a(f"v_mul_f32 v{4+j}, s24, v{VA[j]}")
    a(f"ds_write_b96 v8, v[4:6] offset:{LDS_O}")
    a.waitl(); a("s_barrier")
    RS = lambda w: S(40 + w)
    for w in range(8): a(f"ds_read_b96 {x3(RS(w))}, v10 offset:{LDS_O+1024*w}", tag=("or", w))
    for w in range(1, 8):
        a.waitl(("or", w))
        for j in range(3): a(f"v_add_f32 v{RS(0)+j}, v{RS(0)+j}, v{RS(w)+j}")
    a(f"v_cvt_pk_bf16_f32 v4, v{RS(0)}, v{RS(0)+1}"); a(f"v_cvt_pk_bf16_f32 v5, v{RS(0)+2}, v{RS(0)+2}")
    a(f"ds_write_b16 v9, v4 offset:{LDS_OB}"); a(f"ds_write_b16_d16_hi v9, v4 offset:{LDS_OB+2}"); a(f"ds_write_b16 v9, v5 offset:{LDS_OB+4}")
    a.waitl()
    OP = [S(48 + i) for i in range(4)]
    for i in range(4): a(f"ds_read_b128 {x4(OP[i])}, v29 offset:{LDS_OB+16*i}", tag=("ob", i))
    for k in range(16):
        a.waitl(("ob", k // 4))
        for j in range(8): a(f"v_dot2c_f32_bf16 v{ACC[j]}, v{WP[k][j]}, v{OP[k//4]+k%4}")
    for j in range(4): a(f"v_permlane32_swap_b32 v{ACC[j]}, v{ACC[j+4]}")
    for j in range(4): a(f"v_add_f32 v{ACC[j]}, v{ACC[j]}, v{ACC[j+4]}")
    for j in range(4): a(f"v_add_f32_dpp v{4+j}, v{ACC[j]}, v{ACC[j]} row_shl:5 row_mask:0xf bank_mask:0xf")
    for j in range(4): a(f"v_add_f32_dpp v{4+j}, v{ACC[j]}, v{4+j} row_shl:10 row_mask:0xf bank_mask:0xf")
    for j in range(4): a(f"v_min_u32 v{4+j}, -2, v{4+j}")
    a("s_mov_b32 exec_lo, 0x001f001f"); a("s_mov_b32 exec_hi, 0x001f001f")
    a(f"buffer_store_dwordx4 v[4:7], v31, {srd(P)}, 0 offen sc1")
    a("s_mov_b64 exec, -1")
    stamp()
    a("s_cmp_lg_u32 s3, 0"); a("s_cbranch_scc1 L_fin")
    a("s_cmp_ge_u32 s2, 160"); a("s_cbranch_scc1 L_fin")
    a.label("L_poll")
    for i in range(4):
        a(f"buffer_load_dwordx4 {x4(32+4*i)}, v20, {srd(RP)}, {['0','s25','s26','s27'][i]} offen sc1")
    a.waitv_all()
    a("v_max3_u32 v4, v32, v33, v34")
    for i in range(35, 47, 2): a(f"v_max3_u32 v4, v4, v{i}, v{i+1}")
    a("v_max_u32 v4, v4, v47")
    a("v_cmp_eq_u32 vcc, -1, v4")
    a("s_sub_u32 s28, s28, 1"); a("s_cbranch_scc1 L_red")
    a("s_cbranch_vccnz L_poll")
    a.label("L_red")
    for j in range(4):
        a(f"v_add_f32 v{32+j}, v{32+j}, v{36+j}"); a(f"v_add_f32 v{40+j}, v{40+j}, v{44+j}")
    for j in range(4): a(f"v_add_f32 v{32+j}, v{32+j}, v{40+j}")
    a("v_permlane32_swap_b32 v32, v34"); a("v_permlane32_swap_b32 v33, v35")
    a("v_add_f32 v32, v32, v34"); a("v_add_f32 v33, v33, v35")
    a("v_permlane16_swap_b32 v32, v33"); a("v_add_f32 v32, v32, v33")
    a("v_add_f32_dpp v32, v32, v32 row_ror:8 row_mask:0xf bank_mask:0xf")
    a("v_add_f32_dpp v32, v32, v32 row_ror:4 row_mask:0xf bank_mask:0xf")
    a("v_cvt_pk_bf16_f32 v32, v32, v32")
    a("s_mov_b32 exec_lo, 0x000f000f"); a("s_mov_b32 exec_hi, 0x000f000f")
    a(f"buffer_store_short v32, v21, {srd(OUT)}, 0 offen")
    a("s_mov_b64 exec, -1")
    if stamps:
        a.waitv_all()
        a("s_memrealtime s[14:15]"); a.waitl(); a(f"v_writelane_b32 v3, s14, {nst[0]}")
    a.label("L_fin")
    if stamps:
        a("s_lshl_b32 s13, s2, 3"); a("s_add_u32 s13, s13, s3"); a("s_lshl_b32 s13, s13, 5"); a(f"s_add_u32 s13, s13, {STOFF}")
        mk(RP, 38, "s13"); a(f"s_mov_b32 s{RP+2}, 32"); a(f"s_mov_b32 s{RP+3}, 0x20000")
        a("v_lshlrev_b32 v1, 2, v0")
        a(f"buffer_store_dword v3, v1, {srd(RP)}, 0 offen")
    a.label("L_end")
    a("s_endpgm")
    if proto:
        a.vm = []; a.lg = []; a.pend = {}
        a.label("L_flag_slow")
        a(f"s_mov_b32 s28, {spin}")
        a.label("L_flag_loop")
        a("s_sleep 8")
        a(f"buffer_load_dword v28, off, {srd(DBG)}, 0 sc1"); a.waitv_all()
        a("v_readfirstlane_b32 s13, v28")
        a("s_sub_u32 s28, s28, 1"); a("s_cbranch_scc1 L_flag_ok")
        a("s_cmp_ge_u32 s13, 256"); a("s_cbranch_scc0 L_flag_loop")
        a("s_branch L_flag_ok")
        a.label("L_ml_slow")
        a(f"s_mov_b32 s28, {spin}")
        a.label("L_ml_loop")
        a("s_sleep 8")
        a("v_lshlrev_b32 v8, 3, v0")
        a(f"buffer_load_dwordx2 v[8:9], v8, {srd(ML)}, 0 offen sc1"); a.waitv_all()
        a(f"v_max_u32 v{HR[12]}, v8, v9"); a(f"v_cmp_eq_u32 vcc, -1, v{HR[12]}")
        a("s_sub_u32 s28, s28, 1"); a("s_cbranch_scc1 L_ml_ok")
        a("s_cbranch_vccnz L_ml_loop")
        a("s_branch L_ml_ok")
    a.raw('.section .rodata,"a"'); a.raw(".p2align 6"); a.raw(f".amdhsa_kernel {KN}_kernel")
    for l in ["next_free_vgpr 256", "next_free_sgpr 102", "accum_offset 256", "group_segment_fixed_size 0", "kernarg_size 96", "user_sgpr_count 2",
              "user_sgpr_kernarg_segment_ptr 1", "system_sgpr_workgroup_id_x 1"]: a.raw("  .amdhsa_" + l)
    a.raw(".end_amdhsa_kernel")
    sys.stderr.write(f"slots {a.n} nops {a.nops} maxv {a.maxv} tf1 {tf1} tf2 {tf2}\n")
    return a.text()

if __name__ == "__main__":
    out = sys.argv[1]
    kw = {}
    for kv in sys.argv[2:]:
        k, v = kv.split("=")
        kw[k] = int(v) if v.lstrip("-").isdigit() else v.replace("+", " ")
    open(out, "w").write(gen(**kw))
```

```python
import sys, struct
from asmlib import Asm
KN = "gated_mix__gqa_block_cached__dense_activation_silu__decode"
def f2u(f): return struct.unpack("<I", struct.pack("<f", f))[0]
LOG2E = f2u(1.4426950408889634)
SCALE = f2u(192 ** -0.5)
MLOFF = 1 << 20
STOFF = 2 << 20
LDS_Q, LDS_O, LDS_F, LDS_P, LDS_OB, LDS_H = 0, 8192, 16384, 17408, 21504, 25600
LDS_SIZE = 26112

def gen(D=16, NP=48, WR=8, k0=2, pbar=2, bar=16, shr=3, stamps=0, kflags="nt", vflags="nt", wflags="nt", vsw=0, ksw=128, spin=200000,
        f1st=40, f1step=2, wost=60, wostep=4, mlld=30, mlpr=50, proto=1, npair=20, touch=0, xmap=0):
    a = Asm()
    hdr = open("cdna_kernels/" + KN + ".s.ref").read().split("; Override launch")[0]
    a.raw(hdr.rstrip())
    a.raw(f"; @launch grid=(256,1,1) block=(512,1,1) lds={LDS_SIZE}")
    a.raw('.amdgcn_target "amdgcn-amd-amdhsa--gfx950"')
    a.raw(".text"); a.raw(f".globl {KN}_kernel"); a.raw(".p2align 8"); a.raw(f".type {KN}_kernel,@function"); a.raw(f"{KN}_kernel:")
    K, V, WQ, WO, W1, W2, XQ, XF, GW, P, ML, DBG, RP, OUT = [40 + 4 * i for i in range(14)]
    def srd(n): return f"s[{n}:{n+3}]"
    SLO, SHI, MB1, MB0 = 96, 97, 98, 100
    S = lambda s: 32 + 4 * s
    H = lambda s: 32 + 4 * s + 3
    def x2(r): return f"v[{r}:{r+1}]"
    def x3(r): return f"v[{r}:{r+2}]"
    def x4(r): return f"v[{r}:{r+3}]"
    HR = [H(56 - 16 + i) for i in range(16)]
    nst = [0]
    def stamp():
        if not stamps: return
        a("s_memrealtime s[14:15]"); a.waitl()
        a(f"v_writelane_b32 v3, s14, {nst[0]}")
        nst[0] += 1

    a("s_cmp_ge_u32 s2, 256"); a("s_cbranch_scc1 L_end")
    a("s_load_dwordx16 s[16:31], s[0:1], 0")
    a("s_load_dwordx8 s[32:39], s[0:1], 64")
    a("v_lshrrev_b32 v1, 6, v0")
    a("v_lshlrev_b32 v11, 8, v0")
    a("v_readfirstlane_b32 s3, v1")
    a("v_and_b32 v0, 63, v0")
    a("s_and_b32 s8, s2, 7"); a("s_lshr_b32 s9, s2, 3"); a("s_and_b32 s10, s9, 7")
    a("s_lshr_b32 s4, s10, 1"); a("s_and_b32 s6, s10, 1")
    a("s_andn2_b32 s5, s9, 7"); a("s_add_u32 s5, s5, s8")
    a("s_lshl_b32 s7, s5, 1"); a("s_add_u32 s7, s7, s6")
    a("s_lshl_b32 s11, s4, 6"); a("s_add_u32 s11, s11, s7")
    a("s_mul_i32 s12, s11, 786432"); a("s_mul_i32 s13, s3, 768"); a("s_add_u32 s12, s12, s13")
    a("v_mul_u32_u24 v1, 12, v0")
    a("v_lshrrev_b32 v6, 5, v0")
    a("v_and_b32 v7, 31, v0")
    a("v_mul_u32_u24 v7, 12, v7")
    a(f"v_mul_u32_u24 v2, {40*12288}, v6"); a("v_add_u32 v2, v2, v7")
    a("v_mul_u32_u24 v10, 80, v6")
    for n in (K, WQ, XQ): a(f"s_mov_b32 s{n+3}, 0x20000")
    a(f"s_mov_b32 s{K+2}, {786432-7*768}")
    a(f"s_mov_b32 s{WQ+2}, {79*12288+384}")
    a(f"s_mov_b32 s{XQ+2}, 160")
    a("s_lshl_b32 s7, s8, 3"); a("s_lshr_b32 s9, s9, 3"); a("s_lshl_b32 s9, s9, 1"); a("s_add_u32 s7, s7, s9"); a("s_add_u32 s7, s7, s6")
    a("s_mul_i32 s8, s3, 160")
    a("s_mul_i32 s9, s4, 1280")
    a(f"s_mul_i32 s13, s3, {80*12288}"); a("s_mul_i32 s10, s5, 384"); a("s_add_u32 s13, s13, s10")
    a("s_add_u32 s10, s9, s8")
    if stamps: a("v_mov_b32 v3, 0")
    a.waitl()
    stamp()
    def mk(n, ptr, off):
        a(f"s_add_u32 s{n}, s{ptr}, {off}"); a(f"s_addc_u32 s{n+1}, s{ptr+1}, 0")
    mk(K, 18, "s12")
    free = []; slot = {}
    init = list(range(56 - D, 56)) + list(range(55 - D, WR - 1, -1))
    assert NP <= len(init)
    kn = [0]
    def kvf(t):
        fl = (kflags if t < ksw else "nt") if t < 128 else (vflags if t - 128 >= vsw else "nt")
        return "" if fl == "-" else fl
    if wflags == "-": wflags = ""
    def kload(sl):
        t = kn[0]
        if t >= 256: return
        kn[0] += 1; slot[t] = sl
        a(f"s_mov_b32 s18, {(t%128)*6144}")
        a(f"buffer_load_dwordx3 {x3(S(sl))}, v1, {srd(K if t < 128 else V)}, s18 offen {kvf(t)}", tag=("kv", t))
    def wqload(i):
        a(f"s_mov_b32 s19, {i*12288}")
        a(f"buffer_load_dwordx3 {x3(S(i%WR))}, v2, {srd(WQ)}, s19 offen {wflags}", tag=("wq", i))
    for t in range(k0): kload(init[kn[0]])
    mk(XQ, 16, "s10"); mk(WQ, 22, "s13")
    for i in range(5): a(f"buffer_load_dwordx4 {x4(12+4*i)}, v10, {srd(XQ)}, 0 offen offset:{16*i} {wflags}", tag=("xq", i))
    def kfill(p):
        tgt = k0 + (NP - k0) * (p + 1) // npair
        while kn[0] < tgt: kload(init[kn[0]])
    def setup2():
        a(f"s_mov_b32 s{SLO}, 0x05040100"); a(f"s_mov_b32 s{SHI}, 0x07060302")
        a(f"s_mov_b32 s{MB1}, 0xcccccccc"); a(f"s_mov_b32 s{MB1+1}, 0xcccccccc")
        a(f"s_mov_b32 s{MB0}, 0xaaaaaaaa"); a(f"s_mov_b32 s{MB0+1}, 0xaaaaaaaa")
        for n in (V, WO, W1, W2, XF, GW, P, ML, DBG): a(f"s_mov_b32 s{n+3}, 0x20000")
        a(f"s_mov_b32 s{V+2}, {786432-7*768}")
        a(f"s_mov_b32 s{WO+2}, {191*1280+160}")
        a("s_mul_i32 s13, s7, 48"); a(f"s_sub_u32 s{W1+2}, {640*3072}, s13"); mk(W1, 28, "s13")
        a(f"s_mov_b32 s{W2+2}, {23*1280+160}")
        a(f"s_mov_b32 s{XF+2}, 1280"); a(f"s_mov_b32 s{GW+2}, 1280")
        a(f"s_mov_b32 s{P+2}, 320"); a(f"s_mov_b32 s{ML+2}, 128"); a(f"s_mov_b32 s{DBG+2}, 256")
        mk(XF, 16, "s9"); mk(GW, 32, "0"); mk(V, 20, "s12")
        a(f"s_mul_i32 s13, s5, {192*1280}"); a("s_add_u32 s13, s13, s8"); mk(WO, 24, "s13")
        a(f"s_mul_i32 s13, s7, {24*1280}"); a("s_add_u32 s13, s13, s8"); mk(W2, 30, "s13")
        a("s_mul_i32 s13, s11, 2560"); a("s_lshl_b32 s14, s8, 1"); a("s_add_u32 s13, s13, s14"); mk(P, 38, "s13")
        a("s_lshr_b32 s13, s11, 1"); a("s_lshl_b32 s13, s13, 7"); a(f"s_add_u32 s13, s13, {MLOFF}"); mk(ML, 38, "s13")
        mk(DBG, 36, "0")
        for i in range(6, 10): a(f"v_mov_b32 v{i}, -1")
        a("v_lshlrev_b32 v10, 4, v0")
        a("s_lshl_b32 s13, s6, 3"); a("s_add_u32 s13, s13, s3"); a("s_lshl_b32 s13, s13, 3")
        a("v_lshlrev_b32 v5, 7, v0"); a("v_add_u32 v5, s13, v5")
        if touch:
            a("v_mov_b32 v4, 0"); a(f"v_mov_b32 v23, {786432-8*768}")
            a("s_mov_b64 exec, 1")
            a(f"buffer_load_dword v28, v4, {srd(V)}, 0 offen nt"); a.pend.pop(28)
            a(f"buffer_load_dword v28, v23, {srd(V)}, 0 offen nt"); a.pend.pop(28)
            a(f"buffer_load_dword v28, v23, {srd(K)}, 0 offen nt"); a.pend.pop(28)
            if touch > 1:
                a(f"buffer_load_dword v28, v4, {srd(WO)}, 0 offen"); a.pend.pop(28)
                a(f"buffer_load_dword v28, v4, {srd(W1)}, 0 offen"); a.pend.pop(28)
                a(f"buffer_load_dword v28, v4, {srd(W2)}, 0 offen"); a.pend.pop(28)
            a("s_mov_b64 exec, -1")
        if proto:
            a(f"buffer_store_dwordx4 v[6:9], v10, {srd(P)}, 0 offen sc1", tag="clr0")
            a(f"buffer_store_dwordx2 v[6:7], v5, {srd(ML)}, 0 offen sc1", tag="clr1")
    for p in range(min(npair, WR // 2)):
        wqload(2 * p); wqload(2 * p + 1); kfill(p)
        if p == 0: setup2()
        if pbar and p % pbar == pbar - 1: a("s_barrier")
    T = HR[0:6]; QA = [6, 7, 8, 9, HR[6], HR[7]]
    for j in range(6): a(f"v_mov_b32 v{QA[j]}, 0")
    stamp()
    for k in range(npair):
        a.waitv(("wq", 2 * k + 1))
        A_, B_ = S((2 * k) % WR), S((2 * k + 1) % WR)
        for d in range(3):
            a(f"v_perm_b32 v{T[2*d]}, v{B_+d}, v{A_+d}, s{SLO}"); a(f"v_perm_b32 v{T[2*d+1]}, v{B_+d}, v{A_+d}, s{SHI}")
        pn = k + WR // 2
        if pn < npair:
            wqload(2 * pn); wqload(2 * pn + 1); kfill(pn)
        for j in range(6): a(f"v_dot2c_f32_bf16 v{QA[j]}, v{T[j]}, v{12+k}")
        if pbar and pn < npair and pn % pbar == pbar - 1: a("s_barrier")
    for j in range(3): a(f"v_permlane32_swap_b32 v{QA[j]}, v{QA[j+3]}")
    for j in range(3): a(f"v_add_f32 v{QA[j]}, v{QA[j]}, v{QA[j+3]}")
    a("s_lshl_b32 s13, s3, 10"); a(f"v_add_u32 v{T[0]}, s13, v10")
    a(f"ds_write_b128 v{T[0]}, v[6:9] offset:{LDS_Q}")
    if proto: a.waitv("clr1")
    a.waitl()
    a("s_barrier")
    for w in range(8): a(f"ds_read_b96 {x3(S(w))}, v10 offset:{LDS_Q+1024*w}", tag=("qr", w))
    if proto:
        a("v_mov_b32 v12, 1")
        a(f"buffer_atomic_add v12, v11, {srd(DBG)}, 0 offen sc1", tag="flag")
    a("v_and_b32 v13, 15, v0"); a("v_mul_u32_u24 v14, 52, v13"); a("v_lshrrev_b32 v14, 8, v14")
    a("v_mul_u32_u24 v15, 5, v14"); a("v_sub_u32 v13, v13, v15")
    a("v_bfe_u32 v15, v0, 4, 1"); a("v_mad_u32_u24 v13, v15, 5, v13")
    a("v_lshrrev_b32 v15, 5, v0"); a("v_mad_u32_u24 v16, v15, 3, v14")
    a("v_cmp_eq_u32 vcc, 3, v14"); a("v_cndmask_b32_e64 v16, v16, 6, vcc")
    a("v_lshlrev_b32 v17, 4, v13")
    a(f"v_mul_u32_u24 v2, {32*1280}, v16"); a("v_add_u32 v2, v2, v17")
    a(f"v_mul_u32_u24 v11, {4*1280}, v16"); a("v_add_u32 v11, v11, v17")
    a("v_lshlrev_b32 v17, 1, v17"); a("v_lshl_add_u32 v31, v15, 4, v17")
    a("v_mov_b32 v30, v16")
    for w in range(1, 8):
        a.waitl(("qr", w))
        for j in range(3): a(f"v_add_f32 v{S(0)+j}, v{S(0)+j}, v{S(w)+j}")
    for j in range(3): a(f"v_mov_b32 v{S(1)+j}, v{S(0)+j}")
    for j in range(3): a(f"v_permlane32_swap_b32 v{S(0)+j}, v{S(1)+j}")
    Q = [20, 21, 22]
    a(f"v_cvt_pk_bf16_f32 v20, v{S(0)}, v{S(0)+1}")
    a(f"v_cvt_pk_bf16_f32 v21, v{S(0)+2}, v{S(1)}")
    a(f"v_cvt_pk_bf16_f32 v22, v{S(1)+1}, v{S(1)+2}")
    stamp()
    ACC = list(range(12, 20)); SC = [24, 25, 26, 27]
    X = HR[0:4]; Y = HR[4:6]; Z = HR[6:8]; W_ = HR[8:10]; U = HR[10:12]
    hooks = {t: [] for t in range(256)}
    FS = list(range(0, 8))
    def f1addr():
        a("v_lshrrev_b32 v6, 2, v0"); a("v_mul_u32_u24 v6, 6, v6")
        a("s_mul_i32 s13, s3, 96"); a("v_add_u32 v6, s13, v6")
        a("v_lshlrev_b32 v7, 1, v6")
        a("v_mul_u32_u24 v6, 3072, v6"); a("v_and_b32 v8, 3, v0"); a("v_mad_u32_u24 v6, v8, 12, v6")
        a(f"buffer_load_dwordx3 {x3(S(FS[6]))}, v7, {srd(XF)}, 0 offen {wflags}", tag="xf")
        a(f"buffer_load_dwordx3 {x3(S(FS[7]))}, v7, {srd(GW)}, 0 offen {wflags}", tag="gw")
    hooks[f1st].append(f1addr)
    def w1load(i):
        def f():
            a(f"s_mov_b32 s19, {i*3072}")
            a(f"buffer_load_dwordx3 {x3(S(FS[i]))}, v6, {srd(W1)}, s19 offen {wflags}", tag=("w1", i))
        return f
    for i in range(6): hooks[f1st + 1 + f1step * i].append(w1load(i))
    tf1 = f1st + 1 + f1step * 5 + D + 2
    def ffn1():
        a.waitv(("w1", 5))
        F = [H(FS[i]) for i in range(8)]
        T = [4, 6, 7, 8, 9, 29]
        for k in range(3):
            for d in range(3):
                A_, B_ = S(FS[2 * k]) + d, S(FS[2 * k + 1]) + d
                a(f"v_perm_b32 v{T[2*d]}, v{B_}, v{A_}, s{SLO}"); a(f"v_perm_b32 v{T[2*d+1]}, v{B_}, v{A_}, s{SHI}")
            for j in range(6):
                a(f"v_dot2_f32_bf16 v{F[j]}, v{T[j]}, v{S(FS[6])+k}, {'0' if k == 0 else 'v%d' % F[j]}")
        a("s_mov_b32 s13, 0x3f803f80"); a("s_mov_b32 s14, 0xffff0000")
        for k in range(3):
            xr, gr = S(FS[6]) + k, S(FS[7]) + k
            a(f"v_lshlrev_b32 v{T[0]}, 16, v{xr}"); a(f"v_and_b32 v{T[1]}, s14, v{xr}")
            a(f"v_lshlrev_b32 v{T[2]}, 16, v{gr}"); a(f"v_and_b32 v{T[3]}, s14, v{gr}")
            a(f"v_mul_f32 v{T[0]}, v{T[0]}, v{T[2]}"); a(f"v_mul_f32 v{T[1]}, v{T[1]}, v{T[3]}")
            a(f"v_cvt_pk_bf16_f32 v{T[4]}, v{T[0]}, v{T[1]}")
            a(f"v_dot2_f32_bf16 v{F[6]}, v{T[4]}, s13, {'0' if k == 0 else 'v%d' % F[6]}")
        a(f"v_mov_b32 v{F[7]}, 0")
        for j in range(4): a(f"v_permlane32_swap_b32 v{F[j]}, v{F[j+4]}")
        for j in range(4): a(f"v_add_f32 v{T[j]}, v{F[j]}, v{F[j+4]}")
        for j in range(2): a(f"v_permlane16_swap_b32 v{T[j]}, v{T[j+2]}")
        for j in range(2): a(f"v_add_f32 v{T[j]}, v{T[j]}, v{T[j+2]}")
        a(f"v_lshrrev_b32 v{T[2]}, 3, v0"); a(f"v_lshlrev_b32 v{T[2]}, 4, v{T[2]}")
        a(f"v_add_f32_dpp v{T[0]}, v{T[0]}, v{T[0]} row_ror:8 row_mask:0xf bank_mask:0x3")
        a(f"v_and_b32 v{T[3]}, 3, v0"); a(f"v_lshl_add_u32 v{T[2]}, v{T[3]}, 2, v{T[2]}")
        a(f"v_add_f32_dpp v{T[0]}, v{T[1]}, v{T[1]} row_ror:8 row_mask:0xf bank_mask:0xc")
        a("s_lshl_b32 s13, s3, 7"); a(f"v_add_u32 v{T[2]}, s13, v{T[2]}")
        a(f"v_add_f32_dpp v{T[1]}, v{T[0]}, v{T[0]} row_shl:4 row_mask:0xf bank_mask:0x5")
        a(f"v_add_f32_dpp v{T[1]}, v{T[0]}, v{T[0]} row_shr:4 row_mask:0xf bank_mask:0xa")
        a(f"ds_write_b32 v{T[2]}, v{T[1]} offset:{LDS_F}")
        a.waitl()
    hooks[tf1].append(ffn1)
    def w2load(i):
        def f(): a(f"buffer_load_dwordx4 {x4(S(FS[i]))}, v11, {srd(W2)}, 0 offen offset:{1280*i} {wflags}", tag=("w2", i))
        return f
    for i in range(4): hooks[tf1 + 1 + 2 * i].append(w2load(i))
    tf2 = tf1 + 8 + D + 2
    assert bar and (tf2 // bar) > (tf1 // bar) and tf2 < 127, (tf1, tf2)
    def ffn2():
        a.waitv(("w2", 3))
        a("v_and_b32 v4, 31, v0"); a("v_lshlrev_b32 v4, 2, v4")
        for w in range(8): a(f"ds_read_b32 v{ACC[w]}, v4 offset:{LDS_F+128*w}")
        a("v_and_b32 v6, 3, v0"); a("v_mul_u32_u24 v6, 12, v6"); a("v_bfe_u32 v7, v0, 2, 3"); a("v_lshl_add_u32 v6, v7, 1, v6")
        a("v_cmp_lt_u32 vcc, 5, v7"); a("v_cndmask_b32_e64 v6, v6, 56, vcc")
        a("s_lshl_b32 s13, s3, 6"); a("v_add_u32 v6, s13, v6")
        a("v_lshl_add_u32 v4, v30, 3, s13")
        a.waitl()
        for w in range(1, 8): a(f"v_add_f32 v{ACC[0]}, v{ACC[0]}, v{ACC[w]}")
        a(f"v_cvt_pk_bf16_f32 v7, v{ACC[0]}, v{ACC[0]}"); a("v_lshlrev_b32 v7, 16, v7")
        a(f"v_mul_f32 v8, {LOG2E ^ 0x80000000:#x}, v7"); a("v_exp_f32 v8, v8"); a("v_add_f32 v8, 1.0, v8"); a("v_rcp_f32 v8, v8")
        a("v_mul_f32 v9, v7, v8"); a("v_cvt_pk_bf16_f32 v9, v9, v9")
        a(f"ds_write_b16 v6, v9 offset:{LDS_H}")
        a("v_cvt_pk_bf16_f32 v8, v8, v8"); a("v_lshlrev_b32 v8, 16, v8")
        a("v_sub_f32 v29, 1.0, v8"); a("v_cvt_pk_bf16_f32 v29, v29, v29"); a("v_lshlrev_b32 v29, 16, v29")
        a("v_readlane_b32 s22, v8, 24"); a("v_readlane_b32 s23, v29, 24")
        a.waitl()
        a(f"ds_read_b64 v[6:7], v4 offset:{LDS_H}")
        a.waitl()
        for k in range(2):
            for d in range(4):
                A_, B_ = S(FS[2 * k]) + d, S(FS[2 * k + 1]) + d
                a(f"v_perm_b32 v8, v{B_}, v{A_}, s{SLO}"); a(f"v_perm_b32 v9, v{B_}, v{A_}, s{SHI}")
                a(f"v_dot2_f32_bf16 v{ACC[2*d]}, v8, v{6+k}, {'0' if k == 0 else 'v%d' % ACC[2*d]}")
                a(f"v_dot2_f32_bf16 v{ACC[2*d+1]}, v9, v{6+k}, {'0' if k == 0 else 'v%d' % ACC[2*d+1]}")
        for j in range(8): a(f"v_mul_f32 v{ACC[j]}, s23, v{ACC[j]}")
    hooks[tf2].append(ffn2)
    WS = list(range(8, 40))
    assert wost >= NP
    WP = [[None] * 8 for _ in range(16)]
    spare = [23]
    def woload(i):
        def f():
            a(f"s_mov_b32 s19, {i*1280}")
            a(f"buffer_load_dwordx4 {x4(S(WS[i]))}, v2, {srd(WO)}, s19 offen {wflags}", tag=("wo", i))
        return f
    def woperm(k):
        def f():
            a.waitv(("wo", 2 * k + 1))
            for d in range(4):
                A_, B_ = S(WS[2 * k]) + d, S(WS[2 * k + 1]) + d
                s = spare[0]
                a(f"v_perm_b32 v{s}, v{B_}, v{A_}, s{SLO}"); a(f"v_perm_b32 v{B_}, v{B_}, v{A_}, s{SHI}")
                WP[k][2 * d] = s; WP[k][2 * d + 1] = B_; spare[0] = A_
        return f
    for i in range(32): hooks[wost + wostep * i].append(woload(i))
    for k in range(16): hooks[min(255, wost + wostep * (2 * k + 1) + D + 3)].append(woperm(k))
    if proto: hooks[100].append(lambda: a(f"buffer_load_dword v28, off, {srd(DBG)}, 0 sc1", tag="flagld"))
    def release(t):
        if slot[t] >= 56 - D: free.append(slot[t])
        if free and (kn[0] - t - 1 < D or t % shr == shr - 1): kload(free.pop(0))
    def lvl(s_, t):
        if s_ % 2 == 1:
            x, y = X[(s_ - 1) % 4], X[s_ % 4]
            a(f"v_permlane16_swap_b32 v{x}, v{y}"); a(f"v_add_f32 v{Y[(s_>>1)&1]}, v{x}, v{y}")
        if s_ % 4 == 3:
            z = Z[(s_ >> 2) & 1]
            a(f"v_add_f32_dpp v{z}, v{Y[0]}, v{Y[0]} row_ror:8 row_mask:0xf bank_mask:0x3")
            a(f"v_add_f32_dpp v{z}, v{Y[1]}, v{Y[1]} row_ror:8 row_mask:0xf bank_mask:0xc")
        if s_ % 8 == 7:
            w = W_[(s_ >> 3) & 1]
            a(f"v_add_f32_dpp v{w}, v{Z[0]}, v{Z[0]} row_shl:4 row_mask:0xf bank_mask:0x5")
            a(f"v_add_f32_dpp v{w}, v{Z[1]}, v{Z[1]} row_shr:4 row_mask:0xf bank_mask:0xa")
            a(f"v_add_f32_dpp v{w}, v{w}, v{w} quad_perm:[2,3,0,1] row_mask:0xf bank_mask:0xf")
        if s_ % 16 == 15:
            u = U[(s_ >> 4) & 1]
            a(f"v_cndmask_b32_e64 v{u}, v{W_[0]}, v{W_[1]}, s[{MB1}:{MB1+1}]")
            a(f"v_add_f32_dpp v{u}, v{u}, v{u} quad_perm:[1,0,3,2] row_mask:0xf bank_mask:0xf")
        if s_ == 31:
            a(f"v_cndmask_b32_e64 v{SC[t//32]}, v{U[0]}, v{U[1]}, s[{MB0}:{MB0+1}]")
    for t in range(128):
        r = S(slot[t]); hreg = X[t % 4]
        a.waitv(("kv", t))
        a(f"v_dot2_f32_bf16 v{hreg}, v{r}, v{Q[0]}, 0")
        a(f"v_dot2_f32_bf16 v{hreg}, v{r+1}, v{Q[1]}, v{hreg}")
        a(f"v_dot2_f32_bf16 v{hreg}, v{r+2}, v{Q[2]}, v{hreg}")
        release(t)
        if t > 0: lvl((t - 1) % 32, t - 1)
        if t == 127: lvl(31, t)
        for f in hooks[t]: f()
        if bar and t % bar == bar - 1: a("s_barrier")
    stamp()
    a("s_mov_b32 s14, 0xffff0000")
    for j in (0, 2):
        a(f"v_cvt_pk_bf16_f32 v6, v{SC[j]}, v{SC[j+1]}")
        a(f"v_lshlrev_b32 v{SC[j]}, 16, v6"); a(f"v_and_b32 v{SC[j+1]}, s14, v6")
        a(f"v_mul_f32 v{SC[j]}, {SCALE:#x}, v{SC[j]}"); a(f"v_mul_f32 v{SC[j+1]}, {SCALE:#x}, v{SC[j+1]}")
        a(f"v_cvt_pk_bf16_f32 v6, v{SC[j]}, v{SC[j+1]}")
        a(f"v_lshlrev_b32 v{SC[j]}, 16, v6"); a(f"v_and_b32 v{SC[j+1]}, s14, v6")
    def wave_red(op, r, sdst):
        for m in ("quad_perm:[1,0,3,2] row_mask:0xf", "quad_perm:[2,3,0,1] row_mask:0xf", "row_half_mirror row_mask:0xf", "row_mirror row_mask:0xf",
                  "row_bcast:15 row_mask:0xa", "row_bcast:31 row_mask:0xc"):
            a(f"{op}_dpp v{r}, v{r}, v{r} {m} bank_mask:0xf")
        a(f"v_readlane_b32 s{sdst}, v{r}, 63")
    a(f"v_max3_f32 v6, v{SC[0]}, v{SC[1]}, v{SC[2]}"); a(f"v_max_f32 v6, v6, v{SC[3]}")
    wave_red("v_max_f32", 6, 20)
    a(f"v_mov_b32 v7, {LOG2E:#x}")
    a("v_mul_f32 v6, s20, v7")
    for j in range(4): a(f"v_fma_f32 v{SC[j]}, v{SC[j]}, v7, -v6")
    for j in range(4): a(f"v_exp_f32 v{SC[j]}, v{SC[j]}")
    a("v_bfrev_b32 v4, v0"); a("v_lshrrev_b32 v4, 27, v4"); a("v_lshlrev_b32 v4, 1, v4")
    a("v_lshrrev_b32 v11, 5, v0"); a("v_lshlrev_b32 v11, 8, v11"); a("s_lshl_b32 s13, s3, 9"); a("v_add_u32 v11, s13, v11")
    a("v_add_u32 v4, v4, v11")
    a(f"v_cvt_pk_bf16_f32 v8, v{SC[0]}, v{SC[1]}"); a(f"v_cvt_pk_bf16_f32 v9, v{SC[2]}, v{SC[3]}")
    a(f"ds_write_b16 v4, v8 offset:{LDS_P}"); a(f"ds_write_b16_d16_hi v4, v8 offset:{LDS_P+64}")
    a(f"ds_write_b16 v4, v9 offset:{LDS_P+128}"); a(f"ds_write_b16_d16_hi v4, v9 offset:{LDS_P+192}")
    a(f"v_add_f32 v6, v{SC[0]}, v{SC[1]}"); a(f"v_add_f32 v7, v{SC[2]}, v{SC[3]}"); a("v_add_f32 v6, v6, v7")
    wave_red("v_add_f32", 6, 21)
    a("v_mov_b32 v20, s20"); a("v_mov_b32 v21, s21")
    a(f"buffer_store_dwordx2 v[20:21], v5, {srd(ML)}, 0 offen sc1", tag="mlst")
    if proto:
        a.waitv("flagld")
        a("v_readfirstlane_b32 s13, v28")
        a("s_cmp_ge_u32 s13, 256"); a("s_cbranch_scc0 L_flag_slow")
        a.label("L_flag_ok")
    PB = [4, 24]
    VA = HR[6:12]; T = HR[0:6]; R_ = HR[12]
    a.waitl()
    a(f"ds_read_b128 {x4(PB[0])}, v11 offset:{LDS_P}", tag=("pb", 0))
    a(f"ds_read_b128 {x4(PB[1])}, v11 offset:{LDS_P+16}", tag=("pb", 1))
    for j in range(6): a(f"v_mov_b32 v{VA[j]}, 0")
    def mlload():
        a("v_lshlrev_b32 v8, 3, v0")
        a(f"buffer_load_dwordx2 v[8:9], v8, {srd(ML)}, 0 offen sc1", tag="ml")
    hooks[128 + 2 * mlld + 1].append(mlload)
    def mlproc():
        a.waitv("ml")
        r = R_
        if proto:
            a(f"v_max_u32 v{r}, v8, v9"); a(f"v_cmp_eq_u32 vcc, -1, v{r}")
            a("s_cbranch_vccnz L_ml_slow")
            a.label("L_ml_ok")
        a(f"v_mov_b32 v{r}, v8")
        for m in ("quad_perm:[1,0,3,2]", "quad_perm:[2,3,0,1]", "row_half_mirror", "row_mirror"):
            a(f"v_max_f32_dpp v{r}, v{r}, v{r} {m} row_mask:0xf bank_mask:0xf")
        a(f"v_sub_f32 v8, v8, v{r}"); a(f"v_mul_f32 v8, {LOG2E:#x}, v8"); a("v_exp_f32 v8, v8"); a("v_mul_f32 v8, v8, v9")
        for m in ("quad_perm:[1,0,3,2]", "quad_perm:[2,3,0,1]", "row_half_mirror", "row_mirror"):
            a(f"v_add_f32_dpp v8, v8, v8 {m} row_mask:0xf bank_mask:0xf")
        a(f"v_sub_f32 v{r}, s20, v{r}"); a(f"v_mul_f32 v{r}, {LOG2E:#x}, v{r}"); a(f"v_exp_f32 v{r}, v{r}")
        a("v_rcp_f32 v8, v8"); a(f"v_mul_f32 v{r}, v{r}, v8"); a(f"v_mul_f32 v{r}, s22, v{r}")
        a(f"v_readfirstlane_b32 s24, v{r}")
        a("s_lshl_b32 s13, s3, 10"); a("v_add_u32 v8, s13, v10")
        a("v_and_b32 v9, 31, v0"); a("v_lshlrev_b32 v9, 1, v9"); a(f"v_lshrrev_b32 v{r}, 5, v0"); a(f"v_add_u32 v9, v9, v{r}"); a("v_mul_u32_u24 v9, 6, v9")
        a("s_lshl_b32 s13, s3, 9"); a("v_add_u32 v9, s13, v9")
        a("v_lshl_add_u32 v29, v30, 6, s13")
        a("s_mul_i32 s8, s2, 1639"); a("s_lshr_b32 s8, s8, 16")
        a("s_mul_i32 s9, s8, 40"); a("s_sub_u32 s9, s2, s9")
        a(f"s_mul_i32 s13, s8, {64*2560}"); a("s_lshl_b32 s14, s9, 6"); a("s_add_u32 s13, s13, s14"); mk(RP, 38, "s13")
        a(f"s_mov_b32 s{RP+2}, {63*2560+64}"); a(f"s_mov_b32 s{RP+3}, 0x20000")
        a("s_mul_i32 s13, s8, 1280"); a("s_lshl_b32 s14, s9, 5"); a("s_add_u32 s13, s13, s14")
        mk(OUT, 34, "s13"); a(f"s_mov_b32 s{OUT+2}, 32"); a(f"s_mov_b32 s{OUT+3}, 0x20000")
        a("v_lshrrev_b32 v20, 2, v0"); a("v_mul_u32_u24 v20, 2560, v20"); a("v_and_b32 v21, 3, v0"); a("v_lshl_add_u32 v20, v21, 4, v20")
        a("v_lshrrev_b32 v22, 4, v0"); a("v_lshl_add_u32 v21, v21, 2, v22"); a("v_lshlrev_b32 v21, 1, v21")
        a("s_mov_b32 s25, 40960"); a("s_mov_b32 s26, 81920"); a("s_mov_b32 s27, 122880")
        a(f"s_mov_b32 s28, {spin}")
    hooks[128 + 2 * mlpr + 1].append(mlproc)
    for k in range(64):
        t = 128 + 2 * k
        a.waitv(("kv", t + 1))
        A_, B_ = S(slot[t]), S(slot[t + 1])
        for d in range(3):
            a(f"v_perm_b32 v{T[2*d]}, v{B_+d}, v{A_+d}, s{SLO}"); a(f"v_perm_b32 v{T[2*d+1]}, v{B_+d}, v{A_+d}, s{SHI}")
        release(t); release(t + 1)
        j4 = k // 4
        a.waitl(("pb", j4))
        pr = PB[j4 % 2] + k % 4
        for j in range(6): a(f"v_dot2c_f32_bf16 v{VA[j]}, v{T[j]}, v{pr}")
        if k % 4 == 3 and j4 + 2 < 16:
            a(f"ds_read_b128 {x4(PB[j4%2])}, v11 offset:{LDS_P+16*(j4+2)}", tag=("pb", j4 + 2))
        for f in hooks[t] + hooks[t + 1]: f()
        if bar and (t + 1) % bar == bar - 1 and t + 1 < 255 - D: a("s_barrier")
    stamp()
    for j in range(3): a(f"v_permlane32_swap_b32 v{VA[j]}, v{VA[j+3]}")
    for j in range(3): a(f"v_add_f32 v{VA[j]}, v{VA[j]}, v{VA[j+3]}")
    for j in range(3): a(f"v_mul_f32 v{4+j}, s24, v{VA[j]}")
    a(f"ds_write_b96 v8, v[4:6] offset:{LDS_O}")
    a.waitl(); a("s_barrier")
    RS = lambda w: S(40 + w)
    for w in range(8): a(f"ds_read_b96 {x3(RS(w))}, v10 offset:{LDS_O+1024*w}", tag=("or", w))
    for w in range(1, 8):
        a.waitl(("or", w))
        for j in range(3): a(f"v_add_f32 v{RS(0)+j}, v{RS(0)+j}, v{RS(w)+j}")
    a(f"v_cvt_pk_bf16_f32 v4, v{RS(0)}, v{RS(0)+1}"); a(f"v_cvt_pk_bf16_f32 v5, v{RS(0)+2}, v{RS(0)+2}")
    a(f"ds_write_b16 v9, v4 offset:{LDS_OB}"); a(f"ds_write_b16_d16_hi v9, v4 offset:{LDS_OB+2}"); a(f"ds_write_b16 v9, v5 offset:{LDS_OB+4}")
    a.waitl()
    OP = [S(48 + i) for i in range(4)]
    for i in range(4): a(f"ds_read_b128 {x4(OP[i])}, v29 offset:{LDS_OB+16*i}", tag=("ob", i))
    for k in range(16):
        a.waitl(("ob", k // 4))
        for j in range(8): a(f"v_dot2c_f32_bf16 v{ACC[j]}, v{WP[k][j]}, v{OP[k//4]+k%4}")
    for j in range(4): a(f"v_permlane32_swap_b32 v{ACC[j]}, v{ACC[j+4]}")
    for j in range(4): a(f"v_add_f32 v{ACC[j]}, v{ACC[j]}, v{ACC[j+4]}")
    for j in range(4): a(f"v_add_f32_dpp v{4+j}, v{ACC[j]}, v{ACC[j]} row_shl:5 row_mask:0xf bank_mask:0xf")
    for j in range(4): a(f"v_add_f32_dpp v{4+j}, v{ACC[j]}, v{4+j} row_shl:10 row_mask:0xf bank_mask:0xf")
    for j in range(4): a(f"v_min_u32 v{4+j}, -2, v{4+j}")
    a("s_mov_b32 exec_lo, 0x001f001f"); a("s_mov_b32 exec_hi, 0x001f001f")
    a(f"buffer_store_dwordx4 v[4:7], v31, {srd(P)}, 0 offen sc1")
    a("s_mov_b64 exec, -1")
    stamp()
    a("s_cmp_lg_u32 s3, 0"); a("s_cbranch_scc1 L_fin")
    a("s_cmp_ge_u32 s2, 160"); a("s_cbranch_scc1 L_fin")
    a.label("L_poll")
    for i in range(4):
        a(f"buffer_load_dwordx4 {x4(32+4*i)}, v20, {srd(RP)}, {['0','s25','s26','s27'][i]} offen sc1")
    a.waitv_all()
    a("v_max3_u32 v4, v32, v33, v34")
    for i in range(35, 47, 2): a(f"v_max3_u32 v4, v4, v{i}, v{i+1}")
    a("v_max_u32 v4, v4, v47")
    a("v_cmp_eq_u32 vcc, -1, v4")
    a("s_sub_u32 s28, s28, 1"); a("s_cbranch_scc1 L_red")
    a("s_cbranch_vccnz L_poll")
    a.label("L_red")
    for j in range(4):
        a(f"v_add_f32 v{32+j}, v{32+j}, v{36+j}"); a(f"v_add_f32 v{40+j}, v{40+j}, v{44+j}")
    for j in range(4): a(f"v_add_f32 v{32+j}, v{32+j}, v{40+j}")
    a("v_permlane32_swap_b32 v32, v34"); a("v_permlane32_swap_b32 v33, v35")
    a("v_add_f32 v32, v32, v34"); a("v_add_f32 v33, v33, v35")
    a("v_permlane16_swap_b32 v32, v33"); a("v_add_f32 v32, v32, v33")
    a("v_add_f32_dpp v32, v32, v32 row_ror:8 row_mask:0xf bank_mask:0xf")
    a("v_add_f32_dpp v32, v32, v32 row_ror:4 row_mask:0xf bank_mask:0xf")
    a("v_cvt_pk_bf16_f32 v32, v32, v32")
    a("s_mov_b32 exec_lo, 0x000f000f"); a("s_mov_b32 exec_hi, 0x000f000f")
    a(f"buffer_store_short v32, v21, {srd(OUT)}, 0 offen")
    a("s_mov_b64 exec, -1")
    if stamps:
        a.waitv_all()
        a("s_memrealtime s[14:15]"); a.waitl(); a(f"v_writelane_b32 v3, s14, {nst[0]}")
    a.label("L_fin")
    if stamps:
        a("s_lshl_b32 s13, s2, 3"); a("s_add_u32 s13, s13, s3"); a("s_lshl_b32 s13, s13, 5"); a(f"s_add_u32 s13, s13, {STOFF}")
        mk(RP, 38, "s13"); a(f"s_mov_b32 s{RP+2}, 32"); a(f"s_mov_b32 s{RP+3}, 0x20000")
        a("v_lshlrev_b32 v1, 2, v0")
        a(f"buffer_store_dword v3, v1, {srd(RP)}, 0 offen")
    a.label("L_end")
    a("s_endpgm")
    if proto:
        a.vm = []; a.lg = []; a.pend = {}
        a.label("L_flag_slow")
        a(f"s_mov_b32 s28, {spin}")
        a.label("L_flag_loop")
        a("s_sleep 8")
        a(f"buffer_load_dword v28, off, {srd(DBG)}, 0 sc1"); a.waitv_all()
        a("v_readfirstlane_b32 s13, v28")
        a("s_sub_u32 s28, s28, 1"); a("s_cbranch_scc1 L_flag_ok")
        a("s_cmp_ge_u32 s13, 256"); a("s_cbranch_scc0 L_flag_loop")
        a("s_branch L_flag_ok")
        a.label("L_ml_slow")
        a(f"s_mov_b32 s28, {spin}")
        a.label("L_ml_loop")
        a("s_sleep 8")
        a("v_lshlrev_b32 v8, 3, v0")
        a(f"buffer_load_dwordx2 v[8:9], v8, {srd(ML)}, 0 offen sc1"); a.waitv_all()
        a(f"v_max_u32 v{HR[12]}, v8, v9"); a(f"v_cmp_eq_u32 vcc, -1, v{HR[12]}")
        a("s_sub_u32 s28, s28, 1"); a("s_cbranch_scc1 L_ml_ok")
        a("s_cbranch_vccnz L_ml_loop")
        a("s_branch L_ml_ok")
    a.raw('.section .rodata,"a"'); a.raw(".p2align 6"); a.raw(f".amdhsa_kernel {KN}_kernel")
    for l in ["next_free_vgpr 256", "next_free_sgpr 102", "accum_offset 256", "group_segment_fixed_size 0", "kernarg_size 96", "user_sgpr_count 2",
              "user_sgpr_kernarg_segment_ptr 1", "system_sgpr_workgroup_id_x 1"]: a.raw("  .amdhsa_" + l)
    a.raw(".end_amdhsa_kernel")
    sys.stderr.write(f"slots {a.n} nops {a.nops} maxv {a.maxv} tf1 {tf1} tf2 {tf2}\n")
    return a.text()

if __name__ == "__main__":
    out = sys.argv[1]
    kw = {}
    for kv in sys.argv[2:]:
        k, v = kv.split("=")
        kw[k] = int(v) if v.lstrip("-").isdigit() else v.replace("+", " ")
    open(out, "w").write(gen(**kw))
```

```python
import sys, struct
from asmlib import Asm
KN = "gated_mix__gqa_block_cached__dense_activation_silu__decode"
def f2u(f): return struct.unpack("<I", struct.pack("<f", f))[0]
LOG2E = f2u(1.4426950408889634)
SCALE = f2u(192 ** -0.5)
MLOFF = 1 << 20
STOFF = 2 << 20
LDS_Q, LDS_O, LDS_F, LDS_P, LDS_OB, LDS_H = 0, 8192, 16384, 17408, 21504, 25600
LDS_SIZE = 26112

def gen(D=16, NP=48, WR=8, k0=2, pbar=2, bar=16, shr=3, stamps=0, kflags="nt", vflags="nt", wflags="nt", vsw=0, ksw=128, spin=200000,
        f1st=40, f1step=2, wost=60, wostep=4, mlld=30, mlpr=50, proto=1, npair=20, touch=0, xmap=0):
    a = Asm()
    hdr = open("cdna_kernels/" + KN + ".s.ref").read().split("; Override launch")[0]
    a.raw(hdr.rstrip())
    a.raw(f"; @launch grid=(256,1,1) block=(512,1,1) lds={LDS_SIZE}")
    a.raw('.amdgcn_target "amdgcn-amd-amdhsa--gfx950"')
    a.raw(".text"); a.raw(f".globl {KN}_kernel"); a.raw(".p2align 8"); a.raw(f".type {KN}_kernel,@function"); a.raw(f"{KN}_kernel:")
    K, V, WQ, WO, W1, W2, XQ, XF, GW, P, ML, DBG, RP, OUT = [40 + 4 * i for i in range(14)]
    def srd(n): return f"s[{n}:{n+3}]"
    SLO, SHI, MB1, MB0 = 96, 97, 98, 100
    S = lambda s: 32 + 4 * s
    H = lambda s: 32 + 4 * s + 3
    def x2(r): return f"v[{r}:{r+1}]"
    def x3(r): return f"v[{r}:{r+2}]"
    def x4(r): return f"v[{r}:{r+3}]"
    HR = [H(56 - 16 + i) for i in range(16)]
    nst = [0]
    def stamp():
        if not stamps: return
        a("s_memrealtime s[14:15]"); a.waitl()
        a(f"v_writelane_b32 v3, s14, {nst[0]}")
        nst[0] += 1

    a("s_cmp_ge_u32 s2, 256"); a("s_cbranch_scc1 L_end")
    a("s_load_dwordx16 s[16:31], s[0:1], 0")
    a("s_load_dwordx8 s[32:39], s[0:1], 64")
    a("v_lshrrev_b32 v1, 6, v0")
    a("v_lshlrev_b32 v11, 8, v0")
    a("v_readfirstlane_b32 s3, v1")
    a("v_and_b32 v0, 63, v0")
    a("s_and_b32 s8, s2, 7"); a("s_lshr_b32 s9, s2, 3"); a("s_and_b32 s10, s9, 7")
    a("s_lshr_b32 s4, s10, 1"); a("s_and_b32 s6, s10, 1")
    a("s_andn2_b32 s5, s9, 7"); a("s_add_u32 s5, s5, s8")
    a("s_lshl_b32 s7, s5, 1"); a("s_add_u32 s7, s7, s6")
    a("s_lshl_b32 s11, s4, 6"); a("s_add_u32 s11, s11, s7")
    a("s_mul_i32 s12, s11, 786432"); a("s_mul_i32 s13, s3, 768"); a("s_add_u32 s12, s12, s13")
    a("v_mul_u32_u24 v1, 12, v0")
    a("v_lshrrev_b32 v6, 5, v0")
    a("v_and_b32 v7, 31, v0")
    a("v_mul_u32_u24 v7, 12, v7")
    a(f"v_mul_u32_u24 v2, {40*12288}, v6"); a("v_add_u32 v2, v2, v7")
    a("v_mul_u32_u24 v10, 80, v6")
    for n in (K, WQ, XQ): a(f"s_mov_b32 s{n+3}, 0x20000")
    a(f"s_mov_b32 s{K+2}, {786432-7*768}")
    a(f"s_mov_b32 s{WQ+2}, {79*12288+384}")
    a(f"s_mov_b32 s{XQ+2}, 160")
    a("s_lshl_b32 s7, s8, 3"); a("s_lshr_b32 s9, s9, 3"); a("s_lshl_b32 s9, s9, 1"); a("s_add_u32 s7, s7, s9"); a("s_add_u32 s7, s7, s6")
    a("s_mul_i32 s8, s3, 160")
    a("s_mul_i32 s9, s4, 1280")
    a(f"s_mul_i32 s13, s3, {80*12288}"); a("s_mul_i32 s10, s5, 384"); a("s_add_u32 s13, s13, s10")
    a("s_add_u32 s10, s9, s8")
    if stamps: a("v_mov_b32 v3, 0")
    a.waitl()
    stamp()
    def mk(n, ptr, off):
        a(f"s_add_u32 s{n}, s{ptr}, {off}"); a(f"s_addc_u32 s{n+1}, s{ptr+1}, 0")
    mk(K, 18, "s12")
    free = []; slot = {}
    init = list(range(56 - D, 56)) + list(range(55 - D, WR - 1, -1))
    assert NP <= len(init)
    kn = [0]
    def kvf(t):
        fl = (kflags if t < ksw else "nt") if t < 128 else (vflags if t - 128 >= vsw else "nt")
        return "" if fl == "-" else fl
    if wflags == "-": wflags = ""
    def kload(sl):
        t = kn[0]
        if t >= 256: return
        kn[0] += 1; slot[t] = sl
        a(f"s_mov_b32 s18, {(t%128)*6144}")
        a(f"buffer_load_dwordx3 {x3(S(sl))}, v1, {srd(K if t < 128 else V)}, s18 offen {kvf(t)}", tag=("kv", t))
    def wqload(i):
        a(f"s_mov_b32 s19, {i*12288}")
        a(f"buffer_load_dwordx3 {x3(S(i%WR))}, v2, {srd(WQ)}, s19 offen {wflags}", tag=("wq", i))
    for t in range(k0): kload(init[kn[0]])
    mk(XQ, 16, "s10"); mk(WQ, 22, "s13")
    for i in range(5): a(f"buffer_load_dwordx4 {x4(12+4*i)}, v10, {srd(XQ)}, 0 offen offset:{16*i} {wflags}", tag=("xq", i))
    def kfill(p):
        tgt = k0 + (NP - k0) * (p + 1) // npair
        while kn[0] < tgt: kload(init[kn[0]])
    def setup2():
        a(f"s_mov_b32 s{SLO}, 0x05040100"); a(f"s_mov_b32 s{SHI}, 0x07060302")
        a(f"s_mov_b32 s{MB1}, 0xcccccccc"); a(f"s_mov_b32 s{MB1+1}, 0xcccccccc")
        a(f"s_mov_b32 s{MB0}, 0xaaaaaaaa"); a(f"s_mov_b32 s{MB0+1}, 0xaaaaaaaa")
        for n in (V, WO, W1, W2, XF, GW, P, ML, DBG): a(f"s_mov_b32 s{n+3}, 0x20000")
        a(f"s_mov_b32 s{V+2}, {786432-7*768}")
        a(f"s_mov_b32 s{WO+2}, {191*1280+160}")
        a("s_mul_i32 s13, s7, 48"); a(f"s_sub_u32 s{W1+2}, {640*3072}, s13"); mk(W1, 28, "s13")
        a(f"s_mov_b32 s{W2+2}, {23*1280+160}")
        a(f"s_mov_b32 s{XF+2}, 1280"); a(f"s_mov_b32 s{GW+2}, 1280")
        a(f"s_mov_b32 s{P+2}, 320"); a(f"s_mov_b32 s{ML+2}, 128"); a(f"s_mov_b32 s{DBG+2}, 256")
        mk(XF, 16, "s9"); mk(GW, 32, "0"); mk(V, 20, "s12")
        a(f"s_mul_i32 s13, s5, {192*1280}"); a("s_add_u32 s13, s13, s8"); mk(WO, 24, "s13")
        a(f"s_mul_i32 s13, s7, {24*1280}"); a("s_add_u32 s13, s13, s8"); mk(W2, 30, "s13")
        a("s_mul_i32 s13, s11, 2560"); a("s_lshl_b32 s14, s8, 1"); a("s_add_u32 s13, s13, s14"); mk(P, 38, "s13")
        a("s_lshr_b32 s13, s11, 1"); a("s_lshl_b32 s13, s13, 7"); a(f"s_add_u32 s13, s13, {MLOFF}"); mk(ML, 38, "s13")
        mk(DBG, 36, "0")
        for i in range(6, 10): a(f"v_mov_b32 v{i}, -1")
        a("v_lshlrev_b32 v10, 4, v0")
        a("s_lshl_b32 s13, s6, 3"); a("s_add_u32 s13, s13, s3"); a("s_lshl_b32 s13, s13, 3")
        a("v_lshlrev_b32 v5, 7, v0"); a("v_add_u32 v5, s13, v5")
        if touch:
            a("v_mov_b32 v4, 0"); a(f"v_mov_b32 v{HR[15]}, {786432-8*768}")
            a("s_mov_b64 exec, 1")
            a(f"buffer_load_dword v{HR[14]}, v4, {srd(V)}, 0 offen nt"); a.pend.pop(HR[14])
            a(f"buffer_load_dword v{HR[14]}, v{HR[15]}, {srd(V)}, 0 offen nt"); a.pend.pop(HR[14])
            a(f"buffer_load_dword v{HR[14]}, v{HR[15]}, {srd(K)}, 0 offen nt"); a.pend.pop(HR[14])
            if touch > 1:
                a(f"buffer_load_dword v{HR[14]}, v4, {srd(WO)}, 0 offen"); a.pend.pop(HR[14])
                a(f"buffer_load_dword v{HR[14]}, v4, {srd(W1)}, 0 offen"); a.pend.pop(HR[14])
                a(f"buffer_load_dword v{HR[14]}, v4, {srd(W2)}, 0 offen"); a.pend.pop(HR[14])
            a("s_mov_b64 exec, -1")
        if proto:
            a(f"buffer_store_dwordx4 v[6:9], v10, {srd(P)}, 0 offen sc1", tag="clr0")
            a(f"buffer_store_dwordx2 v[6:7], v5, {srd(ML)}, 0 offen sc1", tag="clr1")
    for p in range(min(npair, WR // 2)):
        wqload(2 * p); wqload(2 * p + 1); kfill(p)
        if p == 0: setup2()
        if pbar and p % pbar == pbar - 1: a("s_barrier")
    T = HR[0:6]; QA = [6, 7, 8, 9, HR[6], HR[7]]
    for j in range(6): a(f"v_mov_b32 v{QA[j]}, 0")
    stamp()
    for k in range(npair):
        a.waitv(("wq", 2 * k + 1))
        A_, B_ = S((2 * k) % WR), S((2 * k + 1) % WR)
        for d in range(3):
            a(f"v_perm_b32 v{T[2*d]}, v{B_+d}, v{A_+d}, s{SLO}"); a(f"v_perm_b32 v{T[2*d+1]}, v{B_+d}, v{A_+d}, s{SHI}")
        pn = k + WR // 2
        if pn < npair:
            wqload(2 * pn); wqload(2 * pn + 1); kfill(pn)
        for j in range(6): a(f"v_dot2c_f32_bf16 v{QA[j]}, v{T[j]}, v{12+k}")
        if pbar and pn < npair and pn % pbar == pbar - 1: a("s_barrier")
    for j in range(3): a(f"v_permlane32_swap_b32 v{QA[j]}, v{QA[j+3]}")
    for j in range(3): a(f"v_add_f32 v{QA[j]}, v{QA[j]}, v{QA[j+3]}")
    a("s_lshl_b32 s13, s3, 10"); a(f"v_add_u32 v{T[0]}, s13, v10")
    a(f"ds_write_b128 v{T[0]}, v[6:9] offset:{LDS_Q}")
    if proto: a.waitv("clr1")
    a.waitl()
    a("s_barrier")
    for w in range(8): a(f"ds_read_b96 {x3(S(w))}, v10 offset:{LDS_Q+1024*w}", tag=("qr", w))
    if proto:
        a("v_mov_b32 v12, 1")
        a(f"buffer_atomic_add v12, v11, {srd(DBG)}, 0 offen sc1", tag="flag")
    a("v_and_b32 v13, 15, v0"); a("v_mul_u32_u24 v14, 52, v13"); a("v_lshrrev_b32 v14, 8, v14")
    a("v_mul_u32_u24 v15, 5, v14"); a("v_sub_u32 v13, v13, v15")
    a("v_bfe_u32 v15, v0, 4, 1"); a("v_mad_u32_u24 v13, v15, 5, v13")
    a("v_lshrrev_b32 v15, 5, v0"); a("v_mad_u32_u24 v16, v15, 3, v14")
    a("v_cmp_eq_u32 vcc, 3, v14"); a("v_cndmask_b32_e64 v16, v16, 6, vcc")
    a("v_lshlrev_b32 v17, 4, v13")
    a(f"v_mul_u32_u24 v2, {32*1280}, v16"); a("v_add_u32 v2, v2, v17")
    a(f"v_mul_u32_u24 v11, {4*1280}, v16"); a("v_add_u32 v11, v11, v17")
    a("v_lshlrev_b32 v17, 1, v17"); a("v_lshl_add_u32 v31, v15, 4, v17")
    a("v_mov_b32 v30, v16")
    for w in range(1, 8):
        a.waitl(("qr", w))
        for j in range(3): a(f"v_add_f32 v{S(0)+j}, v{S(0)+j}, v{S(w)+j}")
    for j in range(3): a(f"v_mov_b32 v{S(1)+j}, v{S(0)+j}")
    for j in range(3): a(f"v_permlane32_swap_b32 v{S(0)+j}, v{S(1)+j}")
    Q = [20, 21, 22]
    a(f"v_cvt_pk_bf16_f32 v20, v{S(0)}, v{S(0)+1}")
    a(f"v_cvt_pk_bf16_f32 v21, v{S(0)+2}, v{S(1)}")
    a(f"v_cvt_pk_bf16_f32 v22, v{S(1)+1}, v{S(1)+2}")
    stamp()
    ACC = list(range(12, 20)); SC = [24, 25, 26, 27]
    X = HR[0:4]; Y = HR[4:6]; Z = HR[6:8]; W_ = HR[8:10]; U = HR[10:12]
    hooks = {t: [] for t in range(256)}
    FS = list(range(0, 8))
    def f1addr():
        a("v_lshrrev_b32 v6, 2, v0"); a("v_mul_u32_u24 v6, 6, v6")
        a("s_mul_i32 s13, s3, 96"); a("v_add_u32 v6, s13, v6")
        a("v_lshlrev_b32 v7, 1, v6")
        a("v_mul_u32_u24 v6, 3072, v6"); a("v_and_b32 v8, 3, v0"); a("v_mad_u32_u24 v6, v8, 12, v6")
        a(f"buffer_load_dwordx3 {x3(S(FS[6]))}, v7, {srd(XF)}, 0 offen {wflags}", tag="xf")
        a(f"buffer_load_dwordx3 {x3(S(FS[7]))}, v7, {srd(GW)}, 0 offen {wflags}", tag="gw")
    hooks[f1st].append(f1addr)
    def w1load(i):
        def f():
            a(f"s_mov_b32 s19, {i*3072}")
            a(f"buffer_load_dwordx3 {x3(S(FS[i]))}, v6, {srd(W1)}, s19 offen {wflags}", tag=("w1", i))
        return f
    for i in range(6): hooks[f1st + 1 + f1step * i].append(w1load(i))
    tf1 = f1st + 1 + f1step * 5 + D + 2
    def ffn1():
        a.waitv(("w1", 5))
        F = [H(FS[i]) for i in range(8)]
        T = [4, 6, 7, 8, 9, 29]
        for k in range(3):
            for d in range(3):
                A_, B_ = S(FS[2 * k]) + d, S(FS[2 * k + 1]) + d
                a(f"v_perm_b32 v{T[2*d]}, v{B_}, v{A_}, s{SLO}"); a(f"v_perm_b32 v{T[2*d+1]}, v{B_}, v{A_}, s{SHI}")
            for j in range(6):
                a(f"v_dot2_f32_bf16 v{F[j]}, v{T[j]}, v{S(FS[6])+k}, {'0' if k == 0 else 'v%d' % F[j]}")
        a("s_mov_b32 s13, 0x3f803f80"); a("s_mov_b32 s14, 0xffff0000")
        for k in range(3):
            xr, gr = S(FS[6]) + k, S(FS[7]) + k
            a(f"v_lshlrev_b32 v{T[0]}, 16, v{xr}"); a(f"v_and_b32 v{T[1]}, s14, v{xr}")
            a(f"v_lshlrev_b32 v{T[2]}, 16, v{gr}"); a(f"v_and_b32 v{T[3]}, s14, v{gr}")
            a(f"v_mul_f32 v{T[0]}, v{T[0]}, v{T[2]}"); a(f"v_mul_f32 v{T[1]}, v{T[1]}, v{T[3]}")
            a(f"v_cvt_pk_bf16_f32 v{T[4]}, v{T[0]}, v{T[1]}")
            a(f"v_dot2_f32_bf16 v{F[6]}, v{T[4]}, s13, {'0' if k == 0 else 'v%d' % F[6]}")
        a(f"v_mov_b32 v{F[7]}, 0")
        for j in range(4): a(f"v_permlane32_swap_b32 v{F[j]}, v{F[j+4]}")
        for j in range(4): a(f"v_add_f32 v{T[j]}, v{F[j]}, v{F[j+4]}")
        for j in range(2): a(f"v_permlane16_swap_b32 v{T[j]}, v{T[j+2]}")
        for j in range(2): a(f"v_add_f32 v{T[j]}, v{T[j]}, v{T[j+2]}")
        a(f"v_lshrrev_b32 v{T[2]}, 3, v0"); a(f"v_lshlrev_b32 v{T[2]}, 4, v{T[2]}")
        a(f"v_add_f32_dpp v{T[0]}, v{T[0]}, v{T[0]} row_ror:8 row_mask:0xf bank_mask:0x3")
        a(f"v_and_b32 v{T[3]}, 3, v0"); a(f"v_lshl_add_u32 v{T[2]}, v{T[3]}, 2, v{T[2]}")
        a(f"v_add_f32_dpp v{T[0]}, v{T[1]}, v{T[1]} row_ror:8 row_mask:0xf bank_mask:0xc")
        a("s_lshl_b32 s13, s3, 7"); a(f"v_add_u32 v{T[2]}, s13, v{T[2]}")
        a(f"v_add_f32_dpp v{T[1]}, v{T[0]}, v{T[0]} row_shl:4 row_mask:0xf bank_mask:0x5")
        a(f"v_add_f32_dpp v{T[1]}, v{T[0]}, v{T[0]} row_shr:4 row_mask:0xf bank_mask:0xa")
        a(f"ds_write_b32 v{T[2]}, v{T[1]} offset:{LDS_F}")
        a.waitl()
    hooks[tf1].append(ffn1)
    def w2load(i):
        def f(): a(f"buffer_load_dwordx4 {x4(S(FS[i]))}, v11, {srd(W2)}, 0 offen offset:{1280*i} {wflags}", tag=("w2", i))
        return f
    for i in range(4): hooks[tf1 + 1 + 2 * i].append(w2load(i))
    tf2 = tf1 + 8 + D + 2
    assert bar and (tf2 // bar) > (tf1 // bar) and tf2 < 127, (tf1, tf2)
    def ffn2():
        a.waitv(("w2", 3))
        a("v_and_b32 v4, 31, v0"); a("v_lshlrev_b32 v4, 2, v4")
        for w in range(8): a(f"ds_read_b32 v{ACC[w]}, v4 offset:{LDS_F+128*w}")
        a("v_and_b32 v6, 3, v0"); a("v_mul_u32_u24 v6, 12, v6"); a("v_bfe_u32 v7, v0, 2, 3"); a("v_lshl_add_u32 v6, v7, 1, v6")
        a("v_cmp_lt_u32 vcc, 5, v7"); a("v_cndmask_b32_e64 v6, v6, 56, vcc")
        a("s_lshl_b32 s13, s3, 6"); a("v_add_u32 v6, s13, v6")
        a("v_lshl_add_u32 v4, v30, 3, s13")
        a.waitl()
        for w in range(1, 8): a(f"v_add_f32 v{ACC[0]}, v{ACC[0]}, v{ACC[w]}")
        a(f"v_cvt_pk_bf16_f32 v7, v{ACC[0]}, v{ACC[0]}"); a("v_lshlrev_b32 v7, 16, v7")
        a(f"v_mul_f32 v8, {LOG2E ^ 0x80000000:#x}, v7"); a("v_exp_f32 v8, v8"); a("v_add_f32 v8, 1.0, v8"); a("v_rcp_f32 v8, v8")
        a("v_mul_f32 v9, v7, v8"); a("v_cvt_pk_bf16_f32 v9, v9, v9")
        a(f"ds_write_b16 v6, v9 offset:{LDS_H}")
        a("v_cvt_pk_bf16_f32 v8, v8, v8"); a("v_lshlrev_b32 v8, 16, v8")
        a("v_sub_f32 v29, 1.0, v8"); a("v_cvt_pk_bf16_f32 v29, v29, v29"); a("v_lshlrev_b32 v29, 16, v29")
        a("v_readlane_b32 s22, v8, 24"); a("v_readlane_b32 s23, v29, 24")
        a.waitl()
        a(f"ds_read_b64 v[6:7], v4 offset:{LDS_H}")
        a.waitl()
        for k in range(2):
            for d in range(4):
                A_, B_ = S(FS[2 * k]) + d, S(FS[2 * k + 1]) + d
                a(f"v_perm_b32 v8, v{B_}, v{A_}, s{SLO}"); a(f"v_perm_b32 v9, v{B_}, v{A_}, s{SHI}")
                a(f"v_dot2_f32_bf16 v{ACC[2*d]}, v8, v{6+k}, {'0' if k == 0 else 'v%d' % ACC[2*d]}")
                a(f"v_dot2_f32_bf16 v{ACC[2*d+1]}, v9, v{6+k}, {'0' if k == 0 else 'v%d' % ACC[2*d+1]}")
        for j in range(8): a(f"v_mul_f32 v{ACC[j]}, s23, v{ACC[j]}")
    hooks[tf2].append(ffn2)
    WS = list(range(8, 40))
    assert wost >= NP
    WP = [[None] * 8 for _ in range(16)]
    spare = [23]
    def woload(i):
        def f():
            a(f"s_mov_b32 s19, {i*1280}")
            a(f"buffer_load_dwordx4 {x4(S(WS[i]))}, v2, {srd(WO)}, s19 offen {wflags}", tag=("wo", i))
        return f
    def woperm(k):
        def f():
            a.waitv(("wo", 2 * k + 1))
            for d in range(4):
                A_, B_ = S(WS[2 * k]) + d, S(WS[2 * k + 1]) + d
                s = spare[0]
                a(f"v_perm_b32 v{s}, v{B_}, v{A_}, s{SLO}"); a(f"v_perm_b32 v{B_}, v{B_}, v{A_}, s{SHI}")
                WP[k][2 * d] = s; WP[k][2 * d + 1] = B_; spare[0] = A_
        return f
    for i in range(32): hooks[wost + wostep * i].append(woload(i))
    for k in range(16): hooks[min(255, wost + wostep * (2 * k + 1) + D + 3)].append(woperm(k))
    if proto: hooks[100].append(lambda: a(f"buffer_load_dword v28, off, {srd(DBG)}, 0 sc1", tag="flagld"))
    def release(t):
        if slot[t] >= 56 - D: free.append(slot[t])
        if free and (kn[0] - t - 1 < D or t % shr == shr - 1): kload(free.pop(0))
    def lvl(s_, t):
        if s_ % 2 == 1:
            x, y = X[(s_ - 1) % 4], X[s_ % 4]
            a(f"v_permlane16_swap_b32 v{x}, v{y}"); a(f"v_add_f32 v{Y[(s_>>1)&1]}, v{x}, v{y}")
        if s_ % 4 == 3:
            z = Z[(s_ >> 2) & 1]
            a(f"v_add_f32_dpp v{z}, v{Y[0]}, v{Y[0]} row_ror:8 row_mask:0xf bank_mask:0x3")
            a(f"v_add_f32_dpp v{z}, v{Y[1]}, v{Y[1]} row_ror:8 row_mask:0xf bank_mask:0xc")
        if s_ % 8 == 7:
            w = W_[(s_ >> 3) & 1]
            a(f"v_add_f32_dpp v{w}, v{Z[0]}, v{Z[0]} row_shl:4 row_mask:0xf bank_mask:0x5")
            a(f"v_add_f32_dpp v{w}, v{Z[1]}, v{Z[1]} row_shr:4 row_mask:0xf bank_mask:0xa")
            a(f"v_add_f32_dpp v{w}, v{w}, v{w} quad_perm:[2,3,0,1] row_mask:0xf bank_mask:0xf")
        if s_ % 16 == 15:
            u = U[(s_ >> 4) & 1]
            a(f"v_cndmask_b32_e64 v{u}, v{W_[0]}, v{W_[1]}, s[{MB1}:{MB1+1}]")
            a(f"v_add_f32_dpp v{u}, v{u}, v{u} quad_perm:[1,0,3,2] row_mask:0xf bank_mask:0xf")
        if s_ == 31:
            a(f"v_cndmask_b32_e64 v{SC[t//32]}, v{U[0]}, v{U[1]}, s[{MB0}:{MB0+1}]")
    for t in range(128):
        r = S(slot[t]); hreg = X[t % 4]
        a.waitv(("kv", t))
        a(f"v_dot2_f32_bf16 v{hreg}, v{r}, v{Q[0]}, 0")
        a(f"v_dot2_f32_bf16 v{hreg}, v{r+1}, v{Q[1]}, v{hreg}")
        a(f"v_dot2_f32_bf16 v{hreg}, v{r+2}, v{Q[2]}, v{hreg}")
        release(t)
        if t > 0: lvl((t - 1) % 32, t - 1)
        if t == 127: lvl(31, t)
        for f in hooks[t]: f()
        if bar and t % bar == bar - 1: a("s_barrier")
    stamp()
    a("s_mov_b32 s14, 0xffff0000")
    for j in (0, 2):
        a(f"v_cvt_pk_bf16_f32 v6, v{SC[j]}, v{SC[j+1]}")
        a(f"v_lshlrev_b32 v{SC[j]}, 16, v6"); a(f"v_and_b32 v{SC[j+1]}, s14, v6")
        a(f"v_mul_f32 v{SC[j]}, {SCALE:#x}, v{SC[j]}"); a(f"v_mul_f32 v{SC[j+1]}, {SCALE:#x}, v{SC[j+1]}")
        a(f"v_cvt_pk_bf16_f32 v6, v{SC[j]}, v{SC[j+1]}")
        a(f"v_lshlrev_b32 v{SC[j]}, 16, v6"); a(f"v_and_b32 v{SC[j+1]}, s14, v6")
    def wave_red(op, r, sdst):
        for m in ("quad_perm:[1,0,3,2] row_mask:0xf", "quad_perm:[2,3,0,1] row_mask:0xf", "row_half_mirror row_mask:0xf", "row_mirror row_mask:0xf",
                  "row_bcast:15 row_mask:0xa", "row_bcast:31 row_mask:0xc"):
            a(f"{op}_dpp v{r}, v{r}, v{r} {m} bank_mask:0xf")
        a(f"v_readlane_b32 s{sdst}, v{r}, 63")
    a(f"v_max3_f32 v6, v{SC[0]}, v{SC[1]}, v{SC[2]}"); a(f"v_max_f32 v6, v6, v{SC[3]}")
    wave_red("v_max_f32", 6, 20)
    a(f"v_mov_b32 v7, {LOG2E:#x}")
    a("v_mul_f32 v6, s20, v7")
    for j in range(4): a(f"v_fma_f32 v{SC[j]}, v{SC[j]}, v7, -v6")
    for j in range(4): a(f"v_exp_f32 v{SC[j]}, v{SC[j]}")
    a("v_bfrev_b32 v4, v0"); a("v_lshrrev_b32 v4, 27, v4"); a("v_lshlrev_b32 v4, 1, v4")
    a("v_lshrrev_b32 v11, 5, v0"); a("v_lshlrev_b32 v11, 8, v11"); a("s_lshl_b32 s13, s3, 9"); a("v_add_u32 v11, s13, v11")
    a("v_add_u32 v4, v4, v11")
    a(f"v_cvt_pk_bf16_f32 v8, v{SC[0]}, v{SC[1]}"); a(f"v_cvt_pk_bf16_f32 v9, v{SC[2]}, v{SC[3]}")
    a(f"ds_write_b16 v4, v8 offset:{LDS_P}"); a(f"ds_write_b16_d16_hi v4, v8 offset:{LDS_P+64}")
    a(f"ds_write_b16 v4, v9 offset:{LDS_P+128}"); a(f"ds_write_b16_d16_hi v4, v9 offset:{LDS_P+192}")
    a(f"v_add_f32 v6, v{SC[0]}, v{SC[1]}"); a(f"v_add_f32 v7, v{SC[2]}, v{SC[3]}"); a("v_add_f32 v6, v6, v7")
    wave_red("v_add_f32", 6, 21)
    a("v_mov_b32 v20, s20"); a("v_mov_b32 v21, s21")
    a(f"buffer_store_dwordx2 v[20:21], v5, {srd(ML)}, 0 offen sc1", tag="mlst")
    if proto:
        a.waitv("flagld")
        a("v_readfirstlane_b32 s13, v28")
        a("s_cmp_ge_u32 s13, 256"); a("s_cbranch_scc0 L_flag_slow")
        a.label("L_flag_ok")
    PB = [4, 24]
    VA = HR[6:12]; T = HR[0:6]; R_ = HR[12]
    a.waitl()
    a(f"ds_read_b128 {x4(PB[0])}, v11 offset:{LDS_P}", tag=("pb", 0))
    a(f"ds_read_b128 {x4(PB[1])}, v11 offset:{LDS_P+16}", tag=("pb", 1))
    for j in range(6): a(f"v_mov_b32 v{VA[j]}, 0")
    def mlload():
        a("v_lshlrev_b32 v8, 3, v0")
        a(f"buffer_load_dwordx2 v[8:9], v8, {srd(ML)}, 0 offen sc1", tag="ml")
    hooks[128 + 2 * mlld + 1].append(mlload)
    def mlproc():
        a.waitv("ml")
        r = R_
        if proto:
            a(f"v_max_u32 v{r}, v8, v9"); a(f"v_cmp_eq_u32 vcc, -1, v{r}")
            a("s_cbranch_vccnz L_ml_slow")
            a.label("L_ml_ok")
        a(f"v_mov_b32 v{r}, v8")
        for m in ("quad_perm:[1,0,3,2]", "quad_perm:[2,3,0,1]", "row_half_mirror", "row_mirror"):
            a(f"v_max_f32_dpp v{r}, v{r}, v{r} {m} row_mask:0xf bank_mask:0xf")
        a(f"v_sub_f32 v8, v8, v{r}"); a(f"v_mul_f32 v8, {LOG2E:#x}, v8"); a("v_exp_f32 v8, v8"); a("v_mul_f32 v8, v8, v9")
        for m in ("quad_perm:[1,0,3,2]", "quad_perm:[2,3,0,1]", "row_half_mirror", "row_mirror"):
            a(f"v_add_f32_dpp v8, v8, v8 {m} row_mask:0xf bank_mask:0xf")
        a(f"v_sub_f32 v{r}, s20, v{r}"); a(f"v_mul_f32 v{r}, {LOG2E:#x}, v{r}"); a(f"v_exp_f32 v{r}, v{r}")
        a("v_rcp_f32 v8, v8"); a(f"v_mul_f32 v{r}, v{r}, v8"); a(f"v_mul_f32 v{r}, s22, v{r}")
        a(f"v_readfirstlane_b32 s24, v{r}")
        a("s_lshl_b32 s13, s3, 10"); a("v_add_u32 v8, s13, v10")
        a("v_and_b32 v9, 31, v0"); a("v_lshlrev_b32 v9, 1, v9"); a(f"v_lshrrev_b32 v{r}, 5, v0"); a(f"v_add_u32 v9, v9, v{r}"); a("v_mul_u32_u24 v9, 6, v9")
        a("s_lshl_b32 s13, s3, 9"); a("v_add_u32 v9, s13, v9")
        a("v_lshl_add_u32 v29, v30, 6, s13")
        a("s_mul_i32 s8, s2, 1639"); a("s_lshr_b32 s8, s8, 16")
        a("s_mul_i32 s9, s8, 40"); a("s_sub_u32 s9, s2, s9")
        a(f"s_mul_i32 s13, s8, {64*2560}"); a("s_lshl_b32 s14, s9, 6"); a("s_add_u32 s13, s13, s14"); mk(RP, 38, "s13")
        a(f"s_mov_b32 s{RP+2}, {63*2560+64}"); a(f"s_mov_b32 s{RP+3}, 0x20000")
        a("s_mul_i32 s13, s8, 1280"); a("s_lshl_b32 s14, s9, 5"); a("s_add_u32 s13, s13, s14")
        mk(OUT, 34, "s13"); a(f"s_mov_b32 s{OUT+2}, 32"); a(f"s_mov_b32 s{OUT+3}, 0x20000")
        a("v_lshrrev_b32 v20, 2, v0"); a("v_mul_u32_u24 v20, 2560, v20"); a("v_and_b32 v21, 3, v0"); a("v_lshl_add_u32 v20, v21, 4, v20")
        a("v_lshrrev_b32 v22, 4, v0"); a("v_lshl_add_u32 v21, v21, 2, v22"); a("v_lshlrev_b32 v21, 1, v21")
        a("s_mov_b32 s25, 40960"); a("s_mov_b32 s26, 81920"); a("s_mov_b32 s27, 122880")
        a(f"s_mov_b32 s28, {spin}")
    hooks[128 + 2 * mlpr + 1].append(mlproc)
    for k in range(64):
        t = 128 + 2 * k
        a.waitv(("kv", t + 1))
        A_, B_ = S(slot[t]), S(slot[t + 1])
        for d in range(3):
            a(f"v_perm_b32 v{T[2*d]}, v{B_+d}, v{A_+d}, s{SLO}"); a(f"v_perm_b32 v{T[2*d+1]}, v{B_+d}, v{A_+d}, s{SHI}")
        release(t); release(t + 1)
        j4 = k // 4
        a.waitl(("pb", j4))
        pr = PB[j4 % 2] + k % 4
        for j in range(6): a(f"v_dot2c_f32_bf16 v{VA[j]}, v{T[j]}, v{pr}")
        if k % 4 == 3 and j4 + 2 < 16:
            a(f"ds_read_b128 {x4(PB[j4%2])}, v11 offset:{LDS_P+16*(j4+2)}", tag=("pb", j4 + 2))
        for f in hooks[t] + hooks[t + 1]: f()
        if bar and (t + 1) % bar == bar - 1 and t + 1 < 255 - D: a("s_barrier")
    stamp()
    for j in range(3): a(f"v_permlane32_swap_b32 v{VA[j]}, v{VA[j+3]}")
    for j in range(3): a(f"v_add_f32 v{VA[j]}, v{VA[j]}, v{VA[j+3]}")
    for j in range(3): a(f"v_mul_f32 v{4+j}, s24, v{VA[j]}")
    a(f"ds_write_b96 v8, v[4:6] offset:{LDS_O}")
    a.waitl(); a("s_barrier")
    RS = lambda w: S(40 + w)
    for w in range(8): a(f"ds_read_b96 {x3(RS(w))}, v10 offset:{LDS_O+1024*w}", tag=("or", w))
    for w in range(1, 8):
        a.waitl(("or", w))
        for j in range(3): a(f"v_add_f32 v{RS(0)+j}, v{RS(0)+j}, v{RS(w)+j}")
    a(f"v_cvt_pk_bf16_f32 v4, v{RS(0)}, v{RS(0)+1}"); a(f"v_cvt_pk_bf16_f32 v5, v{RS(0)+2}, v{RS(0)+2}")
    a(f"ds_write_b16 v9, v4 offset:{LDS_OB}"); a(f"ds_write_b16_d16_hi v9, v4 offset:{LDS_OB+2}"); a(f"ds_write_b16 v9, v5 offset:{LDS_OB+4}")
    a.waitl()
    OP = [S(48 + i) for i in range(4)]
    for i in range(4): a(f"ds_read_b128 {x4(OP[i])}, v29 offset:{LDS_OB+16*i}", tag=("ob", i))
    for k in range(16):
        a.waitl(("ob", k // 4))
        for j in range(8): a(f"v_dot2c_f32_bf16 v{ACC[j]}, v{WP[k][j]}, v{OP[k//4]+k%4}")
    for j in range(4): a(f"v_permlane32_swap_b32 v{ACC[j]}, v{ACC[j+4]}")
    for j in range(4): a(f"v_add_f32 v{ACC[j]}, v{ACC[j]}, v{ACC[j+4]}")
    for j in range(4): a(f"v_add_f32_dpp v{4+j}, v{ACC[j]}, v{ACC[j]} row_shl:5 row_mask:0xf bank_mask:0xf")
    for j in range(4): a(f"v_add_f32_dpp v{4+j}, v{ACC[j]}, v{4+j} row_shl:10 row_mask:0xf bank_mask:0xf")
    for j in range(4): a(f"v_min_u32 v{4+j}, -2, v{4+j}")
    a("s_mov_b32 exec_lo, 0x001f001f"); a("s_mov_b32 exec_hi, 0x001f001f")
    a(f"buffer_store_dwordx4 v[4:7], v31, {srd(P)}, 0 offen sc1")
    a("s_mov_b64 exec, -1")
    stamp()
    a("s_cmp_lg_u32 s3, 0"); a("s_cbranch_scc1 L_fin")
    a("s_cmp_ge_u32 s2, 160"); a("s_cbranch_scc1 L_fin")
    a.label("L_poll")
    for i in range(4):
        a(f"buffer_load_dwordx4 {x4(32+4*i)}, v20, {srd(RP)}, {['0','s25','s26','s27'][i]} offen sc1")
    a.waitv_all()
    a("v_max3_u32 v4, v32, v33, v34")
    for i in range(35, 47, 2): a(f"v_max3_u32 v4, v4, v{i}, v{i+1}")
    a("v_max_u32 v4, v4, v47")
    a("v_cmp_eq_u32 vcc, -1, v4")
    a("s_sub_u32 s28, s28, 1"); a("s_cbranch_scc1 L_red")
    a("s_cbranch_vccnz L_poll")
    a.label("L_red")
    for j in range(4):
        a(f"v_add_f32 v{32+j}, v{32+j}, v{36+j}"); a(f"v_add_f32 v{40+j}, v{40+j}, v{44+j}")
    for j in range(4): a(f"v_add_f32 v{32+j}, v{32+j}, v{40+j}")
    a("v_permlane32_swap_b32 v32, v34"); a("v_permlane32_swap_b32 v33, v35")
    a("v_add_f32 v32, v32, v34"); a("v_add_f32 v33, v33, v35")
    a("v_permlane16_swap_b32 v32, v33"); a("v_add_f32 v32, v32, v33")
    a("v_add_f32_dpp v32, v32, v32 row_ror:8 row_mask:0xf bank_mask:0xf")
    a("v_add_f32_dpp v32, v32, v32 row_ror:4 row_mask:0xf bank_mask:0xf")
    a("v_cvt_pk_bf16_f32 v32, v32, v32")
    a("s_mov_b32 exec_lo, 0x000f000f"); a("s_mov_b32 exec_hi, 0x000f000f")
    a(f"buffer_store_short v32, v21, {srd(OUT)}, 0 offen")
    a("s_mov_b64 exec, -1")
    if stamps:
        a.waitv_all()
        a("s_memrealtime s[14:15]"); a.waitl(); a(f"v_writelane_b32 v3, s14, {nst[0]}")
    a.label("L_fin")
    if stamps:
        a("s_lshl_b32 s13, s2, 3"); a("s_add_u32 s13, s13, s3"); a("s_lshl_b32 s13, s13, 5"); a(f"s_add_u32 s13, s13, {STOFF}")
        mk(RP, 38, "s13"); a(f"s_mov_b32 s{RP+2}, 32"); a(f"s_mov_b32 s{RP+3}, 0x20000")
        a("v_lshlrev_b32 v1, 2, v0")
        a(f"buffer_store_dword v3, v1, {srd(RP)}, 0 offen")
        if stamps > 1:
            a("s_mov_b64 exec, 0x7f")
            a(f"buffer_atomic_umax v3, v1, {srd(DBG)}, 0 offen offset:4 sc1")
            a("v_cmp_ne_u32 vcc, 0, v3"); a("s_and_b64 exec, exec, vcc"); a("s_cbranch_execz L_end")
            a("v_not_b32 v4, v3")
            a(f"buffer_atomic_umax v4, v1, {srd(DBG)}, 0 offen offset:32 sc1")
    a.label("L_end")
    a("s_endpgm")
    if proto:
        a.vm = []; a.lg = []; a.pend = {}
        a.label("L_flag_slow")
        a(f"s_mov_b32 s28, {spin}")
        a.label("L_flag_loop")
        a("s_sleep 8")
        a(f"buffer_load_dword v28, off, {srd(DBG)}, 0 sc1"); a.waitv_all()
        a("v_readfirstlane_b32 s13, v28")
        a("s_sub_u32 s28, s28, 1"); a("s_cbranch_scc1 L_flag_ok")
        a("s_cmp_ge_u32 s13, 256"); a("s_cbranch_scc0 L_flag_loop")
        a("s_branch L_flag_ok")
        a.label("L_ml_slow")
        a(f"s_mov_b32 s28, {spin}")
        a.label("L_ml_loop")
        a("s_sleep 8")
        a("v_lshlrev_b32 v8, 3, v0")
        a(f"buffer_load_dwordx2 v[8:9], v8, {srd(ML)}, 0 offen sc1"); a.waitv_all()
        a(f"v_max_u32 v{HR[12]}, v8, v9"); a(f"v_cmp_eq_u32 vcc, -1, v{HR[12]}")
        a("s_sub_u32 s28, s28, 1"); a("s_cbranch_scc1 L_ml_ok")
        a("s_cbranch_vccnz L_ml_loop")
        a("s_branch L_ml_ok")
    a.raw('.section .rodata,"a"'); a.raw(".p2align 6"); a.raw(f".amdhsa_kernel {KN}_kernel")
    for l in ["next_free_vgpr 256", "next_free_sgpr 102", "accum_offset 256", "group_segment_fixed_size 0", "kernarg_size 96", "user_sgpr_count 2",
              "user_sgpr_kernarg_segment_ptr 1", "system_sgpr_workgroup_id_x 1"]: a.raw("  .amdhsa_" + l)
    a.raw(".end_amdhsa_kernel")
    sys.stderr.write(f"slots {a.n} nops {a.nops} maxv {a.maxv} tf1 {tf1} tf2 {tf2}\n")
    return a.text()

if __name__ == "__main__":
    out = sys.argv[1]
    kw = {}
    for kv in sys.argv[2:]:
        k, v = kv.split("=")
        kw[k] = int(v) if v.lstrip("-").isdigit() else v.replace("+", " ")
    open(out, "w").write(gen(**kw))
```

```python
import sys, struct
from asmlib import Asm
KN = "gated_mix__gqa_block_cached__dense_activation_silu__decode"
def f2u(f): return struct.unpack("<I", struct.pack("<f", f))[0]
LOG2E = f2u(1.4426950408889634)
SCALE = f2u(192 ** -0.5)
MLOFF = 1 << 20
STOFF = 2 << 20
LDS_Q, LDS_O, LDS_F, LDS_P, LDS_OB, LDS_H = 0, 8192, 16384, 17408, 21504, 25600
LDS_SIZE = 26112

def gen(D=16, NP=48, WR=8, k0=2, pbar=2, bar=16, shr=3, stamps=0, kflags="nt", vflags="nt", wflags="nt", vsw=0, ksw=128, spin=200000,
        f1st=40, f1step=2, wost=60, wostep=4, mlld=30, mlpr=50, proto=1, npair=20, touch=0, xmap=0):
    a = Asm()
    hdr = open("cdna_kernels/" + KN + ".s.ref").read().split("; Override launch")[0]
    a.raw(hdr.rstrip())
    a.raw(f"; @launch grid=(256,1,1) block=(512,1,1) lds={LDS_SIZE}")
    a.raw('.amdgcn_target "amdgcn-amd-amdhsa--gfx950"')
    a.raw(".text"); a.raw(f".globl {KN}_kernel"); a.raw(".p2align 8"); a.raw(f".type {KN}_kernel,@function"); a.raw(f"{KN}_kernel:")
    K, V, WQ, WO, W1, W2, XQ, XF, GW, P, ML, DBG, RP, OUT = [40 + 4 * i for i in range(14)]
    def srd(n): return f"s[{n}:{n+3}]"
    SLO, SHI, MB1, MB0 = 96, 97, 98, 100
    S = lambda s: 32 + 4 * s
    H = lambda s: 32 + 4 * s + 3
    def x2(r): return f"v[{r}:{r+1}]"
    def x3(r): return f"v[{r}:{r+2}]"
    def x4(r): return f"v[{r}:{r+3}]"
    HR = [H(56 - 16 + i) for i in range(16)]
    nst = [0]
    def stamp():
        if not stamps: return
        a("s_memrealtime s[14:15]"); a.waitl()
        a(f"v_writelane_b32 v3, s14, {nst[0]}")
        nst[0] += 1

    a("s_cmp_ge_u32 s2, 256"); a("s_cbranch_scc1 L_end")
    a("s_load_dwordx16 s[16:31], s[0:1], 0")
    a("s_load_dwordx8 s[32:39], s[0:1], 64")
    a("v_lshrrev_b32 v1, 6, v0")
    a("v_lshlrev_b32 v11, 8, v0")
    a("v_readfirstlane_b32 s3, v1")
    a("v_and_b32 v0, 63, v0")
    a("s_and_b32 s8, s2, 7"); a("s_lshr_b32 s9, s2, 3"); a("s_and_b32 s10, s9, 7")
    a("s_lshr_b32 s4, s10, 1"); a("s_and_b32 s6, s10, 1")
    a("s_andn2_b32 s5, s9, 7"); a("s_add_u32 s5, s5, s8")
    a("s_lshl_b32 s7, s5, 1"); a("s_add_u32 s7, s7, s6")
    a("s_lshl_b32 s11, s4, 6"); a("s_add_u32 s11, s11, s7")
    a("s_mul_i32 s12, s11, 786432"); a("s_mul_i32 s13, s3, 768"); a("s_add_u32 s12, s12, s13")
    a("v_mul_u32_u24 v1, 12, v0")
    a("v_lshrrev_b32 v6, 5, v0")
    a("v_and_b32 v7, 31, v0")
    a("v_mul_u32_u24 v7, 12, v7")
    a(f"v_mul_u32_u24 v2, {40*12288}, v6"); a("v_add_u32 v2, v2, v7")
    a("v_mul_u32_u24 v10, 80, v6")
    for n in (K, WQ, XQ): a(f"s_mov_b32 s{n+3}, 0x20000")
    a(f"s_mov_b32 s{K+2}, {786432-7*768}")
    a(f"s_mov_b32 s{WQ+2}, {79*12288+384}")
    a(f"s_mov_b32 s{XQ+2}, 160")
    a("s_lshl_b32 s7, s8, 3"); a("s_lshr_b32 s9, s9, 3"); a("s_lshl_b32 s9, s9, 1"); a("s_add_u32 s7, s7, s9"); a("s_add_u32 s7, s7, s6")
    a("s_mul_i32 s8, s3, 160")
    a("s_mul_i32 s9, s4, 1280")
    a(f"s_mul_i32 s13, s3, {80*12288}"); a("s_mul_i32 s10, s5, 384"); a("s_add_u32 s13, s13, s10")
    a("s_add_u32 s10, s9, s8")
    if stamps: a("v_mov_b32 v3, 0")
    a.waitl()
    stamp()
    def mk(n, ptr, off):
        a(f"s_add_u32 s{n}, s{ptr}, {off}"); a(f"s_addc_u32 s{n+1}, s{ptr+1}, 0")
    mk(K, 18, "s12")
    free = []; slot = {}
    init = list(range(56 - D, 56)) + list(range(55 - D, WR - 1, -1))
    assert NP <= len(init)
    kn = [0]
    def kvf(t):
        fl = (kflags if t < ksw else "nt") if t < 128 else (vflags if t - 128 >= vsw else "nt")
        return "" if fl == "-" else fl
    if wflags == "-": wflags = ""
    def kload(sl):
        t = kn[0]
        if t >= 256: return
        kn[0] += 1; slot[t] = sl
        a(f"s_mov_b32 s18, {(t%128)*6144}")
        a(f"buffer_load_dwordx3 {x3(S(sl))}, v1, {srd(K if t < 128 else V)}, s18 offen {kvf(t)}", tag=("kv", t))
    def wqload(i):
        a(f"s_mov_b32 s19, {i*12288}")
        a(f"buffer_load_dwordx3 {x3(S(i%WR))}, v2, {srd(WQ)}, s19 offen {wflags}", tag=("wq", i))
    for t in range(k0): kload(init[kn[0]])
    mk(XQ, 16, "s10"); mk(WQ, 22, "s13")
    for i in range(5): a(f"buffer_load_dwordx4 {x4(12+4*i)}, v10, {srd(XQ)}, 0 offen offset:{16*i} {wflags}", tag=("xq", i))
    def kfill(p):
        tgt = k0 + (NP - k0) * (p + 1) // npair
        while kn[0] < tgt: kload(init[kn[0]])
    def setup2():
        a(f"s_mov_b32 s{SLO}, 0x05040100"); a(f"s_mov_b32 s{SHI}, 0x07060302")
        a(f"s_mov_b32 s{MB1}, 0xcccccccc"); a(f"s_mov_b32 s{MB1+1}, 0xcccccccc")
        a(f"s_mov_b32 s{MB0}, 0xaaaaaaaa"); a(f"s_mov_b32 s{MB0+1}, 0xaaaaaaaa")
        for n in (V, WO, W1, W2, XF, GW, P, ML, DBG): a(f"s_mov_b32 s{n+3}, 0x20000")
        a(f"s_mov_b32 s{V+2}, {786432-7*768}")
        a(f"s_mov_b32 s{WO+2}, {191*1280+160}")
        a("s_mul_i32 s13, s7, 48"); a(f"s_sub_u32 s{W1+2}, {640*3072}, s13"); mk(W1, 28, "s13")
        a(f"s_mov_b32 s{W2+2}, {23*1280+160}")
        a(f"s_mov_b32 s{XF+2}, 1280"); a(f"s_mov_b32 s{GW+2}, 1280")
        a(f"s_mov_b32 s{P+2}, 320"); a(f"s_mov_b32 s{ML+2}, 128"); a(f"s_mov_b32 s{DBG+2}, 256")
        mk(XF, 16, "s9"); mk(GW, 32, "0"); mk(V, 20, "s12")
        a(f"s_mul_i32 s13, s5, {192*1280}"); a("s_add_u32 s13, s13, s8"); mk(WO, 24, "s13")
        a(f"s_mul_i32 s13, s7, {24*1280}"); a("s_add_u32 s13, s13, s8"); mk(W2, 30, "s13")
        a("s_mul_i32 s13, s11, 2560"); a("s_lshl_b32 s14, s8, 1"); a("s_add_u32 s13, s13, s14"); mk(P, 38, "s13")
        a("s_lshr_b32 s13, s11, 1"); a("s_lshl_b32 s13, s13, 7"); a(f"s_add_u32 s13, s13, {MLOFF}"); mk(ML, 38, "s13")
        mk(DBG, 36, "0")
        for i in range(6, 10): a(f"v_mov_b32 v{i}, -1")
        a("v_lshlrev_b32 v10, 4, v0")
        a("s_lshl_b32 s13, s6, 3"); a("s_add_u32 s13, s13, s3"); a("s_lshl_b32 s13, s13, 3")
        a("v_lshlrev_b32 v5, 7, v0"); a("v_add_u32 v5, s13, v5")
        if touch:
            a("v_mov_b32 v4, 0"); a(f"v_mov_b32 v{HR[15]}, {786432-8*768}")
            a("s_mov_b64 exec, 1")
            a(f"buffer_load_dword v{HR[14]}, v4, {srd(V)}, 0 offen nt"); a.pend.pop(HR[14])
            a(f"buffer_load_dword v{HR[14]}, v{HR[15]}, {srd(V)}, 0 offen nt"); a.pend.pop(HR[14])
            a(f"buffer_load_dword v{HR[14]}, v{HR[15]}, {srd(K)}, 0 offen nt"); a.pend.pop(HR[14])
            if touch > 1:
                a(f"buffer_load_dword v{HR[14]}, v4, {srd(WO)}, 0 offen"); a.pend.pop(HR[14])
                a(f"buffer_load_dword v{HR[14]}, v4, {srd(W1)}, 0 offen"); a.pend.pop(HR[14])
                a(f"buffer_load_dword v{HR[14]}, v4, {srd(W2)}, 0 offen"); a.pend.pop(HR[14])
            a("s_mov_b64 exec, -1")
        if proto:
            a(f"buffer_store_dwordx4 v[6:9], v10, {srd(P)}, 0 offen sc1", tag="clr0")
            a(f"buffer_store_dwordx2 v[6:7], v5, {srd(ML)}, 0 offen sc1", tag="clr1")
    for p in range(min(npair, WR // 2)):
        wqload(2 * p); wqload(2 * p + 1); kfill(p)
        if p == 0: setup2()
        if pbar and p % pbar == pbar - 1: a("s_barrier")
    T = HR[0:6]; QA = [6, 7, 8, 9, HR[6], HR[7]]
    for j in range(6): a(f"v_mov_b32 v{QA[j]}, 0")
    stamp()
    for k in range(npair):
        a.waitv(("wq", 2 * k + 1))
        A_, B_ = S((2 * k) % WR), S((2 * k + 1) % WR)
        for d in range(3):
            a(f"v_perm_b32 v{T[2*d]}, v{B_+d}, v{A_+d}, s{SLO}"); a(f"v_perm_b32 v{T[2*d+1]}, v{B_+d}, v{A_+d}, s{SHI}")
        pn = k + WR // 2
        if pn < npair:
            wqload(2 * pn); wqload(2 * pn + 1); kfill(pn)
        for j in range(6): a(f"v_dot2c_f32_bf16 v{QA[j]}, v{T[j]}, v{12+k}")
        if pbar and pn < npair and pn % pbar == pbar - 1: a("s_barrier")
    for j in range(3): a(f"v_permlane32_swap_b32 v{QA[j]}, v{QA[j+3]}")
    for j in range(3): a(f"v_add_f32 v{QA[j]}, v{QA[j]}, v{QA[j+3]}")
    a("s_lshl_b32 s13, s3, 10"); a(f"v_add_u32 v{T[0]}, s13, v10")
    a(f"ds_write_b128 v{T[0]}, v[6:9] offset:{LDS_Q}")
    if proto: a.waitv("clr1")
    a.waitl()
    a("s_barrier")
    for w in range(8): a(f"ds_read_b96 {x3(S(w))}, v10 offset:{LDS_Q+1024*w}", tag=("qr", w))
    if proto:
        a("v_mov_b32 v12, 1")
        a(f"buffer_atomic_add v12, v11, {srd(DBG)}, 0 offen sc1", tag="flag")
    a("v_and_b32 v13, 15, v0"); a("v_mul_u32_u24 v14, 52, v13"); a("v_lshrrev_b32 v14, 8, v14")
    a("v_mul_u32_u24 v15, 5, v14"); a("v_sub_u32 v13, v13, v15")
    a("v_bfe_u32 v15, v0, 4, 1"); a("v_mad_u32_u24 v13, v15, 5, v13")
    a("v_lshrrev_b32 v15, 5, v0"); a("v_mad_u32_u24 v16, v15, 3, v14")
    a("v_cmp_eq_u32 vcc, 3, v14"); a("v_cndmask_b32_e64 v16, v16, 6, vcc")
    a("v_lshlrev_b32 v17, 4, v13")
    a(f"v_mul_u32_u24 v2, {32*1280}, v16"); a("v_add_u32 v2, v2, v17")
    a(f"v_mul_u32_u24 v11, {4*1280}, v16"); a("v_add_u32 v11, v11, v17")
    a("v_lshlrev_b32 v17, 1, v17"); a("v_lshl_add_u32 v31, v15, 4, v17")
    a("v_mov_b32 v30, v16")
    for w in range(1, 8):
        a.waitl(("qr", w))
        for j in range(3): a(f"v_add_f32 v{S(0)+j}, v{S(0)+j}, v{S(w)+j}")
    for j in range(3): a(f"v_mov_b32 v{S(1)+j}, v{S(0)+j}")
    for j in range(3): a(f"v_permlane32_swap_b32 v{S(0)+j}, v{S(1)+j}")
    Q = [20, 21, 22]
    a(f"v_cvt_pk_bf16_f32 v20, v{S(0)}, v{S(0)+1}")
    a(f"v_cvt_pk_bf16_f32 v21, v{S(0)+2}, v{S(1)}")
    a(f"v_cvt_pk_bf16_f32 v22, v{S(1)+1}, v{S(1)+2}")
    stamp()
    ACC = list(range(12, 20)); SC = [24, 25, 26, 27]
    X = HR[0:4]; Y = HR[4:6]; Z = HR[6:8]; W_ = HR[8:10]; U = HR[10:12]
    hooks = {t: [] for t in range(256)}
    FS = list(range(0, 8))
    def f1addr():
        a("v_lshrrev_b32 v6, 2, v0"); a("v_mul_u32_u24 v6, 6, v6")
        a("s_mul_i32 s13, s3, 96"); a("v_add_u32 v6, s13, v6")
        a("v_lshlrev_b32 v7, 1, v6")
        a("v_mul_u32_u24 v6, 3072, v6"); a("v_and_b32 v8, 3, v0"); a("v_mad_u32_u24 v6, v8, 12, v6")
        a(f"buffer_load_dwordx3 {x3(S(FS[6]))}, v7, {srd(XF)}, 0 offen {wflags}", tag="xf")
        a(f"buffer_load_dwordx3 {x3(S(FS[7]))}, v7, {srd(GW)}, 0 offen {wflags}", tag="gw")
    hooks[f1st].append(f1addr)
    def w1load(i):
        def f():
            a(f"s_mov_b32 s19, {i*3072}")
            a(f"buffer_load_dwordx3 {x3(S(FS[i]))}, v6, {srd(W1)}, s19 offen {wflags}", tag=("w1", i))
        return f
    for i in range(6): hooks[f1st + 1 + f1step * i].append(w1load(i))
    tf1 = f1st + 1 + f1step * 5 + D + 2
    def ffn1():
        a.waitv(("w1", 5))
        F = [H(FS[i]) for i in range(8)]
        T = [4, 6, 7, 8, 9, 29]
        for k in range(3):
            for d in range(3):
                A_, B_ = S(FS[2 * k]) + d, S(FS[2 * k + 1]) + d
                a(f"v_perm_b32 v{T[2*d]}, v{B_}, v{A_}, s{SLO}"); a(f"v_perm_b32 v{T[2*d+1]}, v{B_}, v{A_}, s{SHI}")
            for j in range(6):
                a(f"v_dot2_f32_bf16 v{F[j]}, v{T[j]}, v{S(FS[6])+k}, {'0' if k == 0 else 'v%d' % F[j]}")
        a("s_mov_b32 s13, 0x3f803f80"); a("s_mov_b32 s14, 0xffff0000")
        for k in range(3):
            xr, gr = S(FS[6]) + k, S(FS[7]) + k
            a(f"v_lshlrev_b32 v{T[0]}, 16, v{xr}"); a(f"v_and_b32 v{T[1]}, s14, v{xr}")
            a(f"v_lshlrev_b32 v{T[2]}, 16, v{gr}"); a(f"v_and_b32 v{T[3]}, s14, v{gr}")
            a(f"v_mul_f32 v{T[0]}, v{T[0]}, v{T[2]}"); a(f"v_mul_f32 v{T[1]}, v{T[1]}, v{T[3]}")
            a(f"v_cvt_pk_bf16_f32 v{T[4]}, v{T[0]}, v{T[1]}")
            a(f"v_dot2_f32_bf16 v{F[6]}, v{T[4]}, s13, {'0' if k == 0 else 'v%d' % F[6]}")
        a(f"v_mov_b32 v{F[7]}, 0")
        for j in range(4): a(f"v_permlane32_swap_b32 v{F[j]}, v{F[j+4]}")
        for j in range(4): a(f"v_add_f32 v{T[j]}, v{F[j]}, v{F[j+4]}")
        for j in range(2): a(f"v_permlane16_swap_b32 v{T[j]}, v{T[j+2]}")
        for j in range(2): a(f"v_add_f32 v{T[j]}, v{T[j]}, v{T[j+2]}")
        a(f"v_lshrrev_b32 v{T[2]}, 3, v0"); a(f"v_lshlrev_b32 v{T[2]}, 4, v{T[2]}")
        a(f"v_add_f32_dpp v{T[0]}, v{T[0]}, v{T[0]} row_ror:8 row_mask:0xf bank_mask:0x3")
        a(f"v_and_b32 v{T[3]}, 3, v0"); a(f"v_lshl_add_u32 v{T[2]}, v{T[3]}, 2, v{T[2]}")
        a(f"v_add_f32_dpp v{T[0]}, v{T[1]}, v{T[1]} row_ror:8 row_mask:0xf bank_mask:0xc")
        a("s_lshl_b32 s13, s3, 7"); a(f"v_add_u32 v{T[2]}, s13, v{T[2]}")
        a(f"v_add_f32_dpp v{T[1]}, v{T[0]}, v{T[0]} row_shl:4 row_mask:0xf bank_mask:0x5")
        a(f"v_add_f32_dpp v{T[1]}, v{T[0]}, v{T[0]} row_shr:4 row_mask:0xf bank_mask:0xa")
        a(f"ds_write_b32 v{T[2]}, v{T[1]} offset:{LDS_F}")
        a.waitl()
    hooks[tf1].append(ffn1)
    def w2load(i):
        def f(): a(f"buffer_load_dwordx4 {x4(S(FS[i]))}, v11, {srd(W2)}, 0 offen offset:{1280*i} {wflags}", tag=("w2", i))
        return f
    for i in range(4): hooks[tf1 + 1 + 2 * i].append(w2load(i))
    tf2 = tf1 + 8 + D + 2
    assert bar and (tf2 // bar) > (tf1 // bar) and tf2 < 127, (tf1, tf2)
    def ffn2():
        a.waitv(("w2", 3))
        a("v_and_b32 v4, 31, v0"); a("v_lshlrev_b32 v4, 2, v4")
        for w in range(8): a(f"ds_read_b32 v{ACC[w]}, v4 offset:{LDS_F+128*w}")
        a("v_and_b32 v6, 3, v0"); a("v_mul_u32_u24 v6, 12, v6"); a("v_bfe_u32 v7, v0, 2, 3"); a("v_lshl_add_u32 v6, v7, 1, v6")
        a("v_cmp_lt_u32 vcc, 5, v7"); a("v_cndmask_b32_e64 v6, v6, 56, vcc")
        a("s_lshl_b32 s13, s3, 6"); a("v_add_u32 v6, s13, v6")
        a("v_lshl_add_u32 v4, v30, 3, s13")
        a.waitl()
        for w in range(1, 8): a(f"v_add_f32 v{ACC[0]}, v{ACC[0]}, v{ACC[w]}")
        a(f"v_cvt_pk_bf16_f32 v7, v{ACC[0]}, v{ACC[0]}"); a("v_lshlrev_b32 v7, 16, v7")
        a(f"v_mul_f32 v8, {LOG2E ^ 0x80000000:#x}, v7"); a("v_exp_f32 v8, v8"); a("v_add_f32 v8, 1.0, v8"); a("v_rcp_f32 v8, v8")
        a("v_mul_f32 v9, v7, v8"); a("v_cvt_pk_bf16_f32 v9, v9, v9")
        a(f"ds_write_b16 v6, v9 offset:{LDS_H}")
        a("v_cvt_pk_bf16_f32 v8, v8, v8"); a("v_lshlrev_b32 v8, 16, v8")
        a("v_sub_f32 v29, 1.0, v8"); a("v_cvt_pk_bf16_f32 v29, v29, v29"); a("v_lshlrev_b32 v29, 16, v29")
        a("v_readlane_b32 s22, v8, 24"); a("v_readlane_b32 s23, v29, 24")
        a.waitl()
        a(f"ds_read_b64 v[6:7], v4 offset:{LDS_H}")
        a.waitl()
        for k in range(2):
            for d in range(4):
                A_, B_ = S(FS[2 * k]) + d, S(FS[2 * k + 1]) + d
                a(f"v_perm_b32 v8, v{B_}, v{A_}, s{SLO}"); a(f"v_perm_b32 v9, v{B_}, v{A_}, s{SHI}")
                a(f"v_dot2_f32_bf16 v{ACC[2*d]}, v8, v{6+k}, {'0' if k == 0 else 'v%d' % ACC[2*d]}")
                a(f"v_dot2_f32_bf16 v{ACC[2*d+1]}, v9, v{6+k}, {'0' if k == 0 else 'v%d' % ACC[2*d+1]}")
        for j in range(8): a(f"v_mul_f32 v{ACC[j]}, s23, v{ACC[j]}")
    hooks[tf2].append(ffn2)
    WS = list(range(8, 40))
    assert wost >= NP
    WP = [[None] * 8 for _ in range(16)]
    spare = [23]
    def woload(i):
        def f():
            a(f"s_mov_b32 s19, {i*1280}")
            a(f"buffer_load_dwordx4 {x4(S(WS[i]))}, v2, {srd(WO)}, s19 offen {wflags}", tag=("wo", i))
        return f
    def woperm(k):
        def f():
            a.waitv(("wo", 2 * k + 1))
            for d in range(4):
                A_, B_ = S(WS[2 * k]) + d, S(WS[2 * k + 1]) + d
                s = spare[0]
                a(f"v_perm_b32 v{s}, v{B_}, v{A_}, s{SLO}"); a(f"v_perm_b32 v{B_}, v{B_}, v{A_}, s{SHI}")
                WP[k][2 * d] = s; WP[k][2 * d + 1] = B_; spare[0] = A_
        return f
    for i in range(32): hooks[wost + wostep * i].append(woload(i))
    for k in range(16): hooks[min(255, wost + wostep * (2 * k + 1) + D + 3)].append(woperm(k))
    if proto: hooks[100].append(lambda: a(f"buffer_load_dword v28, off, {srd(DBG)}, 0 sc1", tag="flagld"))
    def release(t):
        if slot[t] >= 56 - D: free.append(slot[t])
        if free and (kn[0] - t - 1 < D or t % shr == shr - 1): kload(free.pop(0))
    def lvl(s_, t):
        if s_ % 2 == 1:
            x, y = X[(s_ - 1) % 4], X[s_ % 4]
            a(f"v_permlane16_swap_b32 v{x}, v{y}"); a(f"v_add_f32 v{Y[(s_>>1)&1]}, v{x}, v{y}")
        if s_ % 4 == 3:
            z = Z[(s_ >> 2) & 1]
            a(f"v_add_f32_dpp v{z}, v{Y[0]}, v{Y[0]} row_ror:8 row_mask:0xf bank_mask:0x3")
            a(f"v_add_f32_dpp v{z}, v{Y[1]}, v{Y[1]} row_ror:8 row_mask:0xf bank_mask:0xc")
        if s_ % 8 == 7:
            w = W_[(s_ >> 3) & 1]
            a(f"v_add_f32_dpp v{w}, v{Z[0]}, v{Z[0]} row_shl:4 row_mask:0xf bank_mask:0x5")
            a(f"v_add_f32_dpp v{w}, v{Z[1]}, v{Z[1]} row_shr:4 row_mask:0xf bank_mask:0xa")
            a(f"v_add_f32_dpp v{w}, v{w}, v{w} quad_perm:[2,3,0,1] row_mask:0xf bank_mask:0xf")
        if s_ % 16 == 15:
            u = U[(s_ >> 4) & 1]
            a(f"v_cndmask_b32_e64 v{u}, v{W_[0]}, v{W_[1]}, s[{MB1}:{MB1+1}]")
            a(f"v_add_f32_dpp v{u}, v{u}, v{u} quad_perm:[1,0,3,2] row_mask:0xf bank_mask:0xf")
        if s_ == 31:
            a(f"v_cndmask_b32_e64 v{SC[t//32]}, v{U[0]}, v{U[1]}, s[{MB0}:{MB0+1}]")
    for t in range(128):
        r = S(slot[t]); hreg = X[t % 4]
        a.waitv(("kv", t))
        a(f"v_dot2_f32_bf16 v{hreg}, v{r}, v{Q[0]}, 0")
        a(f"v_dot2_f32_bf16 v{hreg}, v{r+1}, v{Q[1]}, v{hreg}")
        a(f"v_dot2_f32_bf16 v{hreg}, v{r+2}, v{Q[2]}, v{hreg}")
        release(t)
        if t > 0: lvl((t - 1) % 32, t - 1)
        if t == 127: lvl(31, t)
        for f in hooks[t]: f()
        if bar and t % bar == bar - 1: a("s_barrier")
    stamp()
    a("s_mov_b32 s14, 0xffff0000")
    for j in (0, 2):
        a(f"v_cvt_pk_bf16_f32 v6, v{SC[j]}, v{SC[j+1]}")
        a(f"v_lshlrev_b32 v{SC[j]}, 16, v6"); a(f"v_and_b32 v{SC[j+1]}, s14, v6")
        a(f"v_mul_f32 v{SC[j]}, {SCALE:#x}, v{SC[j]}"); a(f"v_mul_f32 v{SC[j+1]}, {SCALE:#x}, v{SC[j+1]}")
        a(f"v_cvt_pk_bf16_f32 v6, v{SC[j]}, v{SC[j+1]}")
        a(f"v_lshlrev_b32 v{SC[j]}, 16, v6"); a(f"v_and_b32 v{SC[j+1]}, s14, v6")
    def wave_red(op, r, sdst):
        for m in ("quad_perm:[1,0,3,2] row_mask:0xf", "quad_perm:[2,3,0,1] row_mask:0xf", "row_half_mirror row_mask:0xf", "row_mirror row_mask:0xf",
                  "row_bcast:15 row_mask:0xa", "row_bcast:31 row_mask:0xc"):
            a(f"{op}_dpp v{r}, v{r}, v{r} {m} bank_mask:0xf")
        a(f"v_readlane_b32 s{sdst}, v{r}, 63")
    a(f"v_max3_f32 v6, v{SC[0]}, v{SC[1]}, v{SC[2]}"); a(f"v_max_f32 v6, v6, v{SC[3]}")
    wave_red("v_max_f32", 6, 20)
    a(f"v_mov_b32 v7, {LOG2E:#x}")
    a("v_mul_f32 v6, s20, v7")
    for j in range(4): a(f"v_fma_f32 v{SC[j]}, v{SC[j]}, v7, -v6")
    for j in range(4): a(f"v_exp_f32 v{SC[j]}, v{SC[j]}")
    a("v_bfrev_b32 v4, v0"); a("v_lshrrev_b32 v4, 27, v4"); a("v_lshlrev_b32 v4, 1, v4")
    a("v_lshrrev_b32 v11, 5, v0"); a("v_lshlrev_b32 v11, 8, v11"); a("s_lshl_b32 s13, s3, 9"); a("v_add_u32 v11, s13, v11")
    a("v_add_u32 v4, v4, v11")
    a(f"v_cvt_pk_bf16_f32 v8, v{SC[0]}, v{SC[1]}"); a(f"v_cvt_pk_bf16_f32 v9, v{SC[2]}, v{SC[3]}")
    a(f"ds_write_b16 v4, v8 offset:{LDS_P}"); a(f"ds_write_b16_d16_hi v4, v8 offset:{LDS_P+64}")
    a(f"ds_write_b16 v4, v9 offset:{LDS_P+128}"); a(f"ds_write_b16_d16_hi v4, v9 offset:{LDS_P+192}")
    a(f"v_add_f32 v6, v{SC[0]}, v{SC[1]}"); a(f"v_add_f32 v7, v{SC[2]}, v{SC[3]}"); a("v_add_f32 v6, v6, v7")
    wave_red("v_add_f32", 6, 21)
    a("v_mov_b32 v20, s20"); a("v_mov_b32 v21, s21")
    a(f"buffer_store_dwordx2 v[20:21], v5, {srd(ML)}, 0 offen sc1", tag="mlst")
    if proto:
        a.waitv("flagld")
        a("v_readfirstlane_b32 s13, v28")
        a("s_cmp_ge_u32 s13, 256"); a("s_cbranch_scc0 L_flag_slow")
        a.label("L_flag_ok")
    PB = [4, 24]
    VA = HR[6:12]; T = HR[0:6]; R_ = HR[12]
    a.waitl()
    a(f"ds_read_b128 {x4(PB[0])}, v11 offset:{LDS_P}", tag=("pb", 0))
    a(f"ds_read_b128 {x4(PB[1])}, v11 offset:{LDS_P+16}", tag=("pb", 1))
    for j in range(6): a(f"v_mov_b32 v{VA[j]}, 0")
    def mlload():
        a("v_lshlrev_b32 v8, 3, v0")
        a(f"buffer_load_dwordx2 v[8:9], v8, {srd(ML)}, 0 offen sc1", tag="ml")
    hooks[128 + 2 * mlld + 1].append(mlload)
    def mlproc():
        a.waitv("ml")
        r = R_
        if proto:
            a(f"v_max_u32 v{r}, v8, v9"); a(f"v_cmp_eq_u32 vcc, -1, v{r}")
            a("s_cbranch_vccnz L_ml_slow")
            a.label("L_ml_ok")
        a(f"v_mov_b32 v{r}, v8")
        for m in ("quad_perm:[1,0,3,2]", "quad_perm:[2,3,0,1]", "row_half_mirror", "row_mirror"):
            a(f"v_max_f32_dpp v{r}, v{r}, v{r} {m} row_mask:0xf bank_mask:0xf")
        a(f"v_sub_f32 v8, v8, v{r}"); a(f"v_mul_f32 v8, {LOG2E:#x}, v8"); a("v_exp_f32 v8, v8"); a("v_mul_f32 v8, v8, v9")
        for m in ("quad_perm:[1,0,3,2]", "quad_perm:[2,3,0,1]", "row_half_mirror", "row_mirror"):
            a(f"v_add_f32_dpp v8, v8, v8 {m} row_mask:0xf bank_mask:0xf")
        a(f"v_sub_f32 v{r}, s20, v{r}"); a(f"v_mul_f32 v{r}, {LOG2E:#x}, v{r}"); a(f"v_exp_f32 v{r}, v{r}")
        a("v_rcp_f32 v8, v8"); a(f"v_mul_f32 v{r}, v{r}, v8"); a(f"v_mul_f32 v{r}, s22, v{r}")
        a(f"v_readfirstlane_b32 s24, v{r}")
        a("s_lshl_b32 s13, s3, 10"); a("v_add_u32 v8, s13, v10")
        a("v_and_b32 v9, 31, v0"); a("v_lshlrev_b32 v9, 1, v9"); a(f"v_lshrrev_b32 v{r}, 5, v0"); a(f"v_add_u32 v9, v9, v{r}"); a("v_mul_u32_u24 v9, 6, v9")
        a("s_lshl_b32 s13, s3, 9"); a("v_add_u32 v9, s13, v9")
        a("v_lshl_add_u32 v29, v30, 6, s13")
        a("s_mul_i32 s8, s2, 1639"); a("s_lshr_b32 s8, s8, 16")
        a("s_mul_i32 s9, s8, 40"); a("s_sub_u32 s9, s2, s9")
        a(f"s_mul_i32 s13, s8, {64*2560}"); a("s_lshl_b32 s14, s9, 6"); a("s_add_u32 s13, s13, s14"); mk(RP, 38, "s13")
        a(f"s_mov_b32 s{RP+2}, {63*2560+64}"); a(f"s_mov_b32 s{RP+3}, 0x20000")
        a("s_mul_i32 s13, s8, 1280"); a("s_lshl_b32 s14, s9, 5"); a("s_add_u32 s13, s13, s14")
        mk(OUT, 34, "s13"); a(f"s_mov_b32 s{OUT+2}, 32"); a(f"s_mov_b32 s{OUT+3}, 0x20000")
        a("v_lshrrev_b32 v20, 2, v0"); a("v_mul_u32_u24 v20, 2560, v20"); a("v_and_b32 v21, 3, v0"); a("v_lshl_add_u32 v20, v21, 4, v20")
        a("v_lshrrev_b32 v22, 4, v0"); a("v_lshl_add_u32 v21, v21, 2, v22"); a("v_lshlrev_b32 v21, 1, v21")
        a("s_mov_b32 s25, 40960"); a("s_mov_b32 s26, 81920"); a("s_mov_b32 s27, 122880")
        a(f"s_mov_b32 s28, {spin}")
    hooks[128 + 2 * mlpr + 1].append(mlproc)
    for k in range(64):
        t = 128 + 2 * k
        a.waitv(("kv", t + 1))
        A_, B_ = S(slot[t]), S(slot[t + 1])
        for d in range(3):
            a(f"v_perm_b32 v{T[2*d]}, v{B_+d}, v{A_+d}, s{SLO}"); a(f"v_perm_b32 v{T[2*d+1]}, v{B_+d}, v{A_+d}, s{SHI}")
        release(t); release(t + 1)
        j4 = k // 4
        a.waitl(("pb", j4))
        pr = PB[j4 % 2] + k % 4
        for j in range(6): a(f"v_dot2c_f32_bf16 v{VA[j]}, v{T[j]}, v{pr}")
        if k % 4 == 3 and j4 + 2 < 16:
            a(f"ds_read_b128 {x4(PB[j4%2])}, v11 offset:{LDS_P+16*(j4+2)}", tag=("pb", j4 + 2))
        for f in hooks[t] + hooks[t + 1]: f()
        if bar and (t + 1) % bar == bar - 1 and t + 1 < 255 - D: a("s_barrier")
    stamp()
    for j in range(3): a(f"v_permlane32_swap_b32 v{VA[j]}, v{VA[j+3]}")
    for j in range(3): a(f"v_add_f32 v{VA[j]}, v{VA[j]}, v{VA[j+3]}")
    for j in range(3): a(f"v_mul_f32 v{4+j}, s24, v{VA[j]}")
    a(f"ds_write_b96 v8, v[4:6] offset:{LDS_O}")
    a.waitl(); a("s_barrier")
    RS = lambda w: S(40 + w)
    for w in range(8): a(f"ds_read_b96 {x3(RS(w))}, v10 offset:{LDS_O+1024*w}", tag=("or", w))
    for w in range(1, 8):
        a.waitl(("or", w))
        for j in range(3): a(f"v_add_f32 v{RS(0)+j}, v{RS(0)+j}, v{RS(w)+j}")
    a(f"v_cvt_pk_bf16_f32 v4, v{RS(0)}, v{RS(0)+1}"); a(f"v_cvt_pk_bf16_f32 v5, v{RS(0)+2}, v{RS(0)+2}")
    a(f"ds_write_b16 v9, v4 offset:{LDS_OB}"); a(f"ds_write_b16_d16_hi v9, v4 offset:{LDS_OB+2}"); a(f"ds_write_b16 v9, v5 offset:{LDS_OB+4}")
    a.waitl()
    OP = [S(48 + i) for i in range(4)]
    for i in range(4): a(f"ds_read_b128 {x4(OP[i])}, v29 offset:{LDS_OB+16*i}", tag=("ob", i))
    for k in range(16):
        a.waitl(("ob", k // 4))
        for j in range(8): a(f"v_dot2c_f32_bf16 v{ACC[j]}, v{WP[k][j]}, v{OP[k//4]+k%4}")
    for j in range(4): a(f"v_permlane32_swap_b32 v{ACC[j]}, v{ACC[j+4]}")
    for j in range(4): a(f"v_add_f32 v{ACC[j]}, v{ACC[j]}, v{ACC[j+4]}")
    for j in range(4): a(f"v_add_f32_dpp v{4+j}, v{ACC[j]}, v{ACC[j]} row_shl:5 row_mask:0xf bank_mask:0xf")
    for j in range(4): a(f"v_add_f32_dpp v{4+j}, v{ACC[j]}, v{4+j} row_shl:10 row_mask:0xf bank_mask:0xf")
    for j in range(4): a(f"v_min_u32 v{4+j}, -2, v{4+j}")
    a("s_mov_b32 exec_lo, 0x001f001f"); a("s_mov_b32 exec_hi, 0x001f001f")
    a(f"buffer_store_dwordx4 v[4:7], v31, {srd(P)}, 0 offen sc1")
    a("s_mov_b64 exec, -1")
    stamp()
    a("s_cmp_lg_u32 s3, 0"); a("s_cbranch_scc1 L_fin")
    a("s_cmp_ge_u32 s2, 160"); a("s_cbranch_scc1 L_fin")
    a.label("L_poll")
    for i in range(4):
        a(f"buffer_load_dwordx4 {x4(32+4*i)}, v20, {srd(RP)}, {['0','s25','s26','s27'][i]} offen sc1")
    a.waitv_all()
    a("v_max3_u32 v4, v32, v33, v34")
    for i in range(35, 47, 2): a(f"v_max3_u32 v4, v4, v{i}, v{i+1}")
    a("v_max_u32 v4, v4, v47")
    a("v_cmp_eq_u32 vcc, -1, v4")
    a("s_sub_u32 s28, s28, 1"); a("s_cbranch_scc1 L_red")
    a("s_cbranch_vccnz L_poll")
    a.label("L_red")
    for j in range(4):
        a(f"v_add_f32 v{32+j}, v{32+j}, v{36+j}"); a(f"v_add_f32 v{40+j}, v{40+j}, v{44+j}")
    for j in range(4): a(f"v_add_f32 v{32+j}, v{32+j}, v{40+j}")
    a("v_permlane32_swap_b32 v32, v34"); a("v_permlane32_swap_b32 v33, v35")
    a("v_add_f32 v32, v32, v34"); a("v_add_f32 v33, v33, v35")
    a("v_permlane16_swap_b32 v32, v33"); a("v_add_f32 v32, v32, v33")
    a("v_add_f32_dpp v32, v32, v32 row_ror:8 row_mask:0xf bank_mask:0xf")
    a("v_add_f32_dpp v32, v32, v32 row_ror:4 row_mask:0xf bank_mask:0xf")
    a("v_cvt_pk_bf16_f32 v32, v32, v32")
    a("s_mov_b32 exec_lo, 0x000f000f"); a("s_mov_b32 exec_hi, 0x000f000f")
    a(f"buffer_store_short v32, v21, {srd(OUT)}, 0 offen")
    a("s_mov_b64 exec, -1")
    if stamps:
        a.waitv_all()
        a("s_memrealtime s[14:15]"); a.waitl(); a(f"v_writelane_b32 v3, s14, {nst[0]}")
    a.label("L_fin")
    if stamps:
        a("s_lshl_b32 s13, s2, 3"); a("s_add_u32 s13, s13, s3"); a("s_lshl_b32 s13, s13, 5"); a(f"s_add_u32 s13, s13, {STOFF}")
        mk(RP, 38, "s13"); a(f"s_mov_b32 s{RP+2}, 32"); a(f"s_mov_b32 s{RP+3}, 0x20000")
        a("v_lshlrev_b32 v1, 2, v0")
        a(f"buffer_store_dword v3, v1, {srd(RP)}, 0 offen")
        if stamps > 1:
            a("s_cmp_lg_u32 s3, 0"); a("s_cbranch_scc1 L_end")
            a("v_mov_b32_dpp v4, v3 row_shr:8 row_mask:0xf bank_mask:0xf")
            a("v_cmp_eq_u32 vcc, 0, v4"); a("v_not_b32 v4, v4"); a("v_cndmask_b32_e64 v4, v4, 0, vcc")
            a("v_cmp_gt_u32 vcc, 8, v0"); a("v_cndmask_b32 v4, v4, v3, vcc")
            a("s_mov_b64 exec, 0x7f7f")
            a(f"buffer_atomic_umax v4, v1, {srd(DBG)}, 0 offen offset:4 sc1")
    a.label("L_end")
    a("s_endpgm")
    if proto:
        a.vm = []; a.lg = []; a.pend = {}
        a.label("L_flag_slow")
        a(f"s_mov_b32 s28, {spin}")
        a.label("L_flag_loop")
        a("s_sleep 8")
        a(f"buffer_load_dword v28, off, {srd(DBG)}, 0 sc1"); a.waitv_all()
        a("v_readfirstlane_b32 s13, v28")
        a("s_sub_u32 s28, s28, 1"); a("s_cbranch_scc1 L_flag_ok")
        a("s_cmp_ge_u32 s13, 256"); a("s_cbranch_scc0 L_flag_loop")
        a("s_branch L_flag_ok")
        a.label("L_ml_slow")
        a(f"s_mov_b32 s28, {spin}")
        a.label("L_ml_loop")
        a("s_sleep 8")
        a("v_lshlrev_b32 v8, 3, v0")
        a(f"buffer_load_dwordx2 v[8:9], v8, {srd(ML)}, 0 offen sc1"); a.waitv_all()
        a(f"v_max_u32 v{HR[12]}, v8, v9"); a(f"v_cmp_eq_u32 vcc, -1, v{HR[12]}")
        a("s_sub_u32 s28, s28, 1"); a("s_cbranch_scc1 L_ml_ok")
        a("s_cbranch_vccnz L_ml_loop")
        a("s_branch L_ml_ok")
    a.raw('.section .rodata,"a"'); a.raw(".p2align 6"); a.raw(f".amdhsa_kernel {KN}_kernel")
    for l in ["next_free_vgpr 256", "next_free_sgpr 102", "accum_offset 256", "group_segment_fixed_size 0", "kernarg_size 96", "user_sgpr_count 2",
              "user_sgpr_kernarg_segment_ptr 1", "system_sgpr_workgroup_id_x 1"]: a.raw("  .amdhsa_" + l)
    a.raw(".end_amdhsa_kernel")
    sys.stderr.write(f"slots {a.n} nops {a.nops} maxv {a.maxv} tf1 {tf1} tf2 {tf2}\n")
    return a.text()

if __name__ == "__main__":
    out = sys.argv[1]
    kw = {}
    for kv in sys.argv[2:]:
        k, v = kv.split("=")
        kw[k] = int(v) if v.lstrip("-").isdigit() else v.replace("+", " ")
    open(out, "w").write(gen(**kw))
```

```python
import sys, struct
from asmlib import Asm
KN = "gated_mix__gqa_block_cached__dense_activation_silu__decode"
def f2u(f): return struct.unpack("<I", struct.pack("<f", f))[0]
LOG2E = f2u(1.4426950408889634)
SCALE = f2u(192 ** -0.5)
MLOFF = 1 << 20
STOFF = 2 << 20
LDS_Q, LDS_O, LDS_F, LDS_P, LDS_OB, LDS_H = 0, 8192, 16384, 17408, 21504, 25600
LDS_SIZE = 26112

def gen(D=16, NP=48, WR=8, k0=2, pbar=2, bar=16, shr=3, stamps=0, kflags="nt", vflags="nt", wflags="nt", vsw=0, ksw=128, spin=200000,
        f1st=40, f1step=2, wost=60, wostep=4, mlld=30, mlpr=50, proto=1, npair=20, touch=0, xmap=0, probe=-1):
    a = Asm()
    hdr = open("cdna_kernels/" + KN + ".s.ref").read().split("; Override launch")[0]
    a.raw(hdr.rstrip())
    a.raw(f"; @launch grid=(256,1,1) block=(512,1,1) lds={LDS_SIZE}")
    a.raw('.amdgcn_target "amdgcn-amd-amdhsa--gfx950"')
    a.raw(".text"); a.raw(f".globl {KN}_kernel"); a.raw(".p2align 8"); a.raw(f".type {KN}_kernel,@function"); a.raw(f"{KN}_kernel:")
    K, V, WQ, WO, W1, W2, XQ, XF, GW, P, ML, DBG, RP, OUT = [40 + 4 * i for i in range(14)]
    def srd(n): return f"s[{n}:{n+3}]"
    SLO, SHI, MB1, MB0 = 96, 97, 98, 100
    S = lambda s: 32 + 4 * s
    H = lambda s: 32 + 4 * s + 3
    def x2(r): return f"v[{r}:{r+1}]"
    def x3(r): return f"v[{r}:{r+2}]"
    def x4(r): return f"v[{r}:{r+3}]"
    HR = [H(56 - 16 + i) for i in range(16)]
    nst = [0]
    def stamp():
        if not stamps: return
        a("s_memrealtime s[14:15]"); a.waitl()
        a(f"v_writelane_b32 v3, s14, {nst[0]}")
        nst[0] += 1

    a("s_cmp_ge_u32 s2, 256"); a("s_cbranch_scc1 L_end")
    a("s_load_dwordx16 s[16:31], s[0:1], 0")
    a("s_load_dwordx8 s[32:39], s[0:1], 64")
    a("v_lshrrev_b32 v1, 6, v0")
    a("v_lshlrev_b32 v11, 8, v0")
    a("v_readfirstlane_b32 s3, v1")
    a("v_and_b32 v0, 63, v0")
    a("s_and_b32 s8, s2, 7"); a("s_lshr_b32 s9, s2, 3"); a("s_and_b32 s10, s9, 7")
    a("s_lshr_b32 s4, s10, 1"); a("s_and_b32 s6, s10, 1")
    a("s_andn2_b32 s5, s9, 7"); a("s_add_u32 s5, s5, s8")
    a("s_lshl_b32 s7, s5, 1"); a("s_add_u32 s7, s7, s6")
    a("s_lshl_b32 s11, s4, 6"); a("s_add_u32 s11, s11, s7")
    a("s_mul_i32 s12, s11, 786432"); a("s_mul_i32 s13, s3, 768"); a("s_add_u32 s12, s12, s13")
    a("v_mul_u32_u24 v1, 12, v0")
    a("v_lshrrev_b32 v6, 5, v0")
    a("v_and_b32 v7, 31, v0")
    a("v_mul_u32_u24 v7, 12, v7")
    a(f"v_mul_u32_u24 v2, {40*12288}, v6"); a("v_add_u32 v2, v2, v7")
    a("v_mul_u32_u24 v10, 80, v6")
    for n in (K, WQ, XQ): a(f"s_mov_b32 s{n+3}, 0x20000")
    a(f"s_mov_b32 s{K+2}, {786432-7*768}")
    a(f"s_mov_b32 s{WQ+2}, {79*12288+384}")
    a(f"s_mov_b32 s{XQ+2}, 160")
    a("s_lshl_b32 s7, s8, 3"); a("s_lshr_b32 s9, s9, 3"); a("s_lshl_b32 s9, s9, 1"); a("s_add_u32 s7, s7, s9"); a("s_add_u32 s7, s7, s6")
    a("s_mul_i32 s8, s3, 160")
    a("s_mul_i32 s9, s4, 1280")
    a(f"s_mul_i32 s13, s3, {80*12288}"); a("s_mul_i32 s10, s5, 384"); a("s_add_u32 s13, s13, s10")
    a("s_add_u32 s10, s9, s8")
    if stamps: a("v_mov_b32 v3, 0")
    a.waitl()
    stamp()
    def mk(n, ptr, off):
        a(f"s_add_u32 s{n}, s{ptr}, {off}"); a(f"s_addc_u32 s{n+1}, s{ptr+1}, 0")
    mk(K, 18, "s12")
    free = []; slot = {}
    init = list(range(56 - D, 56)) + list(range(55 - D, WR - 1, -1))
    assert NP <= len(init)
    kn = [0]
    def kvf(t):
        fl = (kflags if t < ksw else "nt") if t < 128 else (vflags if t - 128 >= vsw else "nt")
        return "" if fl == "-" else fl
    if wflags == "-": wflags = ""
    def kload(sl):
        t = kn[0]
        if t >= 256: return
        kn[0] += 1; slot[t] = sl
        a(f"s_mov_b32 s18, {(t%128)*6144}")
        a(f"buffer_load_dwordx3 {x3(S(sl))}, v1, {srd(K if t < 128 else V)}, s18 offen {kvf(t)}", tag=("kv", t))
    def wqload(i):
        a(f"s_mov_b32 s19, {i*12288}")
        a(f"buffer_load_dwordx3 {x3(S(i%WR))}, v2, {srd(WQ)}, s19 offen {wflags}", tag=("wq", i))
    for t in range(k0): kload(init[kn[0]])
    mk(XQ, 16, "s10"); mk(WQ, 22, "s13")
    for i in range(5): a(f"buffer_load_dwordx4 {x4(12+4*i)}, v10, {srd(XQ)}, 0 offen offset:{16*i} {wflags}", tag=("xq", i))
    def kfill(p):
        tgt = k0 + (NP - k0) * (p + 1) // npair
        while kn[0] < tgt: kload(init[kn[0]])
    def setup2():
        a(f"s_mov_b32 s{SLO}, 0x05040100"); a(f"s_mov_b32 s{SHI}, 0x07060302")
        a(f"s_mov_b32 s{MB1}, 0xcccccccc"); a(f"s_mov_b32 s{MB1+1}, 0xcccccccc")
        a(f"s_mov_b32 s{MB0}, 0xaaaaaaaa"); a(f"s_mov_b32 s{MB0+1}, 0xaaaaaaaa")
        for n in (V, WO, W1, W2, XF, GW, P, ML, DBG): a(f"s_mov_b32 s{n+3}, 0x20000")
        a(f"s_mov_b32 s{V+2}, {786432-7*768}")
        a(f"s_mov_b32 s{WO+2}, {191*1280+160}")
        a("s_mul_i32 s13, s7, 48"); a(f"s_sub_u32 s{W1+2}, {640*3072}, s13"); mk(W1, 28, "s13")
        a(f"s_mov_b32 s{W2+2}, {23*1280+160}")
        a(f"s_mov_b32 s{XF+2}, 1280"); a(f"s_mov_b32 s{GW+2}, 1280")
        a(f"s_mov_b32 s{P+2}, 320"); a(f"s_mov_b32 s{ML+2}, 128"); a(f"s_mov_b32 s{DBG+2}, 256")
        mk(XF, 16, "s9"); mk(GW, 32, "0"); mk(V, 20, "s12")
        a(f"s_mul_i32 s13, s5, {192*1280}"); a("s_add_u32 s13, s13, s8"); mk(WO, 24, "s13")
        a(f"s_mul_i32 s13, s7, {24*1280}"); a("s_add_u32 s13, s13, s8"); mk(W2, 30, "s13")
        a("s_mul_i32 s13, s11, 2560"); a("s_lshl_b32 s14, s8, 1"); a("s_add_u32 s13, s13, s14"); mk(P, 38, "s13")
        a("s_lshr_b32 s13, s11, 1"); a("s_lshl_b32 s13, s13, 7"); a(f"s_add_u32 s13, s13, {MLOFF}"); mk(ML, 38, "s13")
        mk(DBG, 36, "0")
        for i in range(6, 10): a(f"v_mov_b32 v{i}, -1")
        a("v_lshlrev_b32 v10, 4, v0")
        a("s_lshl_b32 s13, s6, 3"); a("s_add_u32 s13, s13, s3"); a("s_lshl_b32 s13, s13, 3")
        a("v_lshlrev_b32 v5, 7, v0"); a("v_add_u32 v5, s13, v5")
        if touch:
            a("v_mov_b32 v4, 0"); a(f"v_mov_b32 v{HR[15]}, {786432-8*768}")
            a("s_mov_b64 exec, 1")
            a(f"buffer_load_dword v{HR[14]}, v4, {srd(V)}, 0 offen nt"); a.pend.pop(HR[14])
            a(f"buffer_load_dword v{HR[14]}, v{HR[15]}, {srd(V)}, 0 offen nt"); a.pend.pop(HR[14])
            a(f"buffer_load_dword v{HR[14]}, v{HR[15]}, {srd(K)}, 0 offen nt"); a.pend.pop(HR[14])
            if touch > 1:
                a(f"buffer_load_dword v{HR[14]}, v4, {srd(WO)}, 0 offen"); a.pend.pop(HR[14])
                a(f"buffer_load_dword v{HR[14]}, v4, {srd(W1)}, 0 offen"); a.pend.pop(HR[14])
                a(f"buffer_load_dword v{HR[14]}, v4, {srd(W2)}, 0 offen"); a.pend.pop(HR[14])
            a("s_mov_b64 exec, -1")
        if proto:
            a(f"buffer_store_dwordx4 v[6:9], v10, {srd(P)}, 0 offen sc1", tag="clr0")
            a(f"buffer_store_dwordx2 v[6:7], v5, {srd(ML)}, 0 offen sc1", tag="clr1")
    for p in range(min(npair, WR // 2)):
        wqload(2 * p); wqload(2 * p + 1); kfill(p)
        if p == 0: setup2()
        if pbar and p % pbar == pbar - 1: a("s_barrier")
    T = HR[0:6]; QA = [6, 7, 8, 9, HR[6], HR[7]]
    for j in range(6): a(f"v_mov_b32 v{QA[j]}, 0")
    stamp()
    for k in range(npair):
        a.waitv(("wq", 2 * k + 1))
        A_, B_ = S((2 * k) % WR), S((2 * k + 1) % WR)
        for d in range(3):
            a(f"v_perm_b32 v{T[2*d]}, v{B_+d}, v{A_+d}, s{SLO}"); a(f"v_perm_b32 v{T[2*d+1]}, v{B_+d}, v{A_+d}, s{SHI}")
        pn = k + WR // 2
        if pn < npair:
            wqload(2 * pn); wqload(2 * pn + 1); kfill(pn)
        for j in range(6): a(f"v_dot2c_f32_bf16 v{QA[j]}, v{T[j]}, v{12+k}")
        if pbar and pn < npair and pn % pbar == pbar - 1: a("s_barrier")
    for j in range(3): a(f"v_permlane32_swap_b32 v{QA[j]}, v{QA[j+3]}")
    for j in range(3): a(f"v_add_f32 v{QA[j]}, v{QA[j]}, v{QA[j+3]}")
    a("s_lshl_b32 s13, s3, 10"); a(f"v_add_u32 v{T[0]}, s13, v10")
    a(f"ds_write_b128 v{T[0]}, v[6:9] offset:{LDS_Q}")
    if proto: a.waitv("clr1")
    a.waitl()
    a("s_barrier")
    for w in range(8): a(f"ds_read_b96 {x3(S(w))}, v10 offset:{LDS_Q+1024*w}", tag=("qr", w))
    if proto:
        a("v_mov_b32 v12, 1")
        a(f"buffer_atomic_add v12, v11, {srd(DBG)}, 0 offen sc1", tag="flag")
    a("v_and_b32 v13, 15, v0"); a("v_mul_u32_u24 v14, 52, v13"); a("v_lshrrev_b32 v14, 8, v14")
    a("v_mul_u32_u24 v15, 5, v14"); a("v_sub_u32 v13, v13, v15")
    a("v_bfe_u32 v15, v0, 4, 1"); a("v_mad_u32_u24 v13, v15, 5, v13")
    a("v_lshrrev_b32 v15, 5, v0"); a("v_mad_u32_u24 v16, v15, 3, v14")
    a("v_cmp_eq_u32 vcc, 3, v14"); a("v_cndmask_b32_e64 v16, v16, 6, vcc")
    a("v_lshlrev_b32 v17, 4, v13")
    a(f"v_mul_u32_u24 v2, {32*1280}, v16"); a("v_add_u32 v2, v2, v17")
    a(f"v_mul_u32_u24 v11, {4*1280}, v16"); a("v_add_u32 v11, v11, v17")
    a("v_lshlrev_b32 v17, 1, v17"); a("v_lshl_add_u32 v31, v15, 4, v17")
    a("v_mov_b32 v30, v16")
    for w in range(1, 8):
        a.waitl(("qr", w))
        for j in range(3): a(f"v_add_f32 v{S(0)+j}, v{S(0)+j}, v{S(w)+j}")
    for j in range(3): a(f"v_mov_b32 v{S(1)+j}, v{S(0)+j}")
    for j in range(3): a(f"v_permlane32_swap_b32 v{S(0)+j}, v{S(1)+j}")
    Q = [20, 21, 22]
    a(f"v_cvt_pk_bf16_f32 v20, v{S(0)}, v{S(0)+1}")
    a(f"v_cvt_pk_bf16_f32 v21, v{S(0)+2}, v{S(1)}")
    a(f"v_cvt_pk_bf16_f32 v22, v{S(1)+1}, v{S(1)+2}")
    stamp()
    ACC = list(range(12, 20)); SC = [24, 25, 26, 27]
    X = HR[0:4]; Y = HR[4:6]; Z = HR[6:8]; W_ = HR[8:10]; U = HR[10:12]
    hooks = {t: [] for t in range(256)}
    FS = list(range(0, 8))
    def f1addr():
        a("v_lshrrev_b32 v6, 2, v0"); a("v_mul_u32_u24 v6, 6, v6")
        a("s_mul_i32 s13, s3, 96"); a("v_add_u32 v6, s13, v6")
        a("v_lshlrev_b32 v7, 1, v6")
        a("v_mul_u32_u24 v6, 3072, v6"); a("v_and_b32 v8, 3, v0"); a("v_mad_u32_u24 v6, v8, 12, v6")
        a(f"buffer_load_dwordx3 {x3(S(FS[6]))}, v7, {srd(XF)}, 0 offen {wflags}", tag="xf")
        a(f"buffer_load_dwordx3 {x3(S(FS[7]))}, v7, {srd(GW)}, 0 offen {wflags}", tag="gw")
    hooks[f1st].append(f1addr)
    def w1load(i):
        def f():
            a(f"s_mov_b32 s19, {i*3072}")
            a(f"buffer_load_dwordx3 {x3(S(FS[i]))}, v6, {srd(W1)}, s19 offen {wflags}", tag=("w1", i))
        return f
    for i in range(6): hooks[f1st + 1 + f1step * i].append(w1load(i))
    tf1 = f1st + 1 + f1step * 5 + D + 2
    def ffn1():
        a.waitv(("w1", 5))
        F = [H(FS[i]) for i in range(8)]
        T = [4, 6, 7, 8, 9, 29]
        for k in range(3):
            for d in range(3):
                A_, B_ = S(FS[2 * k]) + d, S(FS[2 * k + 1]) + d
                a(f"v_perm_b32 v{T[2*d]}, v{B_}, v{A_}, s{SLO}"); a(f"v_perm_b32 v{T[2*d+1]}, v{B_}, v{A_}, s{SHI}")
            for j in range(6):
                a(f"v_dot2_f32_bf16 v{F[j]}, v{T[j]}, v{S(FS[6])+k}, {'0' if k == 0 else 'v%d' % F[j]}")
        a("s_mov_b32 s13, 0x3f803f80"); a("s_mov_b32 s14, 0xffff0000")
        for k in range(3):
            xr, gr = S(FS[6]) + k, S(FS[7]) + k
            a(f"v_lshlrev_b32 v{T[0]}, 16, v{xr}"); a(f"v_and_b32 v{T[1]}, s14, v{xr}")
            a(f"v_lshlrev_b32 v{T[2]}, 16, v{gr}"); a(f"v_and_b32 v{T[3]}, s14, v{gr}")
            a(f"v_mul_f32 v{T[0]}, v{T[0]}, v{T[2]}"); a(f"v_mul_f32 v{T[1]}, v{T[1]}, v{T[3]}")
            a(f"v_cvt_pk_bf16_f32 v{T[4]}, v{T[0]}, v{T[1]}")
            a(f"v_dot2_f32_bf16 v{F[6]}, v{T[4]}, s13, {'0' if k == 0 else 'v%d' % F[6]}")
        a(f"v_mov_b32 v{F[7]}, 0")
        for j in range(4): a(f"v_permlane32_swap_b32 v{F[j]}, v{F[j+4]}")
        for j in range(4): a(f"v_add_f32 v{T[j]}, v{F[j]}, v{F[j+4]}")
        for j in range(2): a(f"v_permlane16_swap_b32 v{T[j]}, v{T[j+2]}")
        for j in range(2): a(f"v_add_f32 v{T[j]}, v{T[j]}, v{T[j+2]}")
        a(f"v_lshrrev_b32 v{T[2]}, 3, v0"); a(f"v_lshlrev_b32 v{T[2]}, 4, v{T[2]}")
        a(f"v_add_f32_dpp v{T[0]}, v{T[0]}, v{T[0]} row_ror:8 row_mask:0xf bank_mask:0x3")
        a(f"v_and_b32 v{T[3]}, 3, v0"); a(f"v_lshl_add_u32 v{T[2]}, v{T[3]}, 2, v{T[2]}")
        a(f"v_add_f32_dpp v{T[0]}, v{T[1]}, v{T[1]} row_ror:8 row_mask:0xf bank_mask:0xc")
        a("s_lshl_b32 s13, s3, 7"); a(f"v_add_u32 v{T[2]}, s13, v{T[2]}")
        a(f"v_add_f32_dpp v{T[1]}, v{T[0]}, v{T[0]} row_shl:4 row_mask:0xf bank_mask:0x5")
        a(f"v_add_f32_dpp v{T[1]}, v{T[0]}, v{T[0]} row_shr:4 row_mask:0xf bank_mask:0xa")
        a(f"ds_write_b32 v{T[2]}, v{T[1]} offset:{LDS_F}")
        a.waitl()
    hooks[tf1].append(ffn1)
    def w2load(i):
        def f(): a(f"buffer_load_dwordx4 {x4(S(FS[i]))}, v11, {srd(W2)}, 0 offen offset:{1280*i} {wflags}", tag=("w2", i))
        return f
    for i in range(4): hooks[tf1 + 1 + 2 * i].append(w2load(i))
    tf2 = tf1 + 8 + D + 2
    assert bar and (tf2 // bar) > (tf1 // bar) and tf2 < 127, (tf1, tf2)
    def ffn2():
        a.waitv(("w2", 3))
        a("v_and_b32 v4, 31, v0"); a("v_lshlrev_b32 v4, 2, v4")
        for w in range(8): a(f"ds_read_b32 v{ACC[w]}, v4 offset:{LDS_F+128*w}")
        a("v_and_b32 v6, 3, v0"); a("v_mul_u32_u24 v6, 12, v6"); a("v_bfe_u32 v7, v0, 2, 3"); a("v_lshl_add_u32 v6, v7, 1, v6")
        a("v_cmp_lt_u32 vcc, 5, v7"); a("v_cndmask_b32_e64 v6, v6, 56, vcc")
        a("s_lshl_b32 s13, s3, 6"); a("v_add_u32 v6, s13, v6")
        a("v_lshl_add_u32 v4, v30, 3, s13")
        a.waitl()
        for w in range(1, 8): a(f"v_add_f32 v{ACC[0]}, v{ACC[0]}, v{ACC[w]}")
        a(f"v_cvt_pk_bf16_f32 v7, v{ACC[0]}, v{ACC[0]}"); a("v_lshlrev_b32 v7, 16, v7")
        a(f"v_mul_f32 v8, {LOG2E ^ 0x80000000:#x}, v7"); a("v_exp_f32 v8, v8"); a("v_add_f32 v8, 1.0, v8"); a("v_rcp_f32 v8, v8")
        a("v_mul_f32 v9, v7, v8"); a("v_cvt_pk_bf16_f32 v9, v9, v9")
        a(f"ds_write_b16 v6, v9 offset:{LDS_H}")
        a("v_cvt_pk_bf16_f32 v8, v8, v8"); a("v_lshlrev_b32 v8, 16, v8")
        a("v_sub_f32 v29, 1.0, v8"); a("v_cvt_pk_bf16_f32 v29, v29, v29"); a("v_lshlrev_b32 v29, 16, v29")
        a("v_readlane_b32 s22, v8, 24"); a("v_readlane_b32 s23, v29, 24")
        a.waitl()
        a(f"ds_read_b64 v[6:7], v4 offset:{LDS_H}")
        a.waitl()
        for k in range(2):
            for d in range(4):
                A_, B_ = S(FS[2 * k]) + d, S(FS[2 * k + 1]) + d
                a(f"v_perm_b32 v8, v{B_}, v{A_}, s{SLO}"); a(f"v_perm_b32 v9, v{B_}, v{A_}, s{SHI}")
                a(f"v_dot2_f32_bf16 v{ACC[2*d]}, v8, v{6+k}, {'0' if k == 0 else 'v%d' % ACC[2*d]}")
                a(f"v_dot2_f32_bf16 v{ACC[2*d+1]}, v9, v{6+k}, {'0' if k == 0 else 'v%d' % ACC[2*d+1]}")
        for j in range(8): a(f"v_mul_f32 v{ACC[j]}, s23, v{ACC[j]}")
    hooks[tf2].append(ffn2)
    WS = list(range(8, 40))
    assert wost >= NP
    WP = [[None] * 8 for _ in range(16)]
    spare = [23]
    def woload(i):
        def f():
            a(f"s_mov_b32 s19, {i*1280}")
            a(f"buffer_load_dwordx4 {x4(S(WS[i]))}, v2, {srd(WO)}, s19 offen {wflags}", tag=("wo", i))
        return f
    def woperm(k):
        def f():
            a.waitv(("wo", 2 * k + 1))
            for d in range(4):
                A_, B_ = S(WS[2 * k]) + d, S(WS[2 * k + 1]) + d
                s = spare[0]
                a(f"v_perm_b32 v{s}, v{B_}, v{A_}, s{SLO}"); a(f"v_perm_b32 v{B_}, v{B_}, v{A_}, s{SHI}")
                WP[k][2 * d] = s; WP[k][2 * d + 1] = B_; spare[0] = A_
        return f
    for i in range(32): hooks[wost + wostep * i].append(woload(i))
    for k in range(16): hooks[min(255, wost + wostep * (2 * k + 1) + D + 3)].append(woperm(k))
    if proto: hooks[100].append(lambda: a(f"buffer_load_dword v28, off, {srd(DBG)}, 0 sc1", tag="flagld"))
    def release(t):
        if slot[t] >= 56 - D: free.append(slot[t])
        if free and (kn[0] - t - 1 < D or t % shr == shr - 1): kload(free.pop(0))
    def lvl(s_, t):
        if s_ % 2 == 1:
            x, y = X[(s_ - 1) % 4], X[s_ % 4]
            a(f"v_permlane16_swap_b32 v{x}, v{y}"); a(f"v_add_f32 v{Y[(s_>>1)&1]}, v{x}, v{y}")
        if s_ % 4 == 3:
            z = Z[(s_ >> 2) & 1]
            a(f"v_add_f32_dpp v{z}, v{Y[0]}, v{Y[0]} row_ror:8 row_mask:0xf bank_mask:0x3")
            a(f"v_add_f32_dpp v{z}, v{Y[1]}, v{Y[1]} row_ror:8 row_mask:0xf bank_mask:0xc")
        if s_ % 8 == 7:
            w = W_[(s_ >> 3) & 1]
            a(f"v_add_f32_dpp v{w}, v{Z[0]}, v{Z[0]} row_shl:4 row_mask:0xf bank_mask:0x5")
            a(f"v_add_f32_dpp v{w}, v{Z[1]}, v{Z[1]} row_shr:4 row_mask:0xf bank_mask:0xa")
            a(f"v_add_f32_dpp v{w}, v{w}, v{w} quad_perm:[2,3,0,1] row_mask:0xf bank_mask:0xf")
        if s_ % 16 == 15:
            u = U[(s_ >> 4) & 1]
            a(f"v_cndmask_b32_e64 v{u}, v{W_[0]}, v{W_[1]}, s[{MB1}:{MB1+1}]")
            a(f"v_add_f32_dpp v{u}, v{u}, v{u} quad_perm:[1,0,3,2] row_mask:0xf bank_mask:0xf")
        if s_ == 31:
            a(f"v_cndmask_b32_e64 v{SC[t//32]}, v{U[0]}, v{U[1]}, s[{MB0}:{MB0+1}]")
    for t in range(128):
        r = S(slot[t]); hreg = X[t % 4]
        a.waitv(("kv", t))
        a(f"v_dot2_f32_bf16 v{hreg}, v{r}, v{Q[0]}, 0")
        a(f"v_dot2_f32_bf16 v{hreg}, v{r+1}, v{Q[1]}, v{hreg}")
        a(f"v_dot2_f32_bf16 v{hreg}, v{r+2}, v{Q[2]}, v{hreg}")
        release(t)
        if t > 0: lvl((t - 1) % 32, t - 1)
        if t == 127: lvl(31, t)
        for f in hooks[t]: f()
        if bar and t % bar == bar - 1: a("s_barrier")
    stamp()
    a("s_mov_b32 s14, 0xffff0000")
    for j in (0, 2):
        a(f"v_cvt_pk_bf16_f32 v6, v{SC[j]}, v{SC[j+1]}")
        a(f"v_lshlrev_b32 v{SC[j]}, 16, v6"); a(f"v_and_b32 v{SC[j+1]}, s14, v6")
        a(f"v_mul_f32 v{SC[j]}, {SCALE:#x}, v{SC[j]}"); a(f"v_mul_f32 v{SC[j+1]}, {SCALE:#x}, v{SC[j+1]}")
        a(f"v_cvt_pk_bf16_f32 v6, v{SC[j]}, v{SC[j+1]}")
        a(f"v_lshlrev_b32 v{SC[j]}, 16, v6"); a(f"v_and_b32 v{SC[j+1]}, s14, v6")
    def wave_red(op, r, sdst):
        for m in ("quad_perm:[1,0,3,2] row_mask:0xf", "quad_perm:[2,3,0,1] row_mask:0xf", "row_half_mirror row_mask:0xf", "row_mirror row_mask:0xf",
                  "row_bcast:15 row_mask:0xa", "row_bcast:31 row_mask:0xc"):
            a(f"{op}_dpp v{r}, v{r}, v{r} {m} bank_mask:0xf")
        a(f"v_readlane_b32 s{sdst}, v{r}, 63")
    a(f"v_max3_f32 v6, v{SC[0]}, v{SC[1]}, v{SC[2]}"); a(f"v_max_f32 v6, v6, v{SC[3]}")
    wave_red("v_max_f32", 6, 20)
    a(f"v_mov_b32 v7, {LOG2E:#x}")
    a("v_mul_f32 v6, s20, v7")
    for j in range(4): a(f"v_fma_f32 v{SC[j]}, v{SC[j]}, v7, -v6")
    for j in range(4): a(f"v_exp_f32 v{SC[j]}, v{SC[j]}")
    a("v_bfrev_b32 v4, v0"); a("v_lshrrev_b32 v4, 27, v4"); a("v_lshlrev_b32 v4, 1, v4")
    a("v_lshrrev_b32 v11, 5, v0"); a("v_lshlrev_b32 v11, 8, v11"); a("s_lshl_b32 s13, s3, 9"); a("v_add_u32 v11, s13, v11")
    a("v_add_u32 v4, v4, v11")
    a(f"v_cvt_pk_bf16_f32 v8, v{SC[0]}, v{SC[1]}"); a(f"v_cvt_pk_bf16_f32 v9, v{SC[2]}, v{SC[3]}")
    a(f"ds_write_b16 v4, v8 offset:{LDS_P}"); a(f"ds_write_b16_d16_hi v4, v8 offset:{LDS_P+64}")
    a(f"ds_write_b16 v4, v9 offset:{LDS_P+128}"); a(f"ds_write_b16_d16_hi v4, v9 offset:{LDS_P+192}")
    a(f"v_add_f32 v6, v{SC[0]}, v{SC[1]}"); a(f"v_add_f32 v7, v{SC[2]}, v{SC[3]}"); a("v_add_f32 v6, v6, v7")
    wave_red("v_add_f32", 6, 21)
    a("v_mov_b32 v20, s20"); a("v_mov_b32 v21, s21")
    a(f"buffer_store_dwordx2 v[20:21], v5, {srd(ML)}, 0 offen sc1", tag="mlst")
    if proto:
        a.waitv("flagld")
        a("v_readfirstlane_b32 s13, v28")
        a("s_cmp_ge_u32 s13, 256"); a("s_cbranch_scc0 L_flag_slow")
        a.label("L_flag_ok")
    PB = [4, 24]
    VA = HR[6:12]; T = HR[0:6]; R_ = HR[12]
    a.waitl()
    a(f"ds_read_b128 {x4(PB[0])}, v11 offset:{LDS_P}", tag=("pb", 0))
    a(f"ds_read_b128 {x4(PB[1])}, v11 offset:{LDS_P+16}", tag=("pb", 1))
    for j in range(6): a(f"v_mov_b32 v{VA[j]}, 0")
    def mlload():
        a("v_lshlrev_b32 v8, 3, v0")
        a(f"buffer_load_dwordx2 v[8:9], v8, {srd(ML)}, 0 offen sc1", tag="ml")
    hooks[128 + 2 * mlld + 1].append(mlload)
    def mlproc():
        a.waitv("ml")
        r = R_
        if proto:
            a(f"v_max_u32 v{r}, v8, v9"); a(f"v_cmp_eq_u32 vcc, -1, v{r}")
            a("s_cbranch_vccnz L_ml_slow")
            a.label("L_ml_ok")
        a(f"v_mov_b32 v{r}, v8")
        for m in ("quad_perm:[1,0,3,2]", "quad_perm:[2,3,0,1]", "row_half_mirror", "row_mirror"):
            a(f"v_max_f32_dpp v{r}, v{r}, v{r} {m} row_mask:0xf bank_mask:0xf")
        a(f"v_sub_f32 v8, v8, v{r}"); a(f"v_mul_f32 v8, {LOG2E:#x}, v8"); a("v_exp_f32 v8, v8"); a("v_mul_f32 v8, v8, v9")
        for m in ("quad_perm:[1,0,3,2]", "quad_perm:[2,3,0,1]", "row_half_mirror", "row_mirror"):
            a(f"v_add_f32_dpp v8, v8, v8 {m} row_mask:0xf bank_mask:0xf")
        a(f"v_sub_f32 v{r}, s20, v{r}"); a(f"v_mul_f32 v{r}, {LOG2E:#x}, v{r}"); a(f"v_exp_f32 v{r}, v{r}")
        a("v_rcp_f32 v8, v8"); a(f"v_mul_f32 v{r}, v{r}, v8"); a(f"v_mul_f32 v{r}, s22, v{r}")
        a(f"v_readfirstlane_b32 s24, v{r}")
        a("s_lshl_b32 s13, s3, 10"); a("v_add_u32 v8, s13, v10")
        a("v_and_b32 v9, 31, v0"); a("v_lshlrev_b32 v9, 1, v9"); a(f"v_lshrrev_b32 v{r}, 5, v0"); a(f"v_add_u32 v9, v9, v{r}"); a("v_mul_u32_u24 v9, 6, v9")
        a("s_lshl_b32 s13, s3, 9"); a("v_add_u32 v9, s13, v9")
        a("v_lshl_add_u32 v29, v30, 6, s13")
        a("s_mul_i32 s8, s2, 1639"); a("s_lshr_b32 s8, s8, 16")
        a("s_mul_i32 s9, s8, 40"); a("s_sub_u32 s9, s2, s9")
        a(f"s_mul_i32 s13, s8, {64*2560}"); a("s_lshl_b32 s14, s9, 6"); a("s_add_u32 s13, s13, s14"); mk(RP, 38, "s13")
        a(f"s_mov_b32 s{RP+2}, {63*2560+64}"); a(f"s_mov_b32 s{RP+3}, 0x20000")
        a("s_mul_i32 s13, s8, 1280"); a("s_lshl_b32 s14, s9, 5"); a("s_add_u32 s13, s13, s14")
        mk(OUT, 34, "s13"); a(f"s_mov_b32 s{OUT+2}, 32"); a(f"s_mov_b32 s{OUT+3}, 0x20000")
        a("v_lshrrev_b32 v20, 2, v0"); a("v_mul_u32_u24 v20, 2560, v20"); a("v_and_b32 v21, 3, v0"); a("v_lshl_add_u32 v20, v21, 4, v20")
        a("v_lshrrev_b32 v22, 4, v0"); a("v_lshl_add_u32 v21, v21, 2, v22"); a("v_lshlrev_b32 v21, 1, v21")
        a("s_mov_b32 s25, 40960"); a("s_mov_b32 s26, 81920"); a("s_mov_b32 s27, 122880")
        a(f"s_mov_b32 s28, {spin}")
    hooks[128 + 2 * mlpr + 1].append(mlproc)
    for k in range(64):
        t = 128 + 2 * k
        a.waitv(("kv", t + 1))
        A_, B_ = S(slot[t]), S(slot[t + 1])
        for d in range(3):
            a(f"v_perm_b32 v{T[2*d]}, v{B_+d}, v{A_+d}, s{SLO}"); a(f"v_perm_b32 v{T[2*d+1]}, v{B_+d}, v{A_+d}, s{SHI}")
        release(t); release(t + 1)
        j4 = k // 4
        a.waitl(("pb", j4))
        pr = PB[j4 % 2] + k % 4
        for j in range(6): a(f"v_dot2c_f32_bf16 v{VA[j]}, v{T[j]}, v{pr}")
        if k % 4 == 3 and j4 + 2 < 16:
            a(f"ds_read_b128 {x4(PB[j4%2])}, v11 offset:{LDS_P+16*(j4+2)}", tag=("pb", j4 + 2))
        for f in hooks[t] + hooks[t + 1]: f()
        if bar and (t + 1) % bar == bar - 1 and t + 1 < 255 - D: a("s_barrier")
    stamp()
    for j in range(3): a(f"v_permlane32_swap_b32 v{VA[j]}, v{VA[j+3]}")
    for j in range(3): a(f"v_add_f32 v{VA[j]}, v{VA[j]}, v{VA[j+3]}")
    for j in range(3): a(f"v_mul_f32 v{4+j}, s24, v{VA[j]}")
    a(f"ds_write_b96 v8, v[4:6] offset:{LDS_O}")
    a.waitl(); a("s_barrier")
    RS = lambda w: S(40 + w)
    for w in range(8): a(f"ds_read_b96 {x3(RS(w))}, v10 offset:{LDS_O+1024*w}", tag=("or", w))
    for w in range(1, 8):
        a.waitl(("or", w))
        for j in range(3): a(f"v_add_f32 v{RS(0)+j}, v{RS(0)+j}, v{RS(w)+j}")
    a(f"v_cvt_pk_bf16_f32 v4, v{RS(0)}, v{RS(0)+1}"); a(f"v_cvt_pk_bf16_f32 v5, v{RS(0)+2}, v{RS(0)+2}")
    a(f"ds_write_b16 v9, v4 offset:{LDS_OB}"); a(f"ds_write_b16_d16_hi v9, v4 offset:{LDS_OB+2}"); a(f"ds_write_b16 v9, v5 offset:{LDS_OB+4}")
    a.waitl()
    OP = [S(48 + i) for i in range(4)]
    for i in range(4): a(f"ds_read_b128 {x4(OP[i])}, v29 offset:{LDS_OB+16*i}", tag=("ob", i))
    for k in range(16):
        a.waitl(("ob", k // 4))
        for j in range(8): a(f"v_dot2c_f32_bf16 v{ACC[j]}, v{WP[k][j]}, v{OP[k//4]+k%4}")
    for j in range(4): a(f"v_permlane32_swap_b32 v{ACC[j]}, v{ACC[j+4]}")
    for j in range(4): a(f"v_add_f32 v{ACC[j]}, v{ACC[j]}, v{ACC[j+4]}")
    for j in range(4): a(f"v_add_f32_dpp v{4+j}, v{ACC[j]}, v{ACC[j]} row_shl:5 row_mask:0xf bank_mask:0xf")
    for j in range(4): a(f"v_add_f32_dpp v{4+j}, v{ACC[j]}, v{4+j} row_shl:10 row_mask:0xf bank_mask:0xf")
    for j in range(4): a(f"v_min_u32 v{4+j}, -2, v{4+j}")
    a("s_mov_b32 exec_lo, 0x001f001f"); a("s_mov_b32 exec_hi, 0x001f001f")
    a(f"buffer_store_dwordx4 v[4:7], v31, {srd(P)}, 0 offen sc1")
    a("s_mov_b64 exec, -1")
    stamp()
    a("s_cmp_lg_u32 s3, 0"); a("s_cbranch_scc1 L_fin")
    a("s_cmp_ge_u32 s2, 160"); a("s_cbranch_scc1 L_fin")
    a.label("L_poll")
    for i in range(4):
        a(f"buffer_load_dwordx4 {x4(32+4*i)}, v20, {srd(RP)}, {['0','s25','s26','s27'][i]} offen sc1")
    a.waitv_all()
    a("v_max3_u32 v4, v32, v33, v34")
    for i in range(35, 47, 2): a(f"v_max3_u32 v4, v4, v{i}, v{i+1}")
    a("v_max_u32 v4, v4, v47")
    a("v_cmp_eq_u32 vcc, -1, v4")
    a("s_sub_u32 s28, s28, 1"); a("s_cbranch_scc1 L_red")
    a("s_cbranch_vccnz L_poll")
    a.label("L_red")
    for j in range(4):
        a(f"v_add_f32 v{32+j}, v{32+j}, v{36+j}"); a(f"v_add_f32 v{40+j}, v{40+j}, v{44+j}")
    for j in range(4): a(f"v_add_f32 v{32+j}, v{32+j}, v{40+j}")
    a("v_permlane32_swap_b32 v32, v34"); a("v_permlane32_swap_b32 v33, v35")
    a("v_add_f32 v32, v32, v34"); a("v_add_f32 v33, v33, v35")
    a("v_permlane16_swap_b32 v32, v33"); a("v_add_f32 v32, v32, v33")
    a("v_add_f32_dpp v32, v32, v32 row_ror:8 row_mask:0xf bank_mask:0xf")
    a("v_add_f32_dpp v32, v32, v32 row_ror:4 row_mask:0xf bank_mask:0xf")
    a("v_cvt_pk_bf16_f32 v32, v32, v32")
    a("s_mov_b32 exec_lo, 0x000f000f"); a("s_mov_b32 exec_hi, 0x000f000f")
    a(f"buffer_store_short v32, v21, {srd(OUT)}, 0 offen")
    a("s_mov_b64 exec, -1")
    if stamps:
        a.waitv_all()
        a("s_memrealtime s[14:15]"); a.waitl(); a(f"v_writelane_b32 v3, s14, {nst[0]}")
    a.label("L_fin")
    if stamps:
        a("s_lshl_b32 s13, s2, 3"); a("s_add_u32 s13, s13, s3"); a("s_lshl_b32 s13, s13, 5"); a(f"s_add_u32 s13, s13, {STOFF}")
        mk(RP, 38, "s13"); a(f"s_mov_b32 s{RP+2}, 32"); a(f"s_mov_b32 s{RP+3}, 0x20000")
        a("v_lshlrev_b32 v1, 2, v0")
        a(f"buffer_store_dword v3, v1, {srd(RP)}, 0 offen")
        if stamps > 1:
            a("s_cmp_lg_u32 s3, 0"); a("s_cbranch_scc1 L_end")
            a("v_mov_b32_dpp v4, v3 row_shr:8 row_mask:0xf bank_mask:0xf")
            a("v_cmp_eq_u32 vcc, 0, v4"); a("v_not_b32 v4, v4"); a("v_cndmask_b32_e64 v4, v4, 0, vcc")
            a("v_cmp_gt_u32 vcc, 8, v0"); a("v_cndmask_b32 v4, v4, v3, vcc")
            a("s_mov_b64 exec, 0x7f7f")
            a(f"buffer_atomic_umax v4, v1, {srd(DBG)}, 0 offen offset:4 sc1")
    if probe >= 0:
        a("s_cmp_lg_u32 s3, 0"); a("s_cbranch_scc1 L_end"); a("s_cmp_lg_u32 s2, 0"); a("s_cbranch_scc1 L_end")
        a(f"v_readlane_b32 s8, v3, {probe}"); a("s_add_u32 s8, s8, 12000"); a("s_mov_b32 s9, 100000")
        a.label("L_pr")
        a("s_memrealtime s[14:15]"); a.waitl()
        a("s_sub_u32 s9, s9, 1"); a("s_cbranch_scc1 L_end")
        a("s_sub_u32 s10, s14, s8"); a("s_cmp_lt_i32 s10, 0"); a("s_cbranch_scc1 L_pr")
    a.label("L_end")
    a("s_endpgm")
    if proto:
        a.vm = []; a.lg = []; a.pend = {}
        a.label("L_flag_slow")
        a(f"s_mov_b32 s28, {spin}")
        a.label("L_flag_loop")
        a("s_sleep 8")
        a(f"buffer_load_dword v28, off, {srd(DBG)}, 0 sc1"); a.waitv_all()
        a("v_readfirstlane_b32 s13, v28")
        a("s_sub_u32 s28, s28, 1"); a("s_cbranch_scc1 L_flag_ok")
        a("s_cmp_ge_u32 s13, 256"); a("s_cbranch_scc0 L_flag_loop")
        a("s_branch L_flag_ok")
        a.label("L_ml_slow")
        a(f"s_mov_b32 s28, {spin}")
        a.label("L_ml_loop")
        a("s_sleep 8")
        a("v_lshlrev_b32 v8, 3, v0")
        a(f"buffer_load_dwordx2 v[8:9], v8, {srd(ML)}, 0 offen sc1"); a.waitv_all()
        a(f"v_max_u32 v{HR[12]}, v8, v9"); a(f"v_cmp_eq_u32 vcc, -1, v{HR[12]}")
        a("s_sub_u32 s28, s28, 1"); a("s_cbranch_scc1 L_ml_ok")
        a("s_cbranch_vccnz L_ml_loop")
        a("s_branch L_ml_ok")
    a.raw('.section .rodata,"a"'); a.raw(".p2align 6"); a.raw(f".amdhsa_kernel {KN}_kernel")
    for l in ["next_free_vgpr 256", "next_free_sgpr 102", "accum_offset 256", "group_segment_fixed_size 0", "kernarg_size 96", "user_sgpr_count 2",
              "user_sgpr_kernarg_segment_ptr 1", "system_sgpr_workgroup_id_x 1"]: a.raw("  .amdhsa_" + l)
    a.raw(".end_amdhsa_kernel")
    sys.stderr.write(f"slots {a.n} nops {a.nops} maxv {a.maxv} tf1 {tf1} tf2 {tf2}\n")
    return a.text()

if __name__ == "__main__":
    out = sys.argv[1]
    kw = {}
    for kv in sys.argv[2:]:
        k, v = kv.split("=")
        kw[k] = int(v) if v.lstrip("-").isdigit() else v.replace("+", " ")
    open(out, "w").write(gen(**kw))
```

```python
import sys, struct
from asmlib import Asm
KN = "gated_mix__gqa_block_cached__dense_activation_silu__decode"
def f2u(f): return struct.unpack("<I", struct.pack("<f", f))[0]
LOG2E = f2u(1.4426950408889634)
SCALE = f2u(192 ** -0.5)
MLOFF = 1 << 20
STOFF = 2 << 20
LDS_Q, LDS_O, LDS_F, LDS_P, LDS_OB, LDS_H = 0, 8192, 16384, 17408, 21504, 25600
LDS_SIZE = 26112

def gen(D=16, NP=48, WR=8, k0=2, pbar=2, bar=16, shr=3, stamps=0, kflags="nt", vflags="nt", wflags="nt", vsw=0, ksw=128, spin=200000,
        f1st=40, f1step=2, wost=60, wostep=4, mlld=30, mlpr=50, proto=1, npair=20, touch=0, xmap=0, probe=-1, pwg=0, early=0):
    a = Asm()
    hdr = open("cdna_kernels/" + KN + ".s.ref").read().split("; Override launch")[0]
    a.raw(hdr.rstrip())
    a.raw(f"; @launch grid=(256,1,1) block=(512,1,1) lds={LDS_SIZE}")
    a.raw('.amdgcn_target "amdgcn-amd-amdhsa--gfx950"')
    a.raw(".text"); a.raw(f".globl {KN}_kernel"); a.raw(".p2align 8"); a.raw(f".type {KN}_kernel,@function"); a.raw(f"{KN}_kernel:")
    K, V, WQ, WO, W1, W2, XQ, XF, GW, P, ML, DBG, RP, OUT = [40 + 4 * i for i in range(14)]
    def srd(n): return f"s[{n}:{n+3}]"
    SLO, SHI, MB1, MB0 = 96, 97, 98, 100
    S = lambda s: 32 + 4 * s
    H = lambda s: 32 + 4 * s + 3
    def x2(r): return f"v[{r}:{r+1}]"
    def x3(r): return f"v[{r}:{r+2}]"
    def x4(r): return f"v[{r}:{r+3}]"
    HR = [H(56 - 16 + i) for i in range(16)]
    nst = [0]
    def stamp():
        if not stamps: return
        a("s_memrealtime s[14:15]"); a.waitl()
        a(f"v_writelane_b32 v3, s14, {nst[0]}")
        nst[0] += 1

    if early: a("s_memrealtime s[92:93]")
    a("s_cmp_ge_u32 s2, 256"); a("s_cbranch_scc1 L_end")
    a("s_load_dwordx16 s[16:31], s[0:1], 0")
    a("s_load_dwordx8 s[32:39], s[0:1], 64")
    a("v_lshrrev_b32 v1, 6, v0")
    a("v_lshlrev_b32 v11, 8, v0")
    a("v_readfirstlane_b32 s3, v1")
    a("v_and_b32 v0, 63, v0")
    a("s_and_b32 s8, s2, 7"); a("s_lshr_b32 s9, s2, 3"); a("s_and_b32 s10, s9, 7")
    a("s_lshr_b32 s4, s10, 1"); a("s_and_b32 s6, s10, 1")
    a("s_andn2_b32 s5, s9, 7"); a("s_add_u32 s5, s5, s8")
    a("s_lshl_b32 s7, s5, 1"); a("s_add_u32 s7, s7, s6")
    a("s_lshl_b32 s11, s4, 6"); a("s_add_u32 s11, s11, s7")
    a("s_mul_i32 s12, s11, 786432"); a("s_mul_i32 s13, s3, 768"); a("s_add_u32 s12, s12, s13")
    a("v_mul_u32_u24 v1, 12, v0")
    a("v_lshrrev_b32 v6, 5, v0")
    a("v_and_b32 v7, 31, v0")
    a("v_mul_u32_u24 v7, 12, v7")
    a(f"v_mul_u32_u24 v2, {40*12288}, v6"); a("v_add_u32 v2, v2, v7")
    a("v_mul_u32_u24 v10, 80, v6")
    for n in (K, WQ, XQ): a(f"s_mov_b32 s{n+3}, 0x20000")
    a(f"s_mov_b32 s{K+2}, {786432-7*768}")
    a(f"s_mov_b32 s{WQ+2}, {79*12288+384}")
    a(f"s_mov_b32 s{XQ+2}, 160")
    a("s_lshl_b32 s7, s8, 3"); a("s_lshr_b32 s9, s9, 3"); a("s_lshl_b32 s9, s9, 1"); a("s_add_u32 s7, s7, s9"); a("s_add_u32 s7, s7, s6")
    a("s_mul_i32 s8, s3, 160")
    a("s_mul_i32 s9, s4, 1280")
    a(f"s_mul_i32 s13, s3, {80*12288}"); a("s_mul_i32 s10, s5, 384"); a("s_add_u32 s13, s13, s10")
    a("s_add_u32 s10, s9, s8")
    if stamps: a("v_mov_b32 v3, 0")
    a.waitl()
    stamp()
    if early: a("v_writelane_b32 v3, s92, 7")
    def mk(n, ptr, off):
        a(f"s_add_u32 s{n}, s{ptr}, {off}"); a(f"s_addc_u32 s{n+1}, s{ptr+1}, 0")
    mk(K, 18, "s12")
    free = []; slot = {}
    init = list(range(56 - D, 56)) + list(range(55 - D, WR - 1, -1))
    assert NP <= len(init)
    kn = [0]
    def kvf(t):
        fl = (kflags if t < ksw else "nt") if t < 128 else (vflags if t - 128 >= vsw else "nt")
        return "" if fl == "-" else fl
    if wflags == "-": wflags = ""
    def kload(sl):
        t = kn[0]
        if t >= 256: return
        kn[0] += 1; slot[t] = sl
        a(f"s_mov_b32 s18, {(t%128)*6144}")
        a(f"buffer_load_dwordx3 {x3(S(sl))}, v1, {srd(K if t < 128 else V)}, s18 offen {kvf(t)}", tag=("kv", t))
    def wqload(i):
        a(f"s_mov_b32 s19, {i*12288}")
        a(f"buffer_load_dwordx3 {x3(S(i%WR))}, v2, {srd(WQ)}, s19 offen {wflags}", tag=("wq", i))
    for t in range(k0): kload(init[kn[0]])
    mk(XQ, 16, "s10"); mk(WQ, 22, "s13")
    for i in range(5): a(f"buffer_load_dwordx4 {x4(12+4*i)}, v10, {srd(XQ)}, 0 offen offset:{16*i} {wflags}", tag=("xq", i))
    def kfill(p):
        tgt = k0 + (NP - k0) * (p + 1) // npair
        while kn[0] < tgt: kload(init[kn[0]])
    def setup2():
        a(f"s_mov_b32 s{SLO}, 0x05040100"); a(f"s_mov_b32 s{SHI}, 0x07060302")
        a(f"s_mov_b32 s{MB1}, 0xcccccccc"); a(f"s_mov_b32 s{MB1+1}, 0xcccccccc")
        a(f"s_mov_b32 s{MB0}, 0xaaaaaaaa"); a(f"s_mov_b32 s{MB0+1}, 0xaaaaaaaa")
        for n in (V, WO, W1, W2, XF, GW, P, ML, DBG): a(f"s_mov_b32 s{n+3}, 0x20000")
        a(f"s_mov_b32 s{V+2}, {786432-7*768}")
        a(f"s_mov_b32 s{WO+2}, {191*1280+160}")
        a("s_mul_i32 s13, s7, 48"); a(f"s_sub_u32 s{W1+2}, {640*3072}, s13"); mk(W1, 28, "s13")
        a(f"s_mov_b32 s{W2+2}, {23*1280+160}")
        a(f"s_mov_b32 s{XF+2}, 1280"); a(f"s_mov_b32 s{GW+2}, 1280")
        a(f"s_mov_b32 s{P+2}, 320"); a(f"s_mov_b32 s{ML+2}, 128"); a(f"s_mov_b32 s{DBG+2}, 256")
        mk(XF, 16, "s9"); mk(GW, 32, "0"); mk(V, 20, "s12")
        a(f"s_mul_i32 s13, s5, {192*1280}"); a("s_add_u32 s13, s13, s8"); mk(WO, 24, "s13")
        a(f"s_mul_i32 s13, s7, {24*1280}"); a("s_add_u32 s13, s13, s8"); mk(W2, 30, "s13")
        a("s_mul_i32 s13, s11, 2560"); a("s_lshl_b32 s14, s8, 1"); a("s_add_u32 s13, s13, s14"); mk(P, 38, "s13")
        a("s_lshr_b32 s13, s11, 1"); a("s_lshl_b32 s13, s13, 7"); a(f"s_add_u32 s13, s13, {MLOFF}"); mk(ML, 38, "s13")
        mk(DBG, 36, "0")
        for i in range(6, 10): a(f"v_mov_b32 v{i}, -1")
        a("v_lshlrev_b32 v10, 4, v0")
        a("s_lshl_b32 s13, s6, 3"); a("s_add_u32 s13, s13, s3"); a("s_lshl_b32 s13, s13, 3")
        a("v_lshlrev_b32 v5, 7, v0"); a("v_add_u32 v5, s13, v5")
        if touch:
            a("v_mov_b32 v4, 0"); a(f"v_mov_b32 v{HR[15]}, {786432-8*768}")
            a("s_mov_b64 exec, 1")
            a(f"buffer_load_dword v{HR[14]}, v4, {srd(V)}, 0 offen nt"); a.pend.pop(HR[14])
            a(f"buffer_load_dword v{HR[14]}, v{HR[15]}, {srd(V)}, 0 offen nt"); a.pend.pop(HR[14])
            a(f"buffer_load_dword v{HR[14]}, v{HR[15]}, {srd(K)}, 0 offen nt"); a.pend.pop(HR[14])
            if touch > 1:
                a(f"buffer_load_dword v{HR[14]}, v4, {srd(WO)}, 0 offen"); a.pend.pop(HR[14])
                a(f"buffer_load_dword v{HR[14]}, v4, {srd(W1)}, 0 offen"); a.pend.pop(HR[14])
                a(f"buffer_load_dword v{HR[14]}, v4, {srd(W2)}, 0 offen"); a.pend.pop(HR[14])
            a("s_mov_b64 exec, -1")
        if proto:
            a(f"buffer_store_dwordx4 v[6:9], v10, {srd(P)}, 0 offen sc1", tag="clr0")
            a(f"buffer_store_dwordx2 v[6:7], v5, {srd(ML)}, 0 offen sc1", tag="clr1")
    for p in range(min(npair, WR // 2)):
        wqload(2 * p); wqload(2 * p + 1); kfill(p)
        if p == 0: setup2()
        if pbar and p % pbar == pbar - 1: a("s_barrier")
    T = HR[0:6]; QA = [6, 7, 8, 9, HR[6], HR[7]]
    for j in range(6): a(f"v_mov_b32 v{QA[j]}, 0")
    stamp()
    for k in range(npair):
        a.waitv(("wq", 2 * k + 1))
        A_, B_ = S((2 * k) % WR), S((2 * k + 1) % WR)
        for d in range(3):
            a(f"v_perm_b32 v{T[2*d]}, v{B_+d}, v{A_+d}, s{SLO}"); a(f"v_perm_b32 v{T[2*d+1]}, v{B_+d}, v{A_+d}, s{SHI}")
        pn = k + WR // 2
        if pn < npair:
            wqload(2 * pn); wqload(2 * pn + 1); kfill(pn)
        for j in range(6): a(f"v_dot2c_f32_bf16 v{QA[j]}, v{T[j]}, v{12+k}")
        if pbar and pn < npair and pn % pbar == pbar - 1: a("s_barrier")
    for j in range(3): a(f"v_permlane32_swap_b32 v{QA[j]}, v{QA[j+3]}")
    for j in range(3): a(f"v_add_f32 v{QA[j]}, v{QA[j]}, v{QA[j+3]}")
    a("s_lshl_b32 s13, s3, 10"); a(f"v_add_u32 v{T[0]}, s13, v10")
    a(f"ds_write_b128 v{T[0]}, v[6:9] offset:{LDS_Q}")
    if proto: a.waitv("clr1")
    a.waitl()
    a("s_barrier")
    for w in range(8): a(f"ds_read_b96 {x3(S(w))}, v10 offset:{LDS_Q+1024*w}", tag=("qr", w))
    if proto:
        a("v_mov_b32 v12, 1")
        a(f"buffer_atomic_add v12, v11, {srd(DBG)}, 0 offen sc1", tag="flag")
    a("v_and_b32 v13, 15, v0"); a("v_mul_u32_u24 v14, 52, v13"); a("v_lshrrev_b32 v14, 8, v14")
    a("v_mul_u32_u24 v15, 5, v14"); a("v_sub_u32 v13, v13, v15")
    a("v_bfe_u32 v15, v0, 4, 1"); a("v_mad_u32_u24 v13, v15, 5, v13")
    a("v_lshrrev_b32 v15, 5, v0"); a("v_mad_u32_u24 v16, v15, 3, v14")
    a("v_cmp_eq_u32 vcc, 3, v14"); a("v_cndmask_b32_e64 v16, v16, 6, vcc")
    a("v_lshlrev_b32 v17, 4, v13")
    a(f"v_mul_u32_u24 v2, {32*1280}, v16"); a("v_add_u32 v2, v2, v17")
    a(f"v_mul_u32_u24 v11, {4*1280}, v16"); a("v_add_u32 v11, v11, v17")
    a("v_lshlrev_b32 v17, 1, v17"); a("v_lshl_add_u32 v31, v15, 4, v17")
    a("v_mov_b32 v30, v16")
    for w in range(1, 8):
        a.waitl(("qr", w))
        for j in range(3): a(f"v_add_f32 v{S(0)+j}, v{S(0)+j}, v{S(w)+j}")
    for j in range(3): a(f"v_mov_b32 v{S(1)+j}, v{S(0)+j}")
    for j in range(3): a(f"v_permlane32_swap_b32 v{S(0)+j}, v{S(1)+j}")
    Q = [20, 21, 22]
    a(f"v_cvt_pk_bf16_f32 v20, v{S(0)}, v{S(0)+1}")
    a(f"v_cvt_pk_bf16_f32 v21, v{S(0)+2}, v{S(1)}")
    a(f"v_cvt_pk_bf16_f32 v22, v{S(1)+1}, v{S(1)+2}")
    stamp()
    ACC = list(range(12, 20)); SC = [24, 25, 26, 27]
    X = HR[0:4]; Y = HR[4:6]; Z = HR[6:8]; W_ = HR[8:10]; U = HR[10:12]
    hooks = {t: [] for t in range(256)}
    FS = list(range(0, 8))
    def f1addr():
        a("v_lshrrev_b32 v6, 2, v0"); a("v_mul_u32_u24 v6, 6, v6")
        a("s_mul_i32 s13, s3, 96"); a("v_add_u32 v6, s13, v6")
        a("v_lshlrev_b32 v7, 1, v6")
        a("v_mul_u32_u24 v6, 3072, v6"); a("v_and_b32 v8, 3, v0"); a("v_mad_u32_u24 v6, v8, 12, v6")
        a(f"buffer_load_dwordx3 {x3(S(FS[6]))}, v7, {srd(XF)}, 0 offen {wflags}", tag="xf")
        a(f"buffer_load_dwordx3 {x3(S(FS[7]))}, v7, {srd(GW)}, 0 offen {wflags}", tag="gw")
    hooks[f1st].append(f1addr)
    def w1load(i):
        def f():
            a(f"s_mov_b32 s19, {i*3072}")
            a(f"buffer_load_dwordx3 {x3(S(FS[i]))}, v6, {srd(W1)}, s19 offen {wflags}", tag=("w1", i))
        return f
    for i in range(6): hooks[f1st + 1 + f1step * i].append(w1load(i))
    tf1 = f1st + 1 + f1step * 5 + D + 2
    def ffn1():
        a.waitv(("w1", 5))
        F = [H(FS[i]) for i in range(8)]
        T = [4, 6, 7, 8, 9, 29]
        for k in range(3):
            for d in range(3):
                A_, B_ = S(FS[2 * k]) + d, S(FS[2 * k + 1]) + d
                a(f"v_perm_b32 v{T[2*d]}, v{B_}, v{A_}, s{SLO}"); a(f"v_perm_b32 v{T[2*d+1]}, v{B_}, v{A_}, s{SHI}")
            for j in range(6):
                a(f"v_dot2_f32_bf16 v{F[j]}, v{T[j]}, v{S(FS[6])+k}, {'0' if k == 0 else 'v%d' % F[j]}")
        a("s_mov_b32 s13, 0x3f803f80"); a("s_mov_b32 s14, 0xffff0000")
        for k in range(3):
            xr, gr = S(FS[6]) + k, S(FS[7]) + k
            a(f"v_lshlrev_b32 v{T[0]}, 16, v{xr}"); a(f"v_and_b32 v{T[1]}, s14, v{xr}")
            a(f"v_lshlrev_b32 v{T[2]}, 16, v{gr}"); a(f"v_and_b32 v{T[3]}, s14, v{gr}")
            a(f"v_mul_f32 v{T[0]}, v{T[0]}, v{T[2]}"); a(f"v_mul_f32 v{T[1]}, v{T[1]}, v{T[3]}")
            a(f"v_cvt_pk_bf16_f32 v{T[4]}, v{T[0]}, v{T[1]}")
            a(f"v_dot2_f32_bf16 v{F[6]}, v{T[4]}, s13, {'0' if k == 0 else 'v%d' % F[6]}")
        a(f"v_mov_b32 v{F[7]}, 0")
        for j in range(4): a(f"v_permlane32_swap_b32 v{F[j]}, v{F[j+4]}")
        for j in range(4): a(f"v_add_f32 v{T[j]}, v{F[j]}, v{F[j+4]}")
        for j in range(2): a(f"v_permlane16_swap_b32 v{T[j]}, v{T[j+2]}")
        for j in range(2): a(f"v_add_f32 v{T[j]}, v{T[j]}, v{T[j+2]}")
        a(f"v_lshrrev_b32 v{T[2]}, 3, v0"); a(f"v_lshlrev_b32 v{T[2]}, 4, v{T[2]}")
        a(f"v_add_f32_dpp v{T[0]}, v{T[0]}, v{T[0]} row_ror:8 row_mask:0xf bank_mask:0x3")
        a(f"v_and_b32 v{T[3]}, 3, v0"); a(f"v_lshl_add_u32 v{T[2]}, v{T[3]}, 2, v{T[2]}")
        a(f"v_add_f32_dpp v{T[0]}, v{T[1]}, v{T[1]} row_ror:8 row_mask:0xf bank_mask:0xc")
        a("s_lshl_b32 s13, s3, 7"); a(f"v_add_u32 v{T[2]}, s13, v{T[2]}")
        a(f"v_add_f32_dpp v{T[1]}, v{T[0]}, v{T[0]} row_shl:4 row_mask:0xf bank_mask:0x5")
        a(f"v_add_f32_dpp v{T[1]}, v{T[0]}, v{T[0]} row_shr:4 row_mask:0xf bank_mask:0xa")
        a(f"ds_write_b32 v{T[2]}, v{T[1]} offset:{LDS_F}")
        a.waitl()
    hooks[tf1].append(ffn1)
    def w2load(i):
        def f(): a(f"buffer_load_dwordx4 {x4(S(FS[i]))}, v11, {srd(W2)}, 0 offen offset:{1280*i} {wflags}", tag=("w2", i))
        return f
    for i in range(4): hooks[tf1 + 1 + 2 * i].append(w2load(i))
    tf2 = tf1 + 8 + D + 2
    assert bar and (tf2 // bar) > (tf1 // bar) and tf2 < 127, (tf1, tf2)
    def ffn2():
        a.waitv(("w2", 3))
        a("v_and_b32 v4, 31, v0"); a("v_lshlrev_b32 v4, 2, v4")
        for w in range(8): a(f"ds_read_b32 v{ACC[w]}, v4 offset:{LDS_F+128*w}")
        a("v_and_b32 v6, 3, v0"); a("v_mul_u32_u24 v6, 12, v6"); a("v_bfe_u32 v7, v0, 2, 3"); a("v_lshl_add_u32 v6, v7, 1, v6")
        a("v_cmp_lt_u32 vcc, 5, v7"); a("v_cndmask_b32_e64 v6, v6, 56, vcc")
        a("s_lshl_b32 s13, s3, 6"); a("v_add_u32 v6, s13, v6")
        a("v_lshl_add_u32 v4, v30, 3, s13")
        a.waitl()
        for w in range(1, 8): a(f"v_add_f32 v{ACC[0]}, v{ACC[0]}, v{ACC[w]}")
        a(f"v_cvt_pk_bf16_f32 v7, v{ACC[0]}, v{ACC[0]}"); a("v_lshlrev_b32 v7, 16, v7")
        a(f"v_mul_f32 v8, {LOG2E ^ 0x80000000:#x}, v7"); a("v_exp_f32 v8, v8"); a("v_add_f32 v8, 1.0, v8"); a("v_rcp_f32 v8, v8")
        a("v_mul_f32 v9, v7, v8"); a("v_cvt_pk_bf16_f32 v9, v9, v9")
        a(f"ds_write_b16 v6, v9 offset:{LDS_H}")
        a("v_cvt_pk_bf16_f32 v8, v8, v8"); a("v_lshlrev_b32 v8, 16, v8")
        a("v_sub_f32 v29, 1.0, v8"); a("v_cvt_pk_bf16_f32 v29, v29, v29"); a("v_lshlrev_b32 v29, 16, v29")
        a("v_readlane_b32 s22, v8, 24"); a("v_readlane_b32 s23, v29, 24")
        a.waitl()
        a(f"ds_read_b64 v[6:7], v4 offset:{LDS_H}")
        a.waitl()
        for k in range(2):
            for d in range(4):
                A_, B_ = S(FS[2 * k]) + d, S(FS[2 * k + 1]) + d
                a(f"v_perm_b32 v8, v{B_}, v{A_}, s{SLO}"); a(f"v_perm_b32 v9, v{B_}, v{A_}, s{SHI}")
                a(f"v_dot2_f32_bf16 v{ACC[2*d]}, v8, v{6+k}, {'0' if k == 0 else 'v%d' % ACC[2*d]}")
                a(f"v_dot2_f32_bf16 v{ACC[2*d+1]}, v9, v{6+k}, {'0' if k == 0 else 'v%d' % ACC[2*d+1]}")
        for j in range(8): a(f"v_mul_f32 v{ACC[j]}, s23, v{ACC[j]}")
    hooks[tf2].append(ffn2)
    WS = list(range(8, 40))
    assert wost >= NP
    WP = [[None] * 8 for _ in range(16)]
    spare = [23]
    def woload(i):
        def f():
            a(f"s_mov_b32 s19, {i*1280}")
            a(f"buffer_load_dwordx4 {x4(S(WS[i]))}, v2, {srd(WO)}, s19 offen {wflags}", tag=("wo", i))
        return f
    def woperm(k):
        def f():
            a.waitv(("wo", 2 * k + 1))
            for d in range(4):
                A_, B_ = S(WS[2 * k]) + d, S(WS[2 * k + 1]) + d
                s = spare[0]
                a(f"v_perm_b32 v{s}, v{B_}, v{A_}, s{SLO}"); a(f"v_perm_b32 v{B_}, v{B_}, v{A_}, s{SHI}")
                WP[k][2 * d] = s; WP[k][2 * d + 1] = B_; spare[0] = A_
        return f
    for i in range(32): hooks[wost + wostep * i].append(woload(i))
    for k in range(16): hooks[min(255, wost + wostep * (2 * k + 1) + D + 3)].append(woperm(k))
    if proto: hooks[100].append(lambda: a(f"buffer_load_dword v28, off, {srd(DBG)}, 0 sc1", tag="flagld"))
    def release(t):
        if slot[t] >= 56 - D: free.append(slot[t])
        if free and (kn[0] - t - 1 < D or t % shr == shr - 1): kload(free.pop(0))
    def lvl(s_, t):
        if s_ % 2 == 1:
            x, y = X[(s_ - 1) % 4], X[s_ % 4]
            a(f"v_permlane16_swap_b32 v{x}, v{y}"); a(f"v_add_f32 v{Y[(s_>>1)&1]}, v{x}, v{y}")
        if s_ % 4 == 3:
            z = Z[(s_ >> 2) & 1]
            a(f"v_add_f32_dpp v{z}, v{Y[0]}, v{Y[0]} row_ror:8 row_mask:0xf bank_mask:0x3")
            a(f"v_add_f32_dpp v{z}, v{Y[1]}, v{Y[1]} row_ror:8 row_mask:0xf bank_mask:0xc")
        if s_ % 8 == 7:
            w = W_[(s_ >> 3) & 1]
            a(f"v_add_f32_dpp v{w}, v{Z[0]}, v{Z[0]} row_shl:4 row_mask:0xf bank_mask:0x5")
            a(f"v_add_f32_dpp v{w}, v{Z[1]}, v{Z[1]} row_shr:4 row_mask:0xf bank_mask:0xa")
            a(f"v_add_f32_dpp v{w}, v{w}, v{w} quad_perm:[2,3,0,1] row_mask:0xf bank_mask:0xf")
        if s_ % 16 == 15:
            u = U[(s_ >> 4) & 1]
            a(f"v_cndmask_b32_e64 v{u}, v{W_[0]}, v{W_[1]}, s[{MB1}:{MB1+1}]")
            a(f"v_add_f32_dpp v{u}, v{u}, v{u} quad_perm:[1,0,3,2] row_mask:0xf bank_mask:0xf")
        if s_ == 31:
            a(f"v_cndmask_b32_e64 v{SC[t//32]}, v{U[0]}, v{U[1]}, s[{MB0}:{MB0+1}]")
    for t in range(128):
        r = S(slot[t]); hreg = X[t % 4]
        a.waitv(("kv", t))
        a(f"v_dot2_f32_bf16 v{hreg}, v{r}, v{Q[0]}, 0")
        a(f"v_dot2_f32_bf16 v{hreg}, v{r+1}, v{Q[1]}, v{hreg}")
        a(f"v_dot2_f32_bf16 v{hreg}, v{r+2}, v{Q[2]}, v{hreg}")
        release(t)
        if t > 0: lvl((t - 1) % 32, t - 1)
        if t == 127: lvl(31, t)
        for f in hooks[t]: f()
        if bar and t % bar == bar - 1: a("s_barrier")
    stamp()
    a("s_mov_b32 s14, 0xffff0000")
    for j in (0, 2):
        a(f"v_cvt_pk_bf16_f32 v6, v{SC[j]}, v{SC[j+1]}")
        a(f"v_lshlrev_b32 v{SC[j]}, 16, v6"); a(f"v_and_b32 v{SC[j+1]}, s14, v6")
        a(f"v_mul_f32 v{SC[j]}, {SCALE:#x}, v{SC[j]}"); a(f"v_mul_f32 v{SC[j+1]}, {SCALE:#x}, v{SC[j+1]}")
        a(f"v_cvt_pk_bf16_f32 v6, v{SC[j]}, v{SC[j+1]}")
        a(f"v_lshlrev_b32 v{SC[j]}, 16, v6"); a(f"v_and_b32 v{SC[j+1]}, s14, v6")
    def wave_red(op, r, sdst):
        for m in ("quad_perm:[1,0,3,2] row_mask:0xf", "quad_perm:[2,3,0,1] row_mask:0xf", "row_half_mirror row_mask:0xf", "row_mirror row_mask:0xf",
                  "row_bcast:15 row_mask:0xa", "row_bcast:31 row_mask:0xc"):
            a(f"{op}_dpp v{r}, v{r}, v{r} {m} bank_mask:0xf")
        a(f"v_readlane_b32 s{sdst}, v{r}, 63")
    a(f"v_max3_f32 v6, v{SC[0]}, v{SC[1]}, v{SC[2]}"); a(f"v_max_f32 v6, v6, v{SC[3]}")
    wave_red("v_max_f32", 6, 20)
    a(f"v_mov_b32 v7, {LOG2E:#x}")
    a("v_mul_f32 v6, s20, v7")
    for j in range(4): a(f"v_fma_f32 v{SC[j]}, v{SC[j]}, v7, -v6")
    for j in range(4): a(f"v_exp_f32 v{SC[j]}, v{SC[j]}")
    a("v_bfrev_b32 v4, v0"); a("v_lshrrev_b32 v4, 27, v4"); a("v_lshlrev_b32 v4, 1, v4")
    a("v_lshrrev_b32 v11, 5, v0"); a("v_lshlrev_b32 v11, 8, v11"); a("s_lshl_b32 s13, s3, 9"); a("v_add_u32 v11, s13, v11")
    a("v_add_u32 v4, v4, v11")
    a(f"v_cvt_pk_bf16_f32 v8, v{SC[0]}, v{SC[1]}"); a(f"v_cvt_pk_bf16_f32 v9, v{SC[2]}, v{SC[3]}")
    a(f"ds_write_b16 v4, v8 offset:{LDS_P}"); a(f"ds_write_b16_d16_hi v4, v8 offset:{LDS_P+64}")
    a(f"ds_write_b16 v4, v9 offset:{LDS_P+128}"); a(f"ds_write_b16_d16_hi v4, v9 offset:{LDS_P+192}")
    a(f"v_add_f32 v6, v{SC[0]}, v{SC[1]}"); a(f"v_add_f32 v7, v{SC[2]}, v{SC[3]}"); a("v_add_f32 v6, v6, v7")
    wave_red("v_add_f32", 6, 21)
    a("v_mov_b32 v20, s20"); a("v_mov_b32 v21, s21")
    a(f"buffer_store_dwordx2 v[20:21], v5, {srd(ML)}, 0 offen sc1", tag="mlst")
    if proto:
        a.waitv("flagld")
        a("v_readfirstlane_b32 s13, v28")
        a("s_cmp_ge_u32 s13, 256"); a("s_cbranch_scc0 L_flag_slow")
        a.label("L_flag_ok")
    PB = [4, 24]
    VA = HR[6:12]; T = HR[0:6]; R_ = HR[12]
    a.waitl()
    a(f"ds_read_b128 {x4(PB[0])}, v11 offset:{LDS_P}", tag=("pb", 0))
    a(f"ds_read_b128 {x4(PB[1])}, v11 offset:{LDS_P+16}", tag=("pb", 1))
    for j in range(6): a(f"v_mov_b32 v{VA[j]}, 0")
    def mlload():
        a("v_lshlrev_b32 v8, 3, v0")
        a(f"buffer_load_dwordx2 v[8:9], v8, {srd(ML)}, 0 offen sc1", tag="ml")
    hooks[128 + 2 * mlld + 1].append(mlload)
    def mlproc():
        a.waitv("ml")
        r = R_
        if proto:
            a(f"v_max_u32 v{r}, v8, v9"); a(f"v_cmp_eq_u32 vcc, -1, v{r}")
            a("s_cbranch_vccnz L_ml_slow")
            a.label("L_ml_ok")
        a(f"v_mov_b32 v{r}, v8")
        for m in ("quad_perm:[1,0,3,2]", "quad_perm:[2,3,0,1]", "row_half_mirror", "row_mirror"):
            a(f"v_max_f32_dpp v{r}, v{r}, v{r} {m} row_mask:0xf bank_mask:0xf")
        a(f"v_sub_f32 v8, v8, v{r}"); a(f"v_mul_f32 v8, {LOG2E:#x}, v8"); a("v_exp_f32 v8, v8"); a("v_mul_f32 v8, v8, v9")
        for m in ("quad_perm:[1,0,3,2]", "quad_perm:[2,3,0,1]", "row_half_mirror", "row_mirror"):
            a(f"v_add_f32_dpp v8, v8, v8 {m} row_mask:0xf bank_mask:0xf")
        a(f"v_sub_f32 v{r}, s20, v{r}"); a(f"v_mul_f32 v{r}, {LOG2E:#x}, v{r}"); a(f"v_exp_f32 v{r}, v{r}")
        a("v_rcp_f32 v8, v8"); a(f"v_mul_f32 v{r}, v{r}, v8"); a(f"v_mul_f32 v{r}, s22, v{r}")
        a(f"v_readfirstlane_b32 s24, v{r}")
        a("s_lshl_b32 s13, s3, 10"); a("v_add_u32 v8, s13, v10")
        a("v_and_b32 v9, 31, v0"); a("v_lshlrev_b32 v9, 1, v9"); a(f"v_lshrrev_b32 v{r}, 5, v0"); a(f"v_add_u32 v9, v9, v{r}"); a("v_mul_u32_u24 v9, 6, v9")
        a("s_lshl_b32 s13, s3, 9"); a("v_add_u32 v9, s13, v9")
        a("v_lshl_add_u32 v29, v30, 6, s13")
        a("s_mul_i32 s8, s2, 1639"); a("s_lshr_b32 s8, s8, 16")
        a("s_mul_i32 s9, s8, 40"); a("s_sub_u32 s9, s2, s9")
        a(f"s_mul_i32 s13, s8, {64*2560}"); a("s_lshl_b32 s14, s9, 6"); a("s_add_u32 s13, s13, s14"); mk(RP, 38, "s13")
        a(f"s_mov_b32 s{RP+2}, {63*2560+64}"); a(f"s_mov_b32 s{RP+3}, 0x20000")
        a("s_mul_i32 s13, s8, 1280"); a("s_lshl_b32 s14, s9, 5"); a("s_add_u32 s13, s13, s14")
        mk(OUT, 34, "s13"); a(f"s_mov_b32 s{OUT+2}, 32"); a(f"s_mov_b32 s{OUT+3}, 0x20000")
        a("v_lshrrev_b32 v20, 2, v0"); a("v_mul_u32_u24 v20, 2560, v20"); a("v_and_b32 v21, 3, v0"); a("v_lshl_add_u32 v20, v21, 4, v20")
        a("v_lshrrev_b32 v22, 4, v0"); a("v_lshl_add_u32 v21, v21, 2, v22"); a("v_lshlrev_b32 v21, 1, v21")
        a("s_mov_b32 s25, 40960"); a("s_mov_b32 s26, 81920"); a("s_mov_b32 s27, 122880")
        a(f"s_mov_b32 s28, {spin}")
    hooks[128 + 2 * mlpr + 1].append(mlproc)
    for k in range(64):
        t = 128 + 2 * k
        a.waitv(("kv", t + 1))
        A_, B_ = S(slot[t]), S(slot[t + 1])
        for d in range(3):
            a(f"v_perm_b32 v{T[2*d]}, v{B_+d}, v{A_+d}, s{SLO}"); a(f"v_perm_b32 v{T[2*d+1]}, v{B_+d}, v{A_+d}, s{SHI}")
        release(t); release(t + 1)
        j4 = k // 4
        a.waitl(("pb", j4))
        pr = PB[j4 % 2] + k % 4
        for j in range(6): a(f"v_dot2c_f32_bf16 v{VA[j]}, v{T[j]}, v{pr}")
        if k % 4 == 3 and j4 + 2 < 16:
            a(f"ds_read_b128 {x4(PB[j4%2])}, v11 offset:{LDS_P+16*(j4+2)}", tag=("pb", j4 + 2))
        for f in hooks[t] + hooks[t + 1]: f()
        if bar and (t + 1) % bar == bar - 1 and t + 1 < 255 - D: a("s_barrier")
    stamp()
    for j in range(3): a(f"v_permlane32_swap_b32 v{VA[j]}, v{VA[j+3]}")
    for j in range(3): a(f"v_add_f32 v{VA[j]}, v{VA[j]}, v{VA[j+3]}")
    for j in range(3): a(f"v_mul_f32 v{4+j}, s24, v{VA[j]}")
    a(f"ds_write_b96 v8, v[4:6] offset:{LDS_O}")
    a.waitl(); a("s_barrier")
    RS = lambda w: S(40 + w)
    for w in range(8): a(f"ds_read_b96 {x3(RS(w))}, v10 offset:{LDS_O+1024*w}", tag=("or", w))
    for w in range(1, 8):
        a.waitl(("or", w))
        for j in range(3): a(f"v_add_f32 v{RS(0)+j}, v{RS(0)+j}, v{RS(w)+j}")
    a(f"v_cvt_pk_bf16_f32 v4, v{RS(0)}, v{RS(0)+1}"); a(f"v_cvt_pk_bf16_f32 v5, v{RS(0)+2}, v{RS(0)+2}")
    a(f"ds_write_b16 v9, v4 offset:{LDS_OB}"); a(f"ds_write_b16_d16_hi v9, v4 offset:{LDS_OB+2}"); a(f"ds_write_b16 v9, v5 offset:{LDS_OB+4}")
    a.waitl()
    OP = [S(48 + i) for i in range(4)]
    for i in range(4): a(f"ds_read_b128 {x4(OP[i])}, v29 offset:{LDS_OB+16*i}", tag=("ob", i))
    for k in range(16):
        a.waitl(("ob", k // 4))
        for j in range(8): a(f"v_dot2c_f32_bf16 v{ACC[j]}, v{WP[k][j]}, v{OP[k//4]+k%4}")
    for j in range(4): a(f"v_permlane32_swap_b32 v{ACC[j]}, v{ACC[j+4]}")
    for j in range(4): a(f"v_add_f32 v{ACC[j]}, v{ACC[j]}, v{ACC[j+4]}")
    for j in range(4): a(f"v_add_f32_dpp v{4+j}, v{ACC[j]}, v{ACC[j]} row_shl:5 row_mask:0xf bank_mask:0xf")
    for j in range(4): a(f"v_add_f32_dpp v{4+j}, v{ACC[j]}, v{4+j} row_shl:10 row_mask:0xf bank_mask:0xf")
    for j in range(4): a(f"v_min_u32 v{4+j}, -2, v{4+j}")
    a("s_mov_b32 exec_lo, 0x001f001f"); a("s_mov_b32 exec_hi, 0x001f001f")
    a(f"buffer_store_dwordx4 v[4:7], v31, {srd(P)}, 0 offen sc1")
    a("s_mov_b64 exec, -1")
    stamp()
    a("s_cmp_lg_u32 s3, 0"); a("s_cbranch_scc1 L_fin")
    a("s_cmp_ge_u32 s2, 160"); a("s_cbranch_scc1 L_fin")
    a.label("L_poll")
    for i in range(4):
        a(f"buffer_load_dwordx4 {x4(32+4*i)}, v20, {srd(RP)}, {['0','s25','s26','s27'][i]} offen sc1")
    a.waitv_all()
    a("v_max3_u32 v4, v32, v33, v34")
    for i in range(35, 47, 2): a(f"v_max3_u32 v4, v4, v{i}, v{i+1}")
    a("v_max_u32 v4, v4, v47")
    a("v_cmp_eq_u32 vcc, -1, v4")
    a("s_sub_u32 s28, s28, 1"); a("s_cbranch_scc1 L_red")
    a("s_cbranch_vccnz L_poll")
    a.label("L_red")
    for j in range(4):
        a(f"v_add_f32 v{32+j}, v{32+j}, v{36+j}"); a(f"v_add_f32 v{40+j}, v{40+j}, v{44+j}")
    for j in range(4): a(f"v_add_f32 v{32+j}, v{32+j}, v{40+j}")
    a("v_permlane32_swap_b32 v32, v34"); a("v_permlane32_swap_b32 v33, v35")
    a("v_add_f32 v32, v32, v34"); a("v_add_f32 v33, v33, v35")
    a("v_permlane16_swap_b32 v32, v33"); a("v_add_f32 v32, v32, v33")
    a("v_add_f32_dpp v32, v32, v32 row_ror:8 row_mask:0xf bank_mask:0xf")
    a("v_add_f32_dpp v32, v32, v32 row_ror:4 row_mask:0xf bank_mask:0xf")
    a("v_cvt_pk_bf16_f32 v32, v32, v32")
    a("s_mov_b32 exec_lo, 0x000f000f"); a("s_mov_b32 exec_hi, 0x000f000f")
    a(f"buffer_store_short v32, v21, {srd(OUT)}, 0 offen")
    a("s_mov_b64 exec, -1")
    if stamps:
        a.waitv_all()
        a("s_memrealtime s[14:15]"); a.waitl(); a(f"v_writelane_b32 v3, s14, {nst[0]}")
    a.label("L_fin")
    if stamps:
        a("s_lshl_b32 s13, s2, 3"); a("s_add_u32 s13, s13, s3"); a("s_lshl_b32 s13, s13, 5"); a(f"s_add_u32 s13, s13, {STOFF}")
        mk(RP, 38, "s13"); a(f"s_mov_b32 s{RP+2}, 32"); a(f"s_mov_b32 s{RP+3}, 0x20000")
        a("v_lshlrev_b32 v1, 2, v0")
        a(f"buffer_store_dword v3, v1, {srd(RP)}, 0 offen")
        if stamps > 1:
            a("s_cmp_lg_u32 s3, 0"); a("s_cbranch_scc1 L_end")
            a("v_mov_b32_dpp v4, v3 row_shr:8 row_mask:0xf bank_mask:0xf")
            a("v_cmp_eq_u32 vcc, 0, v4"); a("v_not_b32 v4, v4"); a("v_cndmask_b32_e64 v4, v4, 0, vcc")
            a("v_cmp_gt_u32 vcc, 8, v0"); a("v_cndmask_b32 v4, v4, v3, vcc")
            a("s_mov_b64 exec, 0x7f7f")
            a(f"buffer_atomic_umax v4, v1, {srd(DBG)}, 0 offen offset:4 sc1")
    if probe >= 0:
        a("s_cmp_lg_u32 s3, 0"); a("s_cbranch_scc1 L_end");
        if pwg >= 0: a(f"s_cmp_lg_u32 s2, {pwg}"); a("s_cbranch_scc1 L_end")
        a(f"v_readlane_b32 s8, v3, {probe}"); a("s_add_u32 s8, s8, 12000"); a("s_mov_b32 s9, 100000")
        a.label("L_pr")
        a("s_memrealtime s[14:15]"); a.waitl()
        a("s_sub_u32 s9, s9, 1"); a("s_cbranch_scc1 L_end")
        a("s_sub_u32 s10, s14, s8"); a("s_cmp_lt_i32 s10, 0"); a("s_cbranch_scc1 L_pr")
    a.label("L_end")
    a("s_endpgm")
    if proto:
        a.vm = []; a.lg = []; a.pend = {}
        a.label("L_flag_slow")
        a(f"s_mov_b32 s28, {spin}")
        a.label("L_flag_loop")
        a("s_sleep 8")
        a(f"buffer_load_dword v28, off, {srd(DBG)}, 0 sc1"); a.waitv_all()
        a("v_readfirstlane_b32 s13, v28")
        a("s_sub_u32 s28, s28, 1"); a("s_cbranch_scc1 L_flag_ok")
        a("s_cmp_ge_u32 s13, 256"); a("s_cbranch_scc0 L_flag_loop")
        a("s_branch L_flag_ok")
        a.label("L_ml_slow")
        a(f"s_mov_b32 s28, {spin}")
        a.label("L_ml_loop")
        a("s_sleep 8")
        a("v_lshlrev_b32 v8, 3, v0")
        a(f"buffer_load_dwordx2 v[8:9], v8, {srd(ML)}, 0 offen sc1"); a.waitv_all()
        a(f"v_max_u32 v{HR[12]}, v8, v9"); a(f"v_cmp_eq_u32 vcc, -1, v{HR[12]}")
        a("s_sub_u32 s28, s28, 1"); a("s_cbranch_scc1 L_ml_ok")
        a("s_cbranch_vccnz L_ml_loop")
        a("s_branch L_ml_ok")
    a.raw('.section .rodata,"a"'); a.raw(".p2align 6"); a.raw(f".amdhsa_kernel {KN}_kernel")
    for l in ["next_free_vgpr 256", "next_free_sgpr 102", "accum_offset 256", "group_segment_fixed_size 0", "kernarg_size 96", "user_sgpr_count 2",
              "user_sgpr_kernarg_segment_ptr 1", "system_sgpr_workgroup_id_x 1"]: a.raw("  .amdhsa_" + l)
    a.raw(".end_amdhsa_kernel")
    sys.stderr.write(f"slots {a.n} nops {a.nops} maxv {a.maxv} tf1 {tf1} tf2 {tf2}\n")
    return a.text()

if __name__ == "__main__":
    out = sys.argv[1]
    kw = {}
    for kv in sys.argv[2:]:
        k, v = kv.split("=")
        kw[k] = int(v) if v.lstrip("-").isdigit() else v.replace("+", " ")
    open(out, "w").write(gen(**kw))
```

```python
import re
TRANS = ("v_exp_f32", "v_log_f32", "v_rcp_f32", "v_rsq_f32", "v_sqrt_f32", "v_sin_f32", "v_cos_f32")

def regs(tok):
    tok = tok.strip()
    tok = tok.lstrip("-").strip("|")
    m = re.fullmatch(r"([vs])(\d+)", tok)
    if m: return [(m.group(1), int(m.group(2)))]
    m = re.fullmatch(r"([vs])\[(\d+):(\d+)\]", tok)
    if m: return [(m.group(1), i) for i in range(int(m.group(2)), int(m.group(3)) + 1)]
    if tok == "vcc": return [("s", 106), ("s", 107)]
    if tok == "vcc_lo": return [("s", 106)]
    if tok == "vcc_hi": return [("s", 107)]
    if tok == "exec": return [("s", 126), ("s", 127)]
    if tok == "m0": return [("s", 124)]
    return []

class Asm:
    def __init__(self):
        self.L = []
        self.n = 0
        self.vw = {}
        self.sw = {}
        self.stw = {}
        self.m0w = -100
        self.vm = []
        self.lg = []
        self.maxv = 0
        self.nops = 0
        self.optset = []
        self.pend = {}
    def raw(self, s): self.L.append(s)
    def comment(self, s): self.L.append("; " + s)
    def label(self, s):
        self.fence(); self.L.append(s + ":")
    def fence(self):
        need = 0
        for (sl, k, o) in self.vw.values(): need = max(need, 3 - (self.n - sl - 1))
        for sl in self.sw.values(): need = max(need, 5 - (self.n - sl - 1))
        for sl in self.stw.values(): need = max(need, 2 - (self.n - sl - 1))
        if need > 0: self.nop(need)
    def nop(self, k):
        while k > 0:
            c = min(k, 16); self.L.append(f"s_nop {c-1}"); self.n += c; k -= c; self.nops += 1
    def __call__(self, s, tag=None, opt=False):
        s = s.strip()
        op, _, rest = s.partition(" ")
        parts = [p.strip() for p in re.split(r",(?![^\[]*\])", rest)] if rest else []
        mods = ""
        if parts:
            last = parts[-1].split(None, 1)
            if len(last) > 1: parts[-1] = last[0]; mods = last[1]
        m = re.search(r"offset:(\d+)", s)
        if m and op.startswith("buffer"): assert int(m.group(1)) < 4096, s
        if m and op.startswith("ds_"): assert int(m.group(1)) < 65536, s
        isv = op.startswith("v_"); isbuf = op.startswith("buffer_") or op.startswith("global_"); isds = op.startswith("ds_")
        dst = []; src = []; srcC = []
        if isv:
            base = op.replace("_e64", "").replace("_e32", "").replace("_dpp", "")
            if "permlane" in op and "swap" in op:
                dst = regs(parts[0]) + regs(parts[1]); src = list(dst)
            else:
                dst = regs(parts[0]); src = [r for p in parts[1:] for r in regs(p)]
                if base in ("v_add_co_u32", "v_addc_co_u32"): dst += regs(parts[1])
                if base.startswith("v_dot2c") or base.startswith("v_fmac"):
                    srcC = regs(parts[0])
                elif base.startswith("v_dot2_"):
                    srcC = regs(parts[3]); src = regs(parts[1]) + regs(parts[2])
                if base == "v_cndmask_b32" and len(parts) == 3: src += regs("vcc")
        elif isbuf:
            if "load" in op and " lds" not in s and not s.endswith("lds"):
                dst = regs(parts[0]); src = [r for p in parts[1:] for r in regs(p)]
            else:
                src = [r for p in parts for r in regs(p)]
                if "atomic" in op and ("sc0" in mods): dst = regs(parts[0])
        elif isds:
            if "read" in op or "permute" in op or "swizzle" in op or "rtn" in op:
                dst = regs(parts[0]); src = [r for p in parts[1:] for r in regs(p)]
            else: src = [r for p in parts for r in regs(p)]
        else:
            if op in ("s_waitcnt", "s_nop", "s_barrier", "s_endpgm", "s_sleep", "s_setprio") or op.startswith("s_cbranch") or op == "s_branch":
                pass
            elif op.startswith("s_cmp"): src = [r for p in parts for r in regs(p)]
            else:
                dst = regs(parts[0]); src = [r for p in parts[1:] for r in regs(p)]
        isdpp = isv and ("_dpp" in op or "quad_perm" in s or "row_" in s)
        isperm = isv and "permlane" in op
        isrl = op.startswith("v_readlane") or op.startswith("v_readfirstlane")
        base = op.replace("_e64", "").replace("_e32", "").replace("_dpp", "")
        need = 0
        def req(slot, ws):
            nonlocal need
            need = max(need, ws - (self.n - slot - 1))
        for r in src + srcC + dst:
            if r[0] == "v":
                self.maxv = max(self.maxv, r[1])
                assert r[1] not in self.pend, f"use of v{r[1]} with outstanding load {self.pend[r[1]]}: {s}"
        for r in src + srcC:
            if r[0] == "v" and r[1] in self.vw:
                sl, k, o = self.vw[r[1]]
                if k == "dot":
                    if not (o == base and r in srcC and r not in src): req(sl, 3)
                if isdpp or isperm: req(sl, 2)
                if isrl: req(sl, 1)
                if k == "trans" and isv and base not in TRANS: req(sl, 1)
                if k == "trans" and not isv: req(sl, 1)
            if r[0] == "s" and r[1] in self.sw:
                sl = self.sw[r[1]]
                if isv: req(sl, 4 if (op.startswith("v_readlane") or op.startswith("v_writelane")) else 2)
                if isbuf: req(sl, 5)
                if not isv and not isbuf: req(sl, 1)
        if isdpp and 126 in self.sw: req(self.sw[126], 5)
        for r in dst:
            if r[0] == "v":
                if r[1] in self.vw and self.vw[r[1]][1] == "dot" and not (self.vw[r[1]][2] == base and r in srcC): req(self.vw[r[1]][0], 3)
                if isdpp and r[1] in self.vw: req(self.vw[r[1]][0], 2)
                if r[1] in self.stw: req(self.stw[r[1]], 2)
        if op.startswith("s_cbranch_vcc") and 106 in self.sw: req(self.sw[106], 5)
        if isbuf and "lds" in mods.split(): req(self.m0w, 1)
        if need > 0: self.nop(need)
        self.L.append(s)
        slot = self.n; self.n += 1
        if isv:
            k = "dot" if base.startswith("v_dot") else ("trans" if base in TRANS else "valu")
            for r in dst:
                if r[0] == "v": self.vw[r[1]] = (slot, k, base)
                else: self.sw[r[1]] = slot
        else:
            for r in dst:
                if r[0] == "v": self.vw.pop(r[1], None)
                elif r[1] in self.sw: self.sw.pop(r[1])
                if r == ("s", 124): self.m0w = slot
        if isbuf:
            if "store" in op and ("x3" in op or "x4" in op):
                for r in regs(parts[0]): self.stw[r[1]] = slot
            t = tag if tag is not None else object()
            if opt: self.optset.append(t)
            self.vm.append(t)
            assert len(self.vm) <= 63, f"too many outstanding vmem at {s}"
            for r in dst: self.pend[r[1]] = t
        if isds:
            t = tag if tag is not None else object()
            self.lg.append(t)
            for r in dst: self.pend[r[1]] = t
            if len(self.lg) > 15:
                raise AssertionError("too many outstanding lds ops")
    def _retire(self, q, k):
        done = q[:k]; del q[:k]
        for r, t in list(self.pend.items()):
            if any(t is d or t == d for d in done): del self.pend[r]
    def waitv(self, tag, noretire=False):
        idx = [i for i, t in enumerate(self.vm) if t == tag]
        if not idx: return
        i = idx[-1]; n = sum(1 for t in self.vm[i+1:] if not any(t is o or t == o for o in self.optset))
        self.L.append(f"s_waitcnt vmcnt({n})"); self.n += 1
        if noretire: return
        self._retire(self.vm, i + 1)
    def waitv_all(self):
        self.L.append("s_waitcnt vmcnt(0)"); self.n += 1
        self._retire(self.vm, len(self.vm))
    def waitl(self, tag=None):
        if tag is None:
            self.L.append("s_waitcnt lgkmcnt(0)"); self.n += 1
            self._retire(self.lg, len(self.lg)); return
        idx = [i for i, t in enumerate(self.lg) if t == tag]
        if not idx: return
        i = idx[-1]; n = len(self.lg) - 1 - i
        self.L.append(f"s_waitcnt lgkmcnt({n})"); self.n += 1
        self._retire(self.lg, i + 1)
    def text(self): return "\n".join(self.L) + "\n"
```

```python
import sys, struct
from asmlib import Asm
KN = "gated_mix__gqa_block_cached__dense_activation_silu__decode"
def f2u(f): return struct.unpack("<I", struct.pack("<f", f))[0]
LOG2E = f2u(1.4426950408889634)
SCALE = f2u(192 ** -0.5)
MLOFF = 1 << 20
STOFF = 2 << 20
LDS_Q, LDS_O, LDS_F, LDS_P, LDS_OB, LDS_H = 0, 8192, 16384, 17408, 21504, 25600
LDS_SIZE = 26112

def gen(D=16, NP=48, WR=8, k0=2, pbar=2, bar=16, shr=3, stamps=0, kflags="nt", vflags="nt", wflags="nt", vsw=0, ksw=128, spin=200000,
        f1st=40, f1step=2, wost=60, wostep=4, mlld=30, mlpr=50, proto=1, npair=20, touch=0, xmap=0, probe=-1, pwg=0, early=0, skip=''):
    a = Asm()
    hdr = open("cdna_kernels/" + KN + ".s.ref").read().split("; Override launch")[0]
    a.raw(hdr.rstrip())
    a.raw(f"; @launch grid=(256,1,1) block=(512,1,1) lds={LDS_SIZE}")
    a.raw('.amdgcn_target "amdgcn-amd-amdhsa--gfx950"')
    a.raw(".text"); a.raw(f".globl {KN}_kernel"); a.raw(".p2align 8"); a.raw(f".type {KN}_kernel,@function"); a.raw(f"{KN}_kernel:")
    K, V, WQ, WO, W1, W2, XQ, XF, GW, P, ML, DBG, RP, OUT = [40 + 4 * i for i in range(14)]
    def srd(n): return f"s[{n}:{n+3}]"
    SLO, SHI, MB1, MB0 = 96, 97, 98, 100
    S = lambda s: 32 + 4 * s
    H = lambda s: 32 + 4 * s + 3
    def x2(r): return f"v[{r}:{r+1}]"
    def x3(r): return f"v[{r}:{r+2}]"
    def x4(r): return f"v[{r}:{r+3}]"
    HR = [H(56 - 16 + i) for i in range(16)]
    nst = [0]
    def stamp():
        if not stamps: return
        a("s_memrealtime s[14:15]"); a.waitl()
        a(f"v_writelane_b32 v3, s14, {nst[0]}")
        nst[0] += 1

    if early: a("s_memrealtime s[92:93]")
    a("s_cmp_ge_u32 s2, 256"); a("s_cbranch_scc1 L_end")
    a("s_load_dwordx16 s[16:31], s[0:1], 0")
    a("s_load_dwordx8 s[32:39], s[0:1], 64")
    a("v_lshrrev_b32 v1, 6, v0")
    a("v_lshlrev_b32 v11, 8, v0")
    a("v_readfirstlane_b32 s3, v1")
    a("v_and_b32 v0, 63, v0")
    a("s_and_b32 s8, s2, 7"); a("s_lshr_b32 s9, s2, 3")
    if not xmap:
        a("s_and_b32 s10, s9, 7")
        a("s_lshr_b32 s4, s10, 1"); a("s_and_b32 s6, s10, 1")
        a("s_andn2_b32 s5, s9, 7"); a("s_add_u32 s5, s5, s8")
    else:
        a("s_and_b32 s4, s9, 3")
        a("s_lshr_b32 s6, 0x3c, s8"); a("s_and_b32 s6, s6, 1")
        a("s_lshl_b32 s10, s8, 1"); a("s_lshr_b32 s5, 0xbe14, s10"); a("s_and_b32 s5, s5, 3")
        a("s_andn2_b32 s10, s9, 3"); a("s_add_u32 s5, s5, s10")
    a("s_lshl_b32 s7, s5, 1"); a("s_add_u32 s7, s7, s6")
    a("s_lshl_b32 s11, s4, 6"); a("s_add_u32 s11, s11, s7")
    a("s_mul_i32 s12, s11, 786432"); a("s_mul_i32 s13, s3, 768"); a("s_add_u32 s12, s12, s13")
    a("v_mul_u32_u24 v1, 12, v0")
    a("v_lshrrev_b32 v6, 5, v0")
    a("v_and_b32 v7, 31, v0")
    a("v_mul_u32_u24 v7, 12, v7")
    a(f"v_mul_u32_u24 v2, {40*12288}, v6"); a("v_add_u32 v2, v2, v7")
    a("v_mul_u32_u24 v10, 80, v6")
    for n in (K, WQ, XQ): a(f"s_mov_b32 s{n+3}, 0x20000")
    a(f"s_mov_b32 s{K+2}, {786432-7*768}")
    a(f"s_mov_b32 s{WQ+2}, {79*12288+384}")
    a(f"s_mov_b32 s{XQ+2}, 160")
    if not xmap:
        a("s_lshl_b32 s7, s8, 3"); a("s_lshr_b32 s9, s9, 3"); a("s_lshl_b32 s9, s9, 1"); a("s_add_u32 s7, s7, s9"); a("s_add_u32 s7, s7, s6")
    else:
        a("s_lshl_b32 s7, s8, 3"); a("s_lshr_b32 s9, s9, 2"); a("s_add_u32 s7, s7, s9")
    a("s_mul_i32 s8, s3, 160")
    a("s_mul_i32 s9, s4, 1280")
    a(f"s_mul_i32 s13, s3, {80*12288}"); a("s_mul_i32 s10, s5, 384"); a("s_add_u32 s13, s13, s10")
    a("s_add_u32 s10, s9, s8")
    if stamps: a("v_mov_b32 v3, 0")
    a.waitl()
    stamp()
    if early: a("v_writelane_b32 v3, s92, 7")
    def mk(n, ptr, off):
        a(f"s_add_u32 s{n}, s{ptr}, {off}"); a(f"s_addc_u32 s{n+1}, s{ptr+1}, 0")
    mk(K, 18, "s12")
    free = []; slot = {}
    init = list(range(56 - D, 56)) + list(range(55 - D, WR - 1, -1))
    assert NP <= len(init)
    kn = [0]
    def kvf(t):
        fl = (kflags if t < ksw else "nt") if t < 128 else (vflags if t - 128 >= vsw else "nt")
        return "" if fl == "-" else fl
    if wflags == "-": wflags = ""
    def kload(sl):
        t = kn[0]
        if t >= 256: return
        kn[0] += 1; slot[t] = sl
        a(f"s_mov_b32 s18, {(t%128)*6144}")
        a(f"buffer_load_dwordx3 {x3(S(sl))}, v1, {srd(K if t < 128 else V)}, s18 offen {kvf(t)}", tag=("kv", t))
    def wqload(i):
        a(f"s_mov_b32 s19, {i*12288}")
        a(f"buffer_load_dwordx3 {x3(S(i%WR))}, v2, {srd(WQ)}, s19 offen {wflags}", tag=("wq", i))
    for t in range(k0): kload(init[kn[0]])
    mk(XQ, 16, "s10"); mk(WQ, 22, "s13")
    for i in range(5): a(f"buffer_load_dwordx4 {x4(12+4*i)}, v10, {srd(XQ)}, 0 offen offset:{16*i} {wflags}", tag=("xq", i))
    def kfill(p):
        tgt = k0 + (NP - k0) * (p + 1) // npair
        while kn[0] < tgt: kload(init[kn[0]])
    def setup2():
        a(f"s_mov_b32 s{SLO}, 0x05040100"); a(f"s_mov_b32 s{SHI}, 0x07060302")
        a(f"s_mov_b32 s{MB1}, 0xcccccccc"); a(f"s_mov_b32 s{MB1+1}, 0xcccccccc")
        a(f"s_mov_b32 s{MB0}, 0xaaaaaaaa"); a(f"s_mov_b32 s{MB0+1}, 0xaaaaaaaa")
        for n in (V, WO, W1, W2, XF, GW, P, ML, DBG): a(f"s_mov_b32 s{n+3}, 0x20000")
        a(f"s_mov_b32 s{V+2}, {786432-7*768}")
        a(f"s_mov_b32 s{WO+2}, {191*1280+160}")
        a("s_mul_i32 s13, s7, 48"); a(f"s_sub_u32 s{W1+2}, {640*3072}, s13"); mk(W1, 28, "s13")
        a(f"s_mov_b32 s{W2+2}, {23*1280+160}")
        a(f"s_mov_b32 s{XF+2}, 1280"); a(f"s_mov_b32 s{GW+2}, 1280")
        a(f"s_mov_b32 s{P+2}, 320"); a(f"s_mov_b32 s{ML+2}, 128"); a(f"s_mov_b32 s{DBG+2}, 256")
        mk(XF, 16, "s9"); mk(GW, 32, "0"); mk(V, 20, "s12")
        a(f"s_mul_i32 s13, s5, {192*1280}"); a("s_add_u32 s13, s13, s8"); mk(WO, 24, "s13")
        a(f"s_mul_i32 s13, s7, {24*1280}"); a("s_add_u32 s13, s13, s8"); mk(W2, 30, "s13")
        a("s_mul_i32 s13, s11, 2560"); a("s_lshl_b32 s14, s8, 1"); a("s_add_u32 s13, s13, s14"); mk(P, 38, "s13")
        a("s_lshr_b32 s13, s11, 1"); a("s_lshl_b32 s13, s13, 7"); a(f"s_add_u32 s13, s13, {MLOFF}"); mk(ML, 38, "s13")
        mk(DBG, 36, "0")
        for i in range(6, 10): a(f"v_mov_b32 v{i}, -1")
        a("v_lshlrev_b32 v10, 4, v0")
        a("s_lshl_b32 s13, s6, 3"); a("s_add_u32 s13, s13, s3"); a("s_lshl_b32 s13, s13, 3")
        a("v_lshlrev_b32 v5, 7, v0"); a("v_add_u32 v5, s13, v5")
        if touch:
            a("v_mov_b32 v4, 0"); a(f"v_mov_b32 v{HR[15]}, {786432-8*768}")
            a("s_mov_b64 exec, 1")
            a(f"buffer_load_dword v{HR[14]}, v4, {srd(V)}, 0 offen nt"); a.pend.pop(HR[14])
            a(f"buffer_load_dword v{HR[14]}, v{HR[15]}, {srd(V)}, 0 offen nt"); a.pend.pop(HR[14])
            a(f"buffer_load_dword v{HR[14]}, v{HR[15]}, {srd(K)}, 0 offen nt"); a.pend.pop(HR[14])
            if touch > 1:
                a(f"buffer_load_dword v{HR[14]}, v4, {srd(WO)}, 0 offen"); a.pend.pop(HR[14])
                a(f"buffer_load_dword v{HR[14]}, v4, {srd(W1)}, 0 offen"); a.pend.pop(HR[14])
                a(f"buffer_load_dword v{HR[14]}, v4, {srd(W2)}, 0 offen"); a.pend.pop(HR[14])
            a("s_mov_b64 exec, -1")
        if proto:
            a(f"buffer_store_dwordx4 v[6:9], v10, {srd(P)}, 0 offen sc1", tag="clr0")
            a(f"buffer_store_dwordx2 v[6:7], v5, {srd(ML)}, 0 offen sc1", tag="clr1")
    for p in range(min(npair, WR // 2)):
        wqload(2 * p); wqload(2 * p + 1); kfill(p)
        if p == 0: setup2()
        if pbar and p % pbar == pbar - 1: a("s_barrier")
    T = HR[0:6]; QA = [6, 7, 8, 9, HR[6], HR[7]]
    for j in range(6): a(f"v_mov_b32 v{QA[j]}, 0")
    stamp()
    for k in range(npair):
        a.waitv(("wq", 2 * k + 1))
        A_, B_ = S((2 * k) % WR), S((2 * k + 1) % WR)
        for d in range(3):
            a(f"v_perm_b32 v{T[2*d]}, v{B_+d}, v{A_+d}, s{SLO}"); a(f"v_perm_b32 v{T[2*d+1]}, v{B_+d}, v{A_+d}, s{SHI}")
        pn = k + WR // 2
        if pn < npair:
            wqload(2 * pn); wqload(2 * pn + 1); kfill(pn)
        for j in range(6): a(f"v_dot2c_f32_bf16 v{QA[j]}, v{T[j]}, v{12+k}")
        if pbar and pn < npair and pn % pbar == pbar - 1: a("s_barrier")
    for j in range(3): a(f"v_permlane32_swap_b32 v{QA[j]}, v{QA[j+3]}")
    for j in range(3): a(f"v_add_f32 v{QA[j]}, v{QA[j]}, v{QA[j+3]}")
    a("s_lshl_b32 s13, s3, 10"); a(f"v_add_u32 v{T[0]}, s13, v10")
    a(f"ds_write_b128 v{T[0]}, v[6:9] offset:{LDS_Q}")
    if proto: a.waitv("clr1")
    a.waitl()
    a("s_barrier")
    for w in range(8): a(f"ds_read_b96 {x3(S(w))}, v10 offset:{LDS_Q+1024*w}", tag=("qr", w))
    if proto:
        a("v_mov_b32 v12, 1")
        a(f"buffer_atomic_add v12, v11, {srd(DBG)}, 0 offen sc1", tag="flag")
    a("v_and_b32 v13, 15, v0"); a("v_mul_u32_u24 v14, 52, v13"); a("v_lshrrev_b32 v14, 8, v14")
    a("v_mul_u32_u24 v15, 5, v14"); a("v_sub_u32 v13, v13, v15")
    a("v_bfe_u32 v15, v0, 4, 1"); a("v_mad_u32_u24 v13, v15, 5, v13")
    a("v_lshrrev_b32 v15, 5, v0"); a("v_mad_u32_u24 v16, v15, 3, v14")
    a("v_cmp_eq_u32 vcc, 3, v14"); a("v_cndmask_b32_e64 v16, v16, 6, vcc")
    a("v_lshlrev_b32 v17, 4, v13")
    a(f"v_mul_u32_u24 v2, {32*1280}, v16"); a("v_add_u32 v2, v2, v17")
    a(f"v_mul_u32_u24 v11, {4*1280}, v16"); a("v_add_u32 v11, v11, v17")
    a("v_lshlrev_b32 v17, 1, v17"); a("v_lshl_add_u32 v31, v15, 4, v17")
    a("v_mov_b32 v30, v16")
    for w in range(1, 8):
        a.waitl(("qr", w))
        for j in range(3): a(f"v_add_f32 v{S(0)+j}, v{S(0)+j}, v{S(w)+j}")
    for j in range(3): a(f"v_mov_b32 v{S(1)+j}, v{S(0)+j}")
    for j in range(3): a(f"v_permlane32_swap_b32 v{S(0)+j}, v{S(1)+j}")
    Q = [20, 21, 22]
    a(f"v_cvt_pk_bf16_f32 v20, v{S(0)}, v{S(0)+1}")
    a(f"v_cvt_pk_bf16_f32 v21, v{S(0)+2}, v{S(1)}")
    a(f"v_cvt_pk_bf16_f32 v22, v{S(1)+1}, v{S(1)+2}")
    stamp()
    ACC = list(range(12, 20)); SC = [24, 25, 26, 27]
    X = HR[0:4]; Y = HR[4:6]; Z = HR[6:8]; W_ = HR[8:10]; U = HR[10:12]
    hooks = {t: [] for t in range(256)}
    FS = list(range(0, 8))
    def f1addr():
        a("v_lshrrev_b32 v6, 2, v0"); a("v_mul_u32_u24 v6, 6, v6")
        a("s_mul_i32 s13, s3, 96"); a("v_add_u32 v6, s13, v6")
        a("v_lshlrev_b32 v7, 1, v6")
        a("v_mul_u32_u24 v6, 3072, v6"); a("v_and_b32 v8, 3, v0"); a("v_mad_u32_u24 v6, v8, 12, v6")
        a(f"buffer_load_dwordx3 {x3(S(FS[6]))}, v7, {srd(XF)}, 0 offen {wflags}", tag="xf")
        a(f"buffer_load_dwordx3 {x3(S(FS[7]))}, v7, {srd(GW)}, 0 offen {wflags}", tag="gw")
    hooks[f1st].append(f1addr)
    def w1load(i):
        def f():
            a(f"s_mov_b32 s19, {i*3072}")
            a(f"buffer_load_dwordx3 {x3(S(FS[i]))}, v6, {srd(W1)}, s19 offen {wflags}", tag=("w1", i))
        return f
    for i in range(6):
        if "w1" not in skip: hooks[f1st + 1 + f1step * i].append(w1load(i))
    tf1 = f1st + 1 + f1step * 5 + D + 2
    def ffn1():
        a.waitv(("w1", 5)); a.waitv("gw")
        F = [H(FS[i]) for i in range(8)]
        T = [4, 6, 7, 8, 9, 29]
        for k in range(3):
            for d in range(3):
                A_, B_ = S(FS[2 * k]) + d, S(FS[2 * k + 1]) + d
                a(f"v_perm_b32 v{T[2*d]}, v{B_}, v{A_}, s{SLO}"); a(f"v_perm_b32 v{T[2*d+1]}, v{B_}, v{A_}, s{SHI}")
            for j in range(6):
                a(f"v_dot2_f32_bf16 v{F[j]}, v{T[j]}, v{S(FS[6])+k}, {'0' if k == 0 else 'v%d' % F[j]}")
        a("s_mov_b32 s13, 0x3f803f80"); a("s_mov_b32 s14, 0xffff0000")
        for k in range(3):
            xr, gr = S(FS[6]) + k, S(FS[7]) + k
            a(f"v_lshlrev_b32 v{T[0]}, 16, v{xr}"); a(f"v_and_b32 v{T[1]}, s14, v{xr}")
            a(f"v_lshlrev_b32 v{T[2]}, 16, v{gr}"); a(f"v_and_b32 v{T[3]}, s14, v{gr}")
            a(f"v_mul_f32 v{T[0]}, v{T[0]}, v{T[2]}"); a(f"v_mul_f32 v{T[1]}, v{T[1]}, v{T[3]}")
            a(f"v_cvt_pk_bf16_f32 v{T[4]}, v{T[0]}, v{T[1]}")
            a(f"v_dot2_f32_bf16 v{F[6]}, v{T[4]}, s13, {'0' if k == 0 else 'v%d' % F[6]}")
        a(f"v_mov_b32 v{F[7]}, 0")
        for j in range(4): a(f"v_permlane32_swap_b32 v{F[j]}, v{F[j+4]}")
        for j in range(4): a(f"v_add_f32 v{T[j]}, v{F[j]}, v{F[j+4]}")
        for j in range(2): a(f"v_permlane16_swap_b32 v{T[j]}, v{T[j+2]}")
        for j in range(2): a(f"v_add_f32 v{T[j]}, v{T[j]}, v{T[j+2]}")
        a(f"v_lshrrev_b32 v{T[2]}, 3, v0"); a(f"v_lshlrev_b32 v{T[2]}, 4, v{T[2]}")
        a(f"v_add_f32_dpp v{T[0]}, v{T[0]}, v{T[0]} row_ror:8 row_mask:0xf bank_mask:0x3")
        a(f"v_and_b32 v{T[3]}, 3, v0"); a(f"v_lshl_add_u32 v{T[2]}, v{T[3]}, 2, v{T[2]}")
        a(f"v_add_f32_dpp v{T[0]}, v{T[1]}, v{T[1]} row_ror:8 row_mask:0xf bank_mask:0xc")
        a("s_lshl_b32 s13, s3, 7"); a(f"v_add_u32 v{T[2]}, s13, v{T[2]}")
        a(f"v_add_f32_dpp v{T[1]}, v{T[0]}, v{T[0]} row_shl:4 row_mask:0xf bank_mask:0x5")
        a(f"v_add_f32_dpp v{T[1]}, v{T[0]}, v{T[0]} row_shr:4 row_mask:0xf bank_mask:0xa")
        a(f"ds_write_b32 v{T[2]}, v{T[1]} offset:{LDS_F}")
        a.waitl()
    hooks[tf1].append(ffn1)
    def w2load(i):
        def f(): a(f"buffer_load_dwordx4 {x4(S(FS[i]))}, v11, {srd(W2)}, 0 offen offset:{1280*i} {wflags}", tag=("w2", i))
        return f
    for i in range(4):
        if "w2" not in skip: hooks[tf1 + 1 + 2 * i].append(w2load(i))
    tf2 = tf1 + 8 + D + 2
    assert bar and (tf2 // bar) > (tf1 // bar) and tf2 < 127, (tf1, tf2)
    def ffn2():
        a.waitv(("w2", 3))
        a("v_and_b32 v4, 31, v0"); a("v_lshlrev_b32 v4, 2, v4")
        for w in range(8): a(f"ds_read_b32 v{ACC[w]}, v4 offset:{LDS_F+128*w}")
        a("v_and_b32 v6, 3, v0"); a("v_mul_u32_u24 v6, 12, v6"); a("v_bfe_u32 v7, v0, 2, 3"); a("v_lshl_add_u32 v6, v7, 1, v6")
        a("v_cmp_lt_u32 vcc, 5, v7"); a("v_cndmask_b32_e64 v6, v6, 56, vcc")
        a("s_lshl_b32 s13, s3, 6"); a("v_add_u32 v6, s13, v6")
        a("v_lshl_add_u32 v4, v30, 3, s13")
        a.waitl()
        for w in range(1, 8): a(f"v_add_f32 v{ACC[0]}, v{ACC[0]}, v{ACC[w]}")
        a(f"v_cvt_pk_bf16_f32 v7, v{ACC[0]}, v{ACC[0]}"); a("v_lshlrev_b32 v7, 16, v7")
        a(f"v_mul_f32 v8, {LOG2E ^ 0x80000000:#x}, v7"); a("v_exp_f32 v8, v8"); a("v_add_f32 v8, 1.0, v8"); a("v_rcp_f32 v8, v8")
        a("v_mul_f32 v9, v7, v8"); a("v_cvt_pk_bf16_f32 v9, v9, v9")
        a(f"ds_write_b16 v6, v9 offset:{LDS_H}")
        a("v_cvt_pk_bf16_f32 v8, v8, v8"); a("v_lshlrev_b32 v8, 16, v8")
        a("v_sub_f32 v29, 1.0, v8"); a("v_cvt_pk_bf16_f32 v29, v29, v29"); a("v_lshlrev_b32 v29, 16, v29")
        a("v_readlane_b32 s22, v8, 24"); a("v_readlane_b32 s23, v29, 24")
        a.waitl()
        a(f"ds_read_b64 v[6:7], v4 offset:{LDS_H}")
        a.waitl()
        for k in range(2):
            for d in range(4):
                A_, B_ = S(FS[2 * k]) + d, S(FS[2 * k + 1]) + d
                a(f"v_perm_b32 v8, v{B_}, v{A_}, s{SLO}"); a(f"v_perm_b32 v9, v{B_}, v{A_}, s{SHI}")
                a(f"v_dot2_f32_bf16 v{ACC[2*d]}, v8, v{6+k}, {'0' if k == 0 else 'v%d' % ACC[2*d]}")
                a(f"v_dot2_f32_bf16 v{ACC[2*d+1]}, v9, v{6+k}, {'0' if k == 0 else 'v%d' % ACC[2*d+1]}")
        for j in range(8): a(f"v_mul_f32 v{ACC[j]}, s23, v{ACC[j]}")
    hooks[tf2].append(ffn2)
    WS = list(range(8, 40))
    assert wost >= NP
    WP = [[None] * 8 for _ in range(16)]
    spare = [23]
    def woload(i):
        def f():
            a(f"s_mov_b32 s19, {i*1280}")
            a(f"buffer_load_dwordx4 {x4(S(WS[i]))}, v2, {srd(WO)}, s19 offen {wflags}", tag=("wo", i))
        return f
    def woperm(k):
        def f():
            a.waitv(("wo", 2 * k + 1))
            for d in range(4):
                A_, B_ = S(WS[2 * k]) + d, S(WS[2 * k + 1]) + d
                s = spare[0]
                a(f"v_perm_b32 v{s}, v{B_}, v{A_}, s{SLO}"); a(f"v_perm_b32 v{B_}, v{B_}, v{A_}, s{SHI}")
                WP[k][2 * d] = s; WP[k][2 * d + 1] = B_; spare[0] = A_
        return f
    for i in range(32):
        if "wo" not in skip: hooks[wost + wostep * i].append(woload(i))
    for k in range(16): hooks[min(255, wost + wostep * (2 * k + 1) + D + 3)].append(woperm(k))
    if proto: hooks[100].append(lambda: a(f"buffer_load_dword v28, off, {srd(DBG)}, 0 sc1", tag="flagld"))
    def release(t):
        if slot[t] >= 56 - D: free.append(slot[t])
        if free and (kn[0] - t - 1 < D or t % shr == shr - 1): kload(free.pop(0))
    def lvl(s_, t):
        if s_ % 2 == 1:
            x, y = X[(s_ - 1) % 4], X[s_ % 4]
            a(f"v_permlane16_swap_b32 v{x}, v{y}"); a(f"v_add_f32 v{Y[(s_>>1)&1]}, v{x}, v{y}")
        if s_ % 4 == 3:
            z = Z[(s_ >> 2) & 1]
            a(f"v_add_f32_dpp v{z}, v{Y[0]}, v{Y[0]} row_ror:8 row_mask:0xf bank_mask:0x3")
            a(f"v_add_f32_dpp v{z}, v{Y[1]}, v{Y[1]} row_ror:8 row_mask:0xf bank_mask:0xc")
        if s_ % 8 == 7:
            w = W_[(s_ >> 3) & 1]
            a(f"v_add_f32_dpp v{w}, v{Z[0]}, v{Z[0]} row_shl:4 row_mask:0xf bank_mask:0x5")
            a(f"v_add_f32_dpp v{w}, v{Z[1]}, v{Z[1]} row_shr:4 row_mask:0xf bank_mask:0xa")
            a(f"v_add_f32_dpp v{w}, v{w}, v{w} quad_perm:[2,3,0,1] row_mask:0xf bank_mask:0xf")
        if s_ % 16 == 15:
            u = U[(s_ >> 4) & 1]
            a(f"v_cndmask_b32_e64 v{u}, v{W_[0]}, v{W_[1]}, s[{MB1}:{MB1+1}]")
            a(f"v_add_f32_dpp v{u}, v{u}, v{u} quad_perm:[1,0,3,2] row_mask:0xf bank_mask:0xf")
        if s_ == 31:
            a(f"v_cndmask_b32_e64 v{SC[t//32]}, v{U[0]}, v{U[1]}, s[{MB0}:{MB0+1}]")
    for t in range(128):
        r = S(slot[t]); hreg = X[t % 4]
        a.waitv(("kv", t))
        a(f"v_dot2_f32_bf16 v{hreg}, v{r}, v{Q[0]}, 0")
        a(f"v_dot2_f32_bf16 v{hreg}, v{r+1}, v{Q[1]}, v{hreg}")
        a(f"v_dot2_f32_bf16 v{hreg}, v{r+2}, v{Q[2]}, v{hreg}")
        release(t)
        if t > 0: lvl((t - 1) % 32, t - 1)
        if t == 127: lvl(31, t)
        for f in hooks[t]: f()
        if bar and t % bar == bar - 1: a("s_barrier")
    stamp()
    a("s_mov_b32 s14, 0xffff0000")
    for j in (0, 2):
        a(f"v_cvt_pk_bf16_f32 v6, v{SC[j]}, v{SC[j+1]}")
        a(f"v_lshlrev_b32 v{SC[j]}, 16, v6"); a(f"v_and_b32 v{SC[j+1]}, s14, v6")
        a(f"v_mul_f32 v{SC[j]}, {SCALE:#x}, v{SC[j]}"); a(f"v_mul_f32 v{SC[j+1]}, {SCALE:#x}, v{SC[j+1]}")
        a(f"v_cvt_pk_bf16_f32 v6, v{SC[j]}, v{SC[j+1]}")
        a(f"v_lshlrev_b32 v{SC[j]}, 16, v6"); a(f"v_and_b32 v{SC[j+1]}, s14, v6")
    def wave_red(op, r, sdst):
        for m in ("quad_perm:[1,0,3,2] row_mask:0xf", "quad_perm:[2,3,0,1] row_mask:0xf", "row_half_mirror row_mask:0xf", "row_mirror row_mask:0xf",
                  "row_bcast:15 row_mask:0xa", "row_bcast:31 row_mask:0xc"):
            a(f"{op}_dpp v{r}, v{r}, v{r} {m} bank_mask:0xf")
        a(f"v_readlane_b32 s{sdst}, v{r}, 63")
    a(f"v_max3_f32 v6, v{SC[0]}, v{SC[1]}, v{SC[2]}"); a(f"v_max_f32 v6, v6, v{SC[3]}")
    wave_red("v_max_f32", 6, 20)
    a(f"v_mov_b32 v7, {LOG2E:#x}")
    a("v_mul_f32 v6, s20, v7")
    for j in range(4): a(f"v_fma_f32 v{SC[j]}, v{SC[j]}, v7, -v6")
    for j in range(4): a(f"v_exp_f32 v{SC[j]}, v{SC[j]}")
    a("v_bfrev_b32 v4, v0"); a("v_lshrrev_b32 v4, 27, v4"); a("v_lshlrev_b32 v4, 1, v4")
    a("v_lshrrev_b32 v11, 5, v0"); a("v_lshlrev_b32 v11, 8, v11"); a("s_lshl_b32 s13, s3, 9"); a("v_add_u32 v11, s13, v11")
    a("v_add_u32 v4, v4, v11")
    a(f"v_cvt_pk_bf16_f32 v8, v{SC[0]}, v{SC[1]}"); a(f"v_cvt_pk_bf16_f32 v9, v{SC[2]}, v{SC[3]}")
    a(f"ds_write_b16 v4, v8 offset:{LDS_P}"); a(f"ds_write_b16_d16_hi v4, v8 offset:{LDS_P+64}")
    a(f"ds_write_b16 v4, v9 offset:{LDS_P+128}"); a(f"ds_write_b16_d16_hi v4, v9 offset:{LDS_P+192}")
    a(f"v_add_f32 v6, v{SC[0]}, v{SC[1]}"); a(f"v_add_f32 v7, v{SC[2]}, v{SC[3]}"); a("v_add_f32 v6, v6, v7")
    wave_red("v_add_f32", 6, 21)
    a("v_mov_b32 v20, s20"); a("v_mov_b32 v21, s21")
    a(f"buffer_store_dwordx2 v[20:21], v5, {srd(ML)}, 0 offen sc1", tag="mlst")
    if proto:
        a.waitv("flagld")
        a("v_readfirstlane_b32 s13, v28")
        a("s_cmp_ge_u32 s13, 256"); a("s_cbranch_scc0 L_flag_slow")
        a.label("L_flag_ok")
    PB = [4, 24]
    VA = HR[6:12]; T = HR[0:6]; R_ = HR[12]
    a.waitl()
    a(f"ds_read_b128 {x4(PB[0])}, v11 offset:{LDS_P}", tag=("pb", 0))
    a(f"ds_read_b128 {x4(PB[1])}, v11 offset:{LDS_P+16}", tag=("pb", 1))
    for j in range(6): a(f"v_mov_b32 v{VA[j]}, 0")
    def mlload():
        a("v_lshlrev_b32 v8, 3, v0")
        a(f"buffer_load_dwordx2 v[8:9], v8, {srd(ML)}, 0 offen sc1", tag="ml")
    hooks[128 + 2 * mlld + 1].append(mlload)
    def mlproc():
        a.waitv("ml")
        r = R_
        if proto:
            a(f"v_max_u32 v{r}, v8, v9"); a(f"v_cmp_eq_u32 vcc, -1, v{r}")
            a("s_cbranch_vccnz L_ml_slow")
            a.label("L_ml_ok")
        a(f"v_mov_b32 v{r}, v8")
        for m in ("quad_perm:[1,0,3,2]", "quad_perm:[2,3,0,1]", "row_half_mirror", "row_mirror"):
            a(f"v_max_f32_dpp v{r}, v{r}, v{r} {m} row_mask:0xf bank_mask:0xf")
        a(f"v_sub_f32 v8, v8, v{r}"); a(f"v_mul_f32 v8, {LOG2E:#x}, v8"); a("v_exp_f32 v8, v8"); a("v_mul_f32 v8, v8, v9")
        for m in ("quad_perm:[1,0,3,2]", "quad_perm:[2,3,0,1]", "row_half_mirror", "row_mirror"):
            a(f"v_add_f32_dpp v8, v8, v8 {m} row_mask:0xf bank_mask:0xf")
        a(f"v_sub_f32 v{r}, s20, v{r}"); a(f"v_mul_f32 v{r}, {LOG2E:#x}, v{r}"); a(f"v_exp_f32 v{r}, v{r}")
        a("v_rcp_f32 v8, v8"); a(f"v_mul_f32 v{r}, v{r}, v8"); a(f"v_mul_f32 v{r}, s22, v{r}")
        a(f"v_readfirstlane_b32 s24, v{r}")
        a("s_lshl_b32 s13, s3, 10"); a("v_add_u32 v8, s13, v10")
        a("v_and_b32 v9, 31, v0"); a("v_lshlrev_b32 v9, 1, v9"); a(f"v_lshrrev_b32 v{r}, 5, v0"); a(f"v_add_u32 v9, v9, v{r}"); a("v_mul_u32_u24 v9, 6, v9")
        a("s_lshl_b32 s13, s3, 9"); a("v_add_u32 v9, s13, v9")
        a("v_lshl_add_u32 v29, v30, 6, s13")
        a("s_mul_i32 s8, s2, 1639"); a("s_lshr_b32 s8, s8, 16")
        a("s_mul_i32 s9, s8, 40"); a("s_sub_u32 s9, s2, s9")
        a(f"s_mul_i32 s13, s8, {64*2560}"); a("s_lshl_b32 s14, s9, 6"); a("s_add_u32 s13, s13, s14"); mk(RP, 38, "s13")
        a(f"s_mov_b32 s{RP+2}, {63*2560+64}"); a(f"s_mov_b32 s{RP+3}, 0x20000")
        a("s_mul_i32 s13, s8, 1280"); a("s_lshl_b32 s14, s9, 5"); a("s_add_u32 s13, s13, s14")
        mk(OUT, 34, "s13"); a(f"s_mov_b32 s{OUT+2}, 32"); a(f"s_mov_b32 s{OUT+3}, 0x20000")
        a("v_lshrrev_b32 v20, 2, v0"); a("v_mul_u32_u24 v20, 2560, v20"); a("v_and_b32 v21, 3, v0"); a("v_lshl_add_u32 v20, v21, 4, v20")
        a("v_lshrrev_b32 v22, 4, v0"); a("v_lshl_add_u32 v21, v21, 2, v22"); a("v_lshlrev_b32 v21, 1, v21")
        a("s_mov_b32 s25, 40960"); a("s_mov_b32 s26, 81920"); a("s_mov_b32 s27, 122880")
        a(f"s_mov_b32 s28, {spin}")
    hooks[128 + 2 * mlpr + 1].append(mlproc)
    for k in range(64):
        t = 128 + 2 * k
        a.waitv(("kv", t + 1))
        A_, B_ = S(slot[t]), S(slot[t + 1])
        for d in range(3):
            a(f"v_perm_b32 v{T[2*d]}, v{B_+d}, v{A_+d}, s{SLO}"); a(f"v_perm_b32 v{T[2*d+1]}, v{B_+d}, v{A_+d}, s{SHI}")
        release(t); release(t + 1)
        j4 = k // 4
        a.waitl(("pb", j4))
        pr = PB[j4 % 2] + k % 4
        for j in range(6): a(f"v_dot2c_f32_bf16 v{VA[j]}, v{T[j]}, v{pr}")
        if k % 4 == 3 and j4 + 2 < 16:
            a(f"ds_read_b128 {x4(PB[j4%2])}, v11 offset:{LDS_P+16*(j4+2)}", tag=("pb", j4 + 2))
        for f in hooks[t] + hooks[t + 1]: f()
        if bar and (t + 1) % bar == bar - 1 and t + 1 < 255 - D: a("s_barrier")
    stamp()
    for j in range(3): a(f"v_permlane32_swap_b32 v{VA[j]}, v{VA[j+3]}")
    for j in range(3): a(f"v_add_f32 v{VA[j]}, v{VA[j]}, v{VA[j+3]}")
    for j in range(3): a(f"v_mul_f32 v{4+j}, s24, v{VA[j]}")
    a(f"ds_write_b96 v8, v[4:6] offset:{LDS_O}")
    a.waitl(); a("s_barrier")
    RS = lambda w: S(40 + w)
    for w in range(8): a(f"ds_read_b96 {x3(RS(w))}, v10 offset:{LDS_O+1024*w}", tag=("or", w))
    for w in range(1, 8):
        a.waitl(("or", w))
        for j in range(3): a(f"v_add_f32 v{RS(0)+j}, v{RS(0)+j}, v{RS(w)+j}")
    a(f"v_cvt_pk_bf16_f32 v4, v{RS(0)}, v{RS(0)+1}"); a(f"v_cvt_pk_bf16_f32 v5, v{RS(0)+2}, v{RS(0)+2}")
    a(f"ds_write_b16 v9, v4 offset:{LDS_OB}"); a(f"ds_write_b16_d16_hi v9, v4 offset:{LDS_OB+2}"); a(f"ds_write_b16 v9, v5 offset:{LDS_OB+4}")
    a.waitl()
    OP = [S(48 + i) for i in range(4)]
    for i in range(4): a(f"ds_read_b128 {x4(OP[i])}, v29 offset:{LDS_OB+16*i}", tag=("ob", i))
    for k in range(16):
        a.waitl(("ob", k // 4))
        for j in range(8): a(f"v_dot2c_f32_bf16 v{ACC[j]}, v{WP[k][j]}, v{OP[k//4]+k%4}")
    for j in range(4): a(f"v_permlane32_swap_b32 v{ACC[j]}, v{ACC[j+4]}")
    for j in range(4): a(f"v_add_f32 v{ACC[j]}, v{ACC[j]}, v{ACC[j+4]}")
    for j in range(4): a(f"v_add_f32_dpp v{4+j}, v{ACC[j]}, v{ACC[j]} row_shl:5 row_mask:0xf bank_mask:0xf")
    for j in range(4): a(f"v_add_f32_dpp v{4+j}, v{ACC[j]}, v{4+j} row_shl:10 row_mask:0xf bank_mask:0xf")
    for j in range(4): a(f"v_min_u32 v{4+j}, -2, v{4+j}")
    a("s_mov_b32 exec_lo, 0x001f001f"); a("s_mov_b32 exec_hi, 0x001f001f")
    a(f"buffer_store_dwordx4 v[4:7], v31, {srd(P)}, 0 offen sc1")
    a("s_mov_b64 exec, -1")
    stamp()
    a("s_cmp_lg_u32 s3, 0"); a("s_cbranch_scc1 L_fin")
    a("s_cmp_ge_u32 s2, 160"); a("s_cbranch_scc1 L_fin")
    a.label("L_poll")
    for i in range(4):
        a(f"buffer_load_dwordx4 {x4(32+4*i)}, v20, {srd(RP)}, {['0','s25','s26','s27'][i]} offen sc1")
    a.waitv_all()
    a("v_max3_u32 v4, v32, v33, v34")
    for i in range(35, 47, 2): a(f"v_max3_u32 v4, v4, v{i}, v{i+1}")
    a("v_max_u32 v4, v4, v47")
    a("v_cmp_eq_u32 vcc, -1, v4")
    a("s_sub_u32 s28, s28, 1"); a("s_cbranch_scc1 L_red")
    a("s_cbranch_vccnz L_poll")
    a.label("L_red")
    for j in range(4):
        a(f"v_add_f32 v{32+j}, v{32+j}, v{36+j}"); a(f"v_add_f32 v{40+j}, v{40+j}, v{44+j}")
    for j in range(4): a(f"v_add_f32 v{32+j}, v{32+j}, v{40+j}")
    a("v_permlane32_swap_b32 v32, v34"); a("v_permlane32_swap_b32 v33, v35")
    a("v_add_f32 v32, v32, v34"); a("v_add_f32 v33, v33, v35")
    a("v_permlane16_swap_b32 v32, v33"); a("v_add_f32 v32, v32, v33")
    a("v_add_f32_dpp v32, v32, v32 row_ror:8 row_mask:0xf bank_mask:0xf")
    a("v_add_f32_dpp v32, v32, v32 row_ror:4 row_mask:0xf bank_mask:0xf")
    a("v_cvt_pk_bf16_f32 v32, v32, v32")
    a("s_mov_b32 exec_lo, 0x000f000f"); a("s_mov_b32 exec_hi, 0x000f000f")
    a(f"buffer_store_short v32, v21, {srd(OUT)}, 0 offen")
    a("s_mov_b64 exec, -1")
    if stamps:
        a.waitv_all()
        a("s_memrealtime s[14:15]"); a.waitl(); a(f"v_writelane_b32 v3, s14, {nst[0]}")
    a.label("L_fin")
    if stamps:
        a("s_lshl_b32 s13, s2, 3"); a("s_add_u32 s13, s13, s3"); a("s_lshl_b32 s13, s13, 5"); a(f"s_add_u32 s13, s13, {STOFF}")
        mk(RP, 38, "s13"); a(f"s_mov_b32 s{RP+2}, 32"); a(f"s_mov_b32 s{RP+3}, 0x20000")
        a("v_lshlrev_b32 v1, 2, v0")
        a(f"buffer_store_dword v3, v1, {srd(RP)}, 0 offen")
        if stamps > 1:
            a("s_cmp_lg_u32 s3, 0"); a("s_cbranch_scc1 L_end")
            a("v_mov_b32_dpp v4, v3 row_shr:8 row_mask:0xf bank_mask:0xf")
            a("v_cmp_eq_u32 vcc, 0, v4"); a("v_not_b32 v4, v4"); a("v_cndmask_b32_e64 v4, v4, 0, vcc")
            a("v_cmp_gt_u32 vcc, 8, v0"); a("v_cndmask_b32 v4, v4, v3, vcc")
            a("s_mov_b64 exec, 0x7f7f")
            a(f"buffer_atomic_umax v4, v1, {srd(DBG)}, 0 offen offset:4 sc1")
    if probe >= 0:
        a("s_cmp_lg_u32 s3, 0"); a("s_cbranch_scc1 L_end");
        if pwg >= 0: a(f"s_cmp_lg_u32 s2, {pwg}"); a("s_cbranch_scc1 L_end")
        a(f"v_readlane_b32 s8, v3, {probe}"); a("s_add_u32 s8, s8, 12000"); a("s_mov_b32 s9, 100000")
        a.label("L_pr")
        a("s_memrealtime s[14:15]"); a.waitl()
        a("s_sub_u32 s9, s9, 1"); a("s_cbranch_scc1 L_end")
        a("s_sub_u32 s10, s14, s8"); a("s_cmp_lt_i32 s10, 0"); a("s_cbranch_scc1 L_pr")
    a.label("L_end")
    a("s_endpgm")
    if proto:
        a.vm = []; a.lg = []; a.pend = {}
        a.label("L_flag_slow")
        a(f"s_mov_b32 s28, {spin}")
        a.label("L_flag_loop")
        a("s_sleep 8")
        a(f"buffer_load_dword v28, off, {srd(DBG)}, 0 sc1"); a.waitv_all()
        a("v_readfirstlane_b32 s13, v28")
        a("s_sub_u32 s28, s28, 1"); a("s_cbranch_scc1 L_flag_ok")
        a("s_cmp_ge_u32 s13, 256"); a("s_cbranch_scc0 L_flag_loop")
        a("s_branch L_flag_ok")
        a.label("L_ml_slow")
        a(f"s_mov_b32 s28, {spin}")
        a.label("L_ml_loop")
        a("s_sleep 8")
        a("v_lshlrev_b32 v8, 3, v0")
        a(f"buffer_load_dwordx2 v[8:9], v8, {srd(ML)}, 0 offen sc1"); a.waitv_all()
        a(f"v_max_u32 v{HR[12]}, v8, v9"); a(f"v_cmp_eq_u32 vcc, -1, v{HR[12]}")
        a("s_sub_u32 s28, s28, 1"); a("s_cbranch_scc1 L_ml_ok")
        a("s_cbranch_vccnz L_ml_loop")
        a("s_branch L_ml_ok")
    a.raw('.section .rodata,"a"'); a.raw(".p2align 6"); a.raw(f".amdhsa_kernel {KN}_kernel")
    for l in ["next_free_vgpr 256", "next_free_sgpr 102", "accum_offset 256", "group_segment_fixed_size 0", "kernarg_size 96", "user_sgpr_count 2",
              "user_sgpr_kernarg_segment_ptr 1", "system_sgpr_workgroup_id_x 1"]: a.raw("  .amdhsa_" + l)
    a.raw(".end_amdhsa_kernel")
    sys.stderr.write(f"slots {a.n} nops {a.nops} maxv {a.maxv} tf1 {tf1} tf2 {tf2}\n")
    return a.text()

if __name__ == "__main__":
    out = sys.argv[1]
    kw = {}
    for kv in sys.argv[2:]:
        k, v = kv.split("=")
        kw[k] = int(v) if v.lstrip("-").isdigit() else v.replace("+", " ")
    open(out, "w").write(gen(**kw))
```

```python
import sys, struct
from asmlib import Asm
KN = "gated_mix__gqa_block_cached__dense_activation_silu__decode"
def f2u(f): return struct.unpack("<I", struct.pack("<f", f))[0]
LOG2E = f2u(1.4426950408889634)
SCALE = f2u(192 ** -0.5)
MLOFF = 1 << 20
STOFF = 2 << 20
LDS_Q, LDS_O, LDS_F, LDS_P, LDS_OB, LDS_H = 0, 8192, 16384, 17408, 21504, 25600
LDS_SIZE = 26112

def gen(D=16, NP=48, WR=8, k0=2, pbar=2, bar=16, shr=3, stamps=0, kflags="nt", vflags="nt", wflags="nt", vsw=0, ksw=128, spin=200000,
        f1st=40, f1step=2, wost=60, wostep=4, mlld=30, mlpr=50, proto=1, npair=20, touch=0, xmap=0, probe=-1, pwg=0, early=0, skip='', hmap=0, rot=0, G2=0, stag=0, sg=0):
    a = Asm()
    hdr = open("cdna_kernels/" + KN + ".s.ref").read().split("; Override launch")[0]
    a.raw(hdr.rstrip())
    a.raw(f"; @launch grid=(256,1,1) block=(512,1,1) lds={LDS_SIZE}")
    a.raw('.amdgcn_target "amdgcn-amd-amdhsa--gfx950"')
    a.raw(".text"); a.raw(f".globl {KN}_kernel"); a.raw(".p2align 8"); a.raw(f".type {KN}_kernel,@function"); a.raw(f"{KN}_kernel:")
    K, V, WQ, WO, W1, W2, XQ, XF, GW, P, ML, DBG, RP, OUT = [40 + 4 * i for i in range(14)]
    def srd(n): return f"s[{n}:{n+3}]"
    SLO, SHI, MB1, MB0 = 96, 97, 98, 100
    S = lambda s: 32 + 4 * s
    H = lambda s: 32 + 4 * s + 3
    def x2(r): return f"v[{r}:{r+1}]"
    def x3(r): return f"v[{r}:{r+2}]"
    def x4(r): return f"v[{r}:{r+3}]"
    HR = [H(56 - 16 + i) for i in range(16)]
    nst = [0]
    def stamp():
        if not stamps: return
        a("s_memrealtime s[14:15]"); a.waitl()
        a(f"v_writelane_b32 v3, s14, {nst[0]}")
        nst[0] += 1

    if early: a("s_memrealtime s[92:93]")
    a("s_cmp_ge_u32 s2, 256"); a("s_cbranch_scc1 L_end")
    a("s_load_dwordx16 s[16:31], s[0:1], 0")
    a("s_load_dwordx8 s[32:39], s[0:1], 64")
    a("v_lshrrev_b32 v1, 6, v0")
    a("v_lshlrev_b32 v11, 8, v0")
    a("v_readfirstlane_b32 s3, v1")
    a("v_and_b32 v0, 63, v0")
    a("s_and_b32 s8, s2, 7"); a("s_lshr_b32 s9, s2, 3")
    if not xmap:
        a("s_and_b32 s10, s9, 7")
        a("s_lshr_b32 s4, s10, 1"); a("s_and_b32 s6, s10, 1")
        if hmap == 0: a("s_andn2_b32 s5, s9, 7"); a("s_add_u32 s5, s5, s8")
        else: a("s_lshr_b32 s5, s9, 3"); a("s_lshl2_add_u32 s5, s8, s5")
        if rot: a(f"s_mul_i32 s92, s10, {rot*12288}")
    else:
        a("s_and_b32 s4, s9, 3")
        a("s_lshr_b32 s6, 0x3c, s8"); a("s_and_b32 s6, s6, 1")
        a("s_lshl_b32 s10, s8, 1"); a("s_lshr_b32 s5, 0xbe14, s10"); a("s_and_b32 s5, s5, 3")
        a("s_andn2_b32 s10, s9, 3"); a("s_add_u32 s5, s5, s10")
    a("s_lshl_b32 s7, s5, 1"); a("s_add_u32 s7, s7, s6")
    a("s_lshl_b32 s11, s4, 6"); a("s_add_u32 s11, s11, s7")
    STEP = 12288 if G2 else 6144
    SPAN = (1572864 - 6144 if G2 else 786432) - 7 * 768
    if G2:
        a("s_lshr_b32 s12, s11, 1"); a("s_mul_i32 s12, s12, 1572864"); a("s_lshl3_add_u32 s13, s6, s3"); a("s_mul_i32 s13, s13, 768"); a("s_add_u32 s12, s12, s13")
    else:
        a("s_mul_i32 s12, s11, 786432"); a("s_mul_i32 s13, s3, 768"); a("s_add_u32 s12, s12, s13")
    if stag:
        if sg: a(f"s_lshr_b32 s15, s11, {sg}"); a(f"s_mul_i32 s15, s15, {stag}")
        else: a(f"s_mul_i32 s15, s11, {stag}")
        a("s_and_b32 s15, s15, 127"); a(f"s_mul_i32 s15, s15, {STEP}")
    a("v_mul_u32_u24 v1, 12, v0")
    a("v_lshrrev_b32 v6, 5, v0")
    a("v_and_b32 v7, 31, v0")
    a("v_mul_u32_u24 v7, 12, v7")
    a(f"v_mul_u32_u24 v2, {40*12288}, v6"); a("v_add_u32 v2, v2, v7")
    a("v_mul_u32_u24 v10, 80, v6")
    for n in (K, WQ, XQ): a(f"s_mov_b32 s{n+3}, 0x20000")
    a(f"s_mov_b32 s{K+2}, {SPAN}")
    a(f"s_mov_b32 s{WQ+2}, {79*12288+384}")
    a(f"s_mov_b32 s{XQ+2}, 160")
    if not xmap:
        a("s_lshl_b32 s7, s8, 3"); a("s_lshr_b32 s9, s9, 3"); a("s_lshl_b32 s9, s9, 1"); a("s_add_u32 s7, s7, s9"); a("s_add_u32 s7, s7, s6")
    else:
        a("s_lshl_b32 s7, s8, 3"); a("s_lshr_b32 s9, s9, 2"); a("s_add_u32 s7, s7, s9")
    a("s_mul_i32 s8, s3, 160")
    a("s_mul_i32 s9, s4, 1280")
    a(f"s_mul_i32 s13, s3, {80*12288}"); a("s_mul_i32 s10, s5, 384"); a("s_add_u32 s13, s13, s10")
    a("s_add_u32 s10, s9, s8")
    if stamps: a("v_mov_b32 v3, 0")
    a.waitl()
    def mk(n, ptr, off):
        a(f"s_add_u32 s{n}, s{ptr}, {off}"); a(f"s_addc_u32 s{n+1}, s{ptr+1}, 0")
    mk(K, 18, "s12")
    if stag: a("s_mov_b32 s18, s15")
    stamp()
    if early: a("v_writelane_b32 v3, s92, 7")
    free = []; slot = {}
    init = list(range(56 - D, 56)) + list(range(55 - D, WR - 1, -1))
    assert NP <= len(init)
    kn = [0]
    def kvf(t):
        fl = (kflags if t < ksw else "nt") if t < 128 else (vflags if t - 128 >= vsw else "nt")
        return "" if fl == "-" else fl
    if wflags == "-": wflags = ""
    def kload(sl):
        t = kn[0]
        if t >= 256: return
        kn[0] += 1; slot[t] = sl
        if not stag: a(f"s_mov_b32 s18, {(t%128)*STEP}")
        a(f"buffer_load_dwordx3 {x3(S(sl))}, v1, {srd(K if t < 128 else V)}, s18 offen {kvf(t)}", tag=("kv", t))
        if stag and t < 255: a(f"s_add_u32 s18, s18, {STEP}"); a(f"s_cmp_eq_u32 s18, {128*STEP}"); a("s_cselect_b32 s18, 0, s18")
    def wqload(i):
        if rot:
            a(f"s_add_u32 s19, s92, {i*12288}"); a(f"s_sub_u32 s93, s19, {40*12288}"); a("s_cselect_b32 s19, s19, s93")
        else: a(f"s_mov_b32 s19, {i*12288}")
        a(f"buffer_load_dwordx3 {x3(S(i%WR))}, v2, {srd(WQ)}, s19 offen {wflags}", tag=("wq", i))
    for t in range(k0): kload(init[kn[0]])
    mk(XQ, 16, "s10"); mk(WQ, 22, "s13")
    for i in range(5): a(f"buffer_load_dwordx4 {x4(12+4*i)}, v10, {srd(XQ)}, 0 offen offset:{16*i} {wflags}", tag=("xq", i))
    def kfill(p):
        tgt = k0 + (NP - k0) * (p + 1) // npair
        while kn[0] < tgt: kload(init[kn[0]])
    def setup2():
        a(f"s_mov_b32 s{SLO}, 0x05040100"); a(f"s_mov_b32 s{SHI}, 0x07060302")
        a(f"s_mov_b32 s{MB1}, 0xcccccccc"); a(f"s_mov_b32 s{MB1+1}, 0xcccccccc")
        a(f"s_mov_b32 s{MB0}, 0xaaaaaaaa"); a(f"s_mov_b32 s{MB0+1}, 0xaaaaaaaa")
        for n in (V, WO, W1, W2, XF, GW, P, ML, DBG): a(f"s_mov_b32 s{n+3}, 0x20000")
        a(f"s_mov_b32 s{V+2}, {SPAN}")
        a(f"s_mov_b32 s{WO+2}, {191*1280+160}")
        a("s_mul_i32 s13, s7, 48"); a(f"s_sub_u32 s{W1+2}, {640*3072}, s13"); mk(W1, 28, "s13")
        a(f"s_mov_b32 s{W2+2}, {23*1280+160}")
        a(f"s_mov_b32 s{XF+2}, 1280"); a(f"s_mov_b32 s{GW+2}, 1280")
        a(f"s_mov_b32 s{P+2}, 320"); a(f"s_mov_b32 s{ML+2}, 128"); a(f"s_mov_b32 s{DBG+2}, 256")
        mk(XF, 16, "s9"); mk(GW, 32, "0"); mk(V, 20, "s12")
        a(f"s_mul_i32 s13, s5, {192*1280}"); a("s_add_u32 s13, s13, s8"); mk(WO, 24, "s13")
        a(f"s_mul_i32 s13, s7, {24*1280}"); a("s_add_u32 s13, s13, s8"); mk(W2, 30, "s13")
        a("s_mul_i32 s13, s11, 2560"); a("s_lshl_b32 s14, s8, 1"); a("s_add_u32 s13, s13, s14"); mk(P, 38, "s13")
        a("s_lshr_b32 s13, s11, 1"); a("s_lshl_b32 s13, s13, 7"); a(f"s_add_u32 s13, s13, {MLOFF}"); mk(ML, 38, "s13")
        mk(DBG, 36, "0")
        for i in range(6, 10): a(f"v_mov_b32 v{i}, -1")
        a("v_lshlrev_b32 v10, 4, v0")
        a("s_lshl_b32 s13, s6, 3"); a("s_add_u32 s13, s13, s3"); a("s_lshl_b32 s13, s13, 3")
        a("v_lshlrev_b32 v5, 7, v0"); a("v_add_u32 v5, s13, v5")
        if touch:
            a("v_mov_b32 v4, 0"); a(f"v_mov_b32 v{HR[15]}, {786432-8*768}")
            a("s_mov_b64 exec, 1")
            a(f"buffer_load_dword v{HR[14]}, v4, {srd(V)}, 0 offen nt"); a.pend.pop(HR[14])
            a(f"buffer_load_dword v{HR[14]}, v{HR[15]}, {srd(V)}, 0 offen nt"); a.pend.pop(HR[14])
            a(f"buffer_load_dword v{HR[14]}, v{HR[15]}, {srd(K)}, 0 offen nt"); a.pend.pop(HR[14])
            if touch > 1:
                a(f"buffer_load_dword v{HR[14]}, v4, {srd(WO)}, 0 offen"); a.pend.pop(HR[14])
                a(f"buffer_load_dword v{HR[14]}, v4, {srd(W1)}, 0 offen"); a.pend.pop(HR[14])
                a(f"buffer_load_dword v{HR[14]}, v4, {srd(W2)}, 0 offen"); a.pend.pop(HR[14])
            a("s_mov_b64 exec, -1")
        if proto:
            a(f"buffer_store_dwordx4 v[6:9], v10, {srd(P)}, 0 offen sc1", tag="clr0")
            a(f"buffer_store_dwordx2 v[6:7], v5, {srd(ML)}, 0 offen sc1", tag="clr1")
    for p in range(min(npair, WR // 2)):
        wqload(2 * p); wqload(2 * p + 1); kfill(p)
        if p == 0: setup2()
        if pbar and p % pbar == pbar - 1: a("s_barrier")
    T = HR[0:6]; QA = [6, 7, 8, 9, HR[6], HR[7]]
    for j in range(6): a(f"v_mov_b32 v{QA[j]}, 0")
    stamp()
    for k in range(npair):
        a.waitv(("wq", 2 * k + 1))
        A_, B_ = S((2 * k) % WR), S((2 * k + 1) % WR)
        for d in range(3):
            a(f"v_perm_b32 v{T[2*d]}, v{B_+d}, v{A_+d}, s{SLO}"); a(f"v_perm_b32 v{T[2*d+1]}, v{B_+d}, v{A_+d}, s{SHI}")
        pn = k + WR // 2
        if pn < npair:
            wqload(2 * pn); wqload(2 * pn + 1); kfill(pn)
        for j in range(6): a(f"v_dot2c_f32_bf16 v{QA[j]}, v{T[j]}, v{12+k}")
        if pbar and pn < npair and pn % pbar == pbar - 1: a("s_barrier")
    for j in range(3): a(f"v_permlane32_swap_b32 v{QA[j]}, v{QA[j+3]}")
    for j in range(3): a(f"v_add_f32 v{QA[j]}, v{QA[j]}, v{QA[j+3]}")
    a("s_lshl_b32 s13, s3, 10"); a(f"v_add_u32 v{T[0]}, s13, v10")
    a(f"ds_write_b128 v{T[0]}, v[6:9] offset:{LDS_Q}")
    if proto: a.waitv("clr1")
    a.waitl()
    a("s_barrier")
    for w in range(8): a(f"ds_read_b96 {x3(S(w))}, v10 offset:{LDS_Q+1024*w}", tag=("qr", w))
    if proto:
        a("v_mov_b32 v12, 1")
        a(f"buffer_atomic_add v12, v11, {srd(DBG)}, 0 offen sc1", tag="flag")
    a("v_and_b32 v13, 15, v0"); a("v_mul_u32_u24 v14, 52, v13"); a("v_lshrrev_b32 v14, 8, v14")
    a("v_mul_u32_u24 v15, 5, v14"); a("v_sub_u32 v13, v13, v15")
    a("v_bfe_u32 v15, v0, 4, 1"); a("v_mad_u32_u24 v13, v15, 5, v13")
    a("v_lshrrev_b32 v15, 5, v0"); a("v_mad_u32_u24 v16, v15, 3, v14")
    a("v_cmp_eq_u32 vcc, 3, v14"); a("v_cndmask_b32_e64 v16, v16, 6, vcc")
    a("v_lshlrev_b32 v17, 4, v13")
    a(f"v_mul_u32_u24 v2, {32*1280}, v16"); a("v_add_u32 v2, v2, v17")
    a(f"v_mul_u32_u24 v11, {4*1280}, v16"); a("v_add_u32 v11, v11, v17")
    a("v_lshlrev_b32 v17, 1, v17"); a("v_lshl_add_u32 v31, v15, 4, v17")
    a("v_mov_b32 v30, v16")
    for w in range(1, 8):
        a.waitl(("qr", w))
        for j in range(3): a(f"v_add_f32 v{S(0)+j}, v{S(0)+j}, v{S(w)+j}")
    for j in range(3): a(f"v_mov_b32 v{S(1)+j}, v{S(0)+j}")
    for j in range(3): a(f"v_permlane32_swap_b32 v{S(0)+j}, v{S(1)+j}")
    Q = [20, 21, 22]
    a(f"v_cvt_pk_bf16_f32 v20, v{S(0)}, v{S(0)+1}")
    a(f"v_cvt_pk_bf16_f32 v21, v{S(0)+2}, v{S(1)}")
    a(f"v_cvt_pk_bf16_f32 v22, v{S(1)+1}, v{S(1)+2}")
    stamp()
    ACC = list(range(12, 20)); SC = [24, 25, 26, 27]
    X = HR[0:4]; Y = HR[4:6]; Z = HR[6:8]; W_ = HR[8:10]; U = HR[10:12]
    hooks = {t: [] for t in range(256)}
    FS = list(range(0, 8))
    def f1addr():
        a("v_lshrrev_b32 v6, 2, v0"); a("v_mul_u32_u24 v6, 6, v6")
        a("s_mul_i32 s13, s3, 96"); a("v_add_u32 v6, s13, v6")
        a("v_lshlrev_b32 v7, 1, v6")
        a("v_mul_u32_u24 v6, 3072, v6"); a("v_and_b32 v8, 3, v0"); a("v_mad_u32_u24 v6, v8, 12, v6")
        a(f"buffer_load_dwordx3 {x3(S(FS[6]))}, v7, {srd(XF)}, 0 offen {wflags}", tag="xf")
        a(f"buffer_load_dwordx3 {x3(S(FS[7]))}, v7, {srd(GW)}, 0 offen {wflags}", tag="gw")
    hooks[f1st].append(f1addr)
    def w1load(i):
        def f():
            a(f"s_mov_b32 s19, {i*3072}")
            a(f"buffer_load_dwordx3 {x3(S(FS[i]))}, v6, {srd(W1)}, s19 offen {wflags}", tag=("w1", i))
        return f
    for i in range(6):
        if "w1" not in skip: hooks[f1st + 1 + f1step * i].append(w1load(i))
    tf1 = f1st + 1 + f1step * 5 + D + 2
    def ffn1():
        a.waitv(("w1", 5)); a.waitv("gw")
        F = [H(FS[i]) for i in range(8)]
        T = [4, 6, 7, 8, 9, 29]
        for k in range(3):
            for d in range(3):
                A_, B_ = S(FS[2 * k]) + d, S(FS[2 * k + 1]) + d
                a(f"v_perm_b32 v{T[2*d]}, v{B_}, v{A_}, s{SLO}"); a(f"v_perm_b32 v{T[2*d+1]}, v{B_}, v{A_}, s{SHI}")
            for j in range(6):
                a(f"v_dot2_f32_bf16 v{F[j]}, v{T[j]}, v{S(FS[6])+k}, {'0' if k == 0 else 'v%d' % F[j]}")
        a("s_mov_b32 s13, 0x3f803f80"); a("s_mov_b32 s14, 0xffff0000")
        for k in range(3):
            xr, gr = S(FS[6]) + k, S(FS[7]) + k
            a(f"v_lshlrev_b32 v{T[0]}, 16, v{xr}"); a(f"v_and_b32 v{T[1]}, s14, v{xr}")
            a(f"v_lshlrev_b32 v{T[2]}, 16, v{gr}"); a(f"v_and_b32 v{T[3]}, s14, v{gr}")
            a(f"v_mul_f32 v{T[0]}, v{T[0]}, v{T[2]}"); a(f"v_mul_f32 v{T[1]}, v{T[1]}, v{T[3]}")
            a(f"v_cvt_pk_bf16_f32 v{T[4]}, v{T[0]}, v{T[1]}")
            a(f"v_dot2_f32_bf16 v{F[6]}, v{T[4]}, s13, {'0' if k == 0 else 'v%d' % F[6]}")
        a(f"v_mov_b32 v{F[7]}, 0")
        for j in range(4): a(f"v_permlane32_swap_b32 v{F[j]}, v{F[j+4]}")
        for j in range(4): a(f"v_add_f32 v{T[j]}, v{F[j]}, v{F[j+4]}")
        for j in range(2): a(f"v_permlane16_swap_b32 v{T[j]}, v{T[j+2]}")
        for j in range(2): a(f"v_add_f32 v{T[j]}, v{T[j]}, v{T[j+2]}")
        a(f"v_lshrrev_b32 v{T[2]}, 3, v0"); a(f"v_lshlrev_b32 v{T[2]}, 4, v{T[2]}")
        a(f"v_add_f32_dpp v{T[0]}, v{T[0]}, v{T[0]} row_ror:8 row_mask:0xf bank_mask:0x3")
        a(f"v_and_b32 v{T[3]}, 3, v0"); a(f"v_lshl_add_u32 v{T[2]}, v{T[3]}, 2, v{T[2]}")
        a(f"v_add_f32_dpp v{T[0]}, v{T[1]}, v{T[1]} row_ror:8 row_mask:0xf bank_mask:0xc")
        a("s_lshl_b32 s13, s3, 7"); a(f"v_add_u32 v{T[2]}, s13, v{T[2]}")
        a(f"v_add_f32_dpp v{T[1]}, v{T[0]}, v{T[0]} row_shl:4 row_mask:0xf bank_mask:0x5")
        a(f"v_add_f32_dpp v{T[1]}, v{T[0]}, v{T[0]} row_shr:4 row_mask:0xf bank_mask:0xa")
        a(f"ds_write_b32 v{T[2]}, v{T[1]} offset:{LDS_F}")
        a.waitl()
    hooks[tf1].append(ffn1)
    def w2load(i):
        def f(): a(f"buffer_load_dwordx4 {x4(S(FS[i]))}, v11, {srd(W2)}, 0 offen offset:{1280*i} {wflags}", tag=("w2", i))
        return f
    for i in range(4):
        if "w2" not in skip: hooks[tf1 + 1 + 2 * i].append(w2load(i))
    tf2 = tf1 + 8 + D + 2
    assert bar and (tf2 // bar) > (tf1 // bar) and tf2 < 127, (tf1, tf2)
    def ffn2():
        a.waitv(("w2", 3))
        a("v_and_b32 v4, 31, v0"); a("v_lshlrev_b32 v4, 2, v4")
        for w in range(8): a(f"ds_read_b32 v{ACC[w]}, v4 offset:{LDS_F+128*w}")
        a("v_and_b32 v6, 3, v0"); a("v_mul_u32_u24 v6, 12, v6"); a("v_bfe_u32 v7, v0, 2, 3"); a("v_lshl_add_u32 v6, v7, 1, v6")
        a("v_cmp_lt_u32 vcc, 5, v7"); a("v_cndmask_b32_e64 v6, v6, 56, vcc")
        a("s_lshl_b32 s13, s3, 6"); a("v_add_u32 v6, s13, v6")
        a("v_lshl_add_u32 v4, v30, 3, s13")
        a.waitl()
        for w in range(1, 8): a(f"v_add_f32 v{ACC[0]}, v{ACC[0]}, v{ACC[w]}")
        a(f"v_cvt_pk_bf16_f32 v7, v{ACC[0]}, v{ACC[0]}"); a("v_lshlrev_b32 v7, 16, v7")
        a(f"v_mul_f32 v8, {LOG2E ^ 0x80000000:#x}, v7"); a("v_exp_f32 v8, v8"); a("v_add_f32 v8, 1.0, v8"); a("v_rcp_f32 v8, v8")
        a("v_mul_f32 v9, v7, v8"); a("v_cvt_pk_bf16_f32 v9, v9, v9")
        a(f"ds_write_b16 v6, v9 offset:{LDS_H}")
        a("v_cvt_pk_bf16_f32 v8, v8, v8"); a("v_lshlrev_b32 v8, 16, v8")
        a("v_sub_f32 v29, 1.0, v8"); a("v_cvt_pk_bf16_f32 v29, v29, v29"); a("v_lshlrev_b32 v29, 16, v29")
        a("v_readlane_b32 s22, v8, 24"); a("v_readlane_b32 s23, v29, 24")
        a.waitl()
        a(f"ds_read_b64 v[6:7], v4 offset:{LDS_H}")
        a.waitl()
        for k in range(2):
            for d in range(4):
                A_, B_ = S(FS[2 * k]) + d, S(FS[2 * k + 1]) + d
                a(f"v_perm_b32 v8, v{B_}, v{A_}, s{SLO}"); a(f"v_perm_b32 v9, v{B_}, v{A_}, s{SHI}")
                a(f"v_dot2_f32_bf16 v{ACC[2*d]}, v8, v{6+k}, {'0' if k == 0 else 'v%d' % ACC[2*d]}")
                a(f"v_dot2_f32_bf16 v{ACC[2*d+1]}, v9, v{6+k}, {'0' if k == 0 else 'v%d' % ACC[2*d+1]}")
        for j in range(8): a(f"v_mul_f32 v{ACC[j]}, s23, v{ACC[j]}")
    hooks[tf2].append(ffn2)
    WS = list(range(8, 40))
    assert wost >= NP
    WP = [[None] * 8 for _ in range(16)]
    spare = [23]
    def woload(i):
        def f():
            a(f"s_mov_b32 s19, {i*1280}")
            a(f"buffer_load_dwordx4 {x4(S(WS[i]))}, v2, {srd(WO)}, s19 offen {wflags}", tag=("wo", i))
        return f
    def woperm(k):
        def f():
            a.waitv(("wo", 2 * k + 1))
            for d in range(4):
                A_, B_ = S(WS[2 * k]) + d, S(WS[2 * k + 1]) + d
                s = spare[0]
                a(f"v_perm_b32 v{s}, v{B_}, v{A_}, s{SLO}"); a(f"v_perm_b32 v{B_}, v{B_}, v{A_}, s{SHI}")
                WP[k][2 * d] = s; WP[k][2 * d + 1] = B_; spare[0] = A_
        return f
    for i in range(32):
        if "wo" not in skip: hooks[wost + wostep * i].append(woload(i))
    for k in range(16): hooks[min(255, wost + wostep * (2 * k + 1) + D + 3)].append(woperm(k))
    if proto: hooks[100].append(lambda: a(f"buffer_load_dword v28, off, {srd(DBG)}, 0 sc1", tag="flagld"))
    def release(t):
        if slot[t] >= 56 - D: free.append(slot[t])
        if free and (kn[0] - t - 1 < D or t % shr == shr - 1): kload(free.pop(0))
    def lvl(s_, t):
        if s_ % 2 == 1:
            x, y = X[(s_ - 1) % 4], X[s_ % 4]
            a(f"v_permlane16_swap_b32 v{x}, v{y}"); a(f"v_add_f32 v{Y[(s_>>1)&1]}, v{x}, v{y}")
        if s_ % 4 == 3:
            z = Z[(s_ >> 2) & 1]
            a(f"v_add_f32_dpp v{z}, v{Y[0]}, v{Y[0]} row_ror:8 row_mask:0xf bank_mask:0x3")
            a(f"v_add_f32_dpp v{z}, v{Y[1]}, v{Y[1]} row_ror:8 row_mask:0xf bank_mask:0xc")
        if s_ % 8 == 7:
            w = W_[(s_ >> 3) & 1]
            a(f"v_add_f32_dpp v{w}, v{Z[0]}, v{Z[0]} row_shl:4 row_mask:0xf bank_mask:0x5")
            a(f"v_add_f32_dpp v{w}, v{Z[1]}, v{Z[1]} row_shr:4 row_mask:0xf bank_mask:0xa")
            a(f"v_add_f32_dpp v{w}, v{w}, v{w} quad_perm:[2,3,0,1] row_mask:0xf bank_mask:0xf")
        if s_ % 16 == 15:
            u = U[(s_ >> 4) & 1]
            a(f"v_cndmask_b32_e64 v{u}, v{W_[0]}, v{W_[1]}, s[{MB1}:{MB1+1}]")
            a(f"v_add_f32_dpp v{u}, v{u}, v{u} quad_perm:[1,0,3,2] row_mask:0xf bank_mask:0xf")
        if s_ == 31:
            a(f"v_cndmask_b32_e64 v{SC[t//32]}, v{U[0]}, v{U[1]}, s[{MB0}:{MB0+1}]")
    for t in range(128):
        r = S(slot[t]); hreg = X[t % 4]
        a.waitv(("kv", t))
        a(f"v_dot2_f32_bf16 v{hreg}, v{r}, v{Q[0]}, 0")
        a(f"v_dot2_f32_bf16 v{hreg}, v{r+1}, v{Q[1]}, v{hreg}")
        a(f"v_dot2_f32_bf16 v{hreg}, v{r+2}, v{Q[2]}, v{hreg}")
        release(t)
        if t > 0: lvl((t - 1) % 32, t - 1)
        if t == 127: lvl(31, t)
        for f in hooks[t]: f()
        if bar and t % bar == bar - 1: a("s_barrier")
    stamp()
    a("s_mov_b32 s14, 0xffff0000")
    for j in (0, 2):
        a(f"v_cvt_pk_bf16_f32 v6, v{SC[j]}, v{SC[j+1]}")
        a(f"v_lshlrev_b32 v{SC[j]}, 16, v6"); a(f"v_and_b32 v{SC[j+1]}, s14, v6")
        a(f"v_mul_f32 v{SC[j]}, {SCALE:#x}, v{SC[j]}"); a(f"v_mul_f32 v{SC[j+1]}, {SCALE:#x}, v{SC[j+1]}")
        a(f"v_cvt_pk_bf16_f32 v6, v{SC[j]}, v{SC[j+1]}")
        a(f"v_lshlrev_b32 v{SC[j]}, 16, v6"); a(f"v_and_b32 v{SC[j+1]}, s14, v6")
    def wave_red(op, r, sdst):
        for m in ("quad_perm:[1,0,3,2] row_mask:0xf", "quad_perm:[2,3,0,1] row_mask:0xf", "row_half_mirror row_mask:0xf", "row_mirror row_mask:0xf",
                  "row_bcast:15 row_mask:0xa", "row_bcast:31 row_mask:0xc"):
            a(f"{op}_dpp v{r}, v{r}, v{r} {m} bank_mask:0xf")
        a(f"v_readlane_b32 s{sdst}, v{r}, 63")
    a(f"v_max3_f32 v6, v{SC[0]}, v{SC[1]}, v{SC[2]}"); a(f"v_max_f32 v6, v6, v{SC[3]}")
    wave_red("v_max_f32", 6, 20)
    a(f"v_mov_b32 v7, {LOG2E:#x}")
    a("v_mul_f32 v6, s20, v7")
    for j in range(4): a(f"v_fma_f32 v{SC[j]}, v{SC[j]}, v7, -v6")
    for j in range(4): a(f"v_exp_f32 v{SC[j]}, v{SC[j]}")
    a("v_bfrev_b32 v4, v0"); a("v_lshrrev_b32 v4, 27, v4"); a("v_lshlrev_b32 v4, 1, v4")
    a("v_lshrrev_b32 v11, 5, v0"); a("v_lshlrev_b32 v11, 8, v11"); a("s_lshl_b32 s13, s3, 9"); a("v_add_u32 v11, s13, v11")
    a("v_add_u32 v4, v4, v11")
    a(f"v_cvt_pk_bf16_f32 v8, v{SC[0]}, v{SC[1]}"); a(f"v_cvt_pk_bf16_f32 v9, v{SC[2]}, v{SC[3]}")
    a(f"ds_write_b16 v4, v8 offset:{LDS_P}"); a(f"ds_write_b16_d16_hi v4, v8 offset:{LDS_P+64}")
    a(f"ds_write_b16 v4, v9 offset:{LDS_P+128}"); a(f"ds_write_b16_d16_hi v4, v9 offset:{LDS_P+192}")
    a(f"v_add_f32 v6, v{SC[0]}, v{SC[1]}"); a(f"v_add_f32 v7, v{SC[2]}, v{SC[3]}"); a("v_add_f32 v6, v6, v7")
    wave_red("v_add_f32", 6, 21)
    a("v_mov_b32 v20, s20"); a("v_mov_b32 v21, s21")
    a(f"buffer_store_dwordx2 v[20:21], v5, {srd(ML)}, 0 offen sc1", tag="mlst")
    if proto:
        a.waitv("flagld")
        a("v_readfirstlane_b32 s13, v28")
        a("s_cmp_ge_u32 s13, 256"); a("s_cbranch_scc0 L_flag_slow")
        a.label("L_flag_ok")
    PB = [4, 24]
    VA = HR[6:12]; T = HR[0:6]; R_ = HR[12]
    a.waitl()
    a(f"ds_read_b128 {x4(PB[0])}, v11 offset:{LDS_P}", tag=("pb", 0))
    a(f"ds_read_b128 {x4(PB[1])}, v11 offset:{LDS_P+16}", tag=("pb", 1))
    for j in range(6): a(f"v_mov_b32 v{VA[j]}, 0")
    def mlload():
        a("v_lshlrev_b32 v8, 3, v0")
        a(f"buffer_load_dwordx2 v[8:9], v8, {srd(ML)}, 0 offen sc1", tag="ml")
    hooks[128 + 2 * mlld + 1].append(mlload)
    def mlproc():
        a.waitv("ml")
        r = R_
        if proto:
            a(f"v_max_u32 v{r}, v8, v9"); a(f"v_cmp_eq_u32 vcc, -1, v{r}")
            a("s_cbranch_vccnz L_ml_slow")
            a.label("L_ml_ok")
        a(f"v_mov_b32 v{r}, v8")
        for m in ("quad_perm:[1,0,3,2]", "quad_perm:[2,3,0,1]", "row_half_mirror", "row_mirror"):
            a(f"v_max_f32_dpp v{r}, v{r}, v{r} {m} row_mask:0xf bank_mask:0xf")
        a(f"v_sub_f32 v8, v8, v{r}"); a(f"v_mul_f32 v8, {LOG2E:#x}, v8"); a("v_exp_f32 v8, v8"); a("v_mul_f32 v8, v8, v9")
        for m in ("quad_perm:[1,0,3,2]", "quad_perm:[2,3,0,1]", "row_half_mirror", "row_mirror"):
            a(f"v_add_f32_dpp v8, v8, v8 {m} row_mask:0xf bank_mask:0xf")
        a(f"v_sub_f32 v{r}, s20, v{r}"); a(f"v_mul_f32 v{r}, {LOG2E:#x}, v{r}"); a(f"v_exp_f32 v{r}, v{r}")
        a("v_rcp_f32 v8, v8"); a(f"v_mul_f32 v{r}, v{r}, v8"); a(f"v_mul_f32 v{r}, s22, v{r}")
        a(f"v_readfirstlane_b32 s24, v{r}")
        a("s_lshl_b32 s13, s3, 10"); a("v_add_u32 v8, s13, v10")
        a("v_and_b32 v9, 31, v0"); a("v_lshlrev_b32 v9, 1, v9"); a(f"v_lshrrev_b32 v{r}, 5, v0"); a(f"v_add_u32 v9, v9, v{r}"); a("v_mul_u32_u24 v9, 6, v9")
        a("s_lshl_b32 s13, s3, 9"); a("v_add_u32 v9, s13, v9")
        a("v_lshl_add_u32 v29, v30, 6, s13")
        a("s_mul_i32 s8, s2, 1639"); a("s_lshr_b32 s8, s8, 16")
        a("s_mul_i32 s9, s8, 40"); a("s_sub_u32 s9, s2, s9")
        a(f"s_mul_i32 s13, s8, {64*2560}"); a("s_lshl_b32 s14, s9, 6"); a("s_add_u32 s13, s13, s14"); mk(RP, 38, "s13")
        a(f"s_mov_b32 s{RP+2}, {63*2560+64}"); a(f"s_mov_b32 s{RP+3}, 0x20000")
        a("s_mul_i32 s13, s8, 1280"); a("s_lshl_b32 s14, s9, 5"); a("s_add_u32 s13, s13, s14")
        mk(OUT, 34, "s13"); a(f"s_mov_b32 s{OUT+2}, 32"); a(f"s_mov_b32 s{OUT+3}, 0x20000")
        a("v_lshrrev_b32 v20, 2, v0"); a("v_mul_u32_u24 v20, 2560, v20"); a("v_and_b32 v21, 3, v0"); a("v_lshl_add_u32 v20, v21, 4, v20")
        a("v_lshrrev_b32 v22, 4, v0"); a("v_lshl_add_u32 v21, v21, 2, v22"); a("v_lshlrev_b32 v21, 1, v21")
        a("s_mov_b32 s25, 40960"); a("s_mov_b32 s26, 81920"); a("s_mov_b32 s27, 122880")
        a(f"s_mov_b32 s28, {spin}")
    hooks[128 + 2 * mlpr + 1].append(mlproc)
    for k in range(64):
        t = 128 + 2 * k
        a.waitv(("kv", t + 1))
        A_, B_ = S(slot[t]), S(slot[t + 1])
        for d in range(3):
            a(f"v_perm_b32 v{T[2*d]}, v{B_+d}, v{A_+d}, s{SLO}"); a(f"v_perm_b32 v{T[2*d+1]}, v{B_+d}, v{A_+d}, s{SHI}")
        release(t); release(t + 1)
        j4 = k // 4
        a.waitl(("pb", j4))
        pr = PB[j4 % 2] + k % 4
        for j in range(6): a(f"v_dot2c_f32_bf16 v{VA[j]}, v{T[j]}, v{pr}")
        if k % 4 == 3 and j4 + 2 < 16:
            a(f"ds_read_b128 {x4(PB[j4%2])}, v11 offset:{LDS_P+16*(j4+2)}", tag=("pb", j4 + 2))
        for f in hooks[t] + hooks[t + 1]: f()
        if bar and (t + 1) % bar == bar - 1 and t + 1 < 255 - D: a("s_barrier")
    stamp()
    for j in range(3): a(f"v_permlane32_swap_b32 v{VA[j]}, v{VA[j+3]}")
    for j in range(3): a(f"v_add_f32 v{VA[j]}, v{VA[j]}, v{VA[j+3]}")
    for j in range(3): a(f"v_mul_f32 v{4+j}, s24, v{VA[j]}")
    a(f"ds_write_b96 v8, v[4:6] offset:{LDS_O}")
    a.waitl(); a("s_barrier")
    RS = lambda w: S(40 + w)
    for w in range(8): a(f"ds_read_b96 {x3(RS(w))}, v10 offset:{LDS_O+1024*w}", tag=("or", w))
    for w in range(1, 8):
        a.waitl(("or", w))
        for j in range(3): a(f"v_add_f32 v{RS(0)+j}, v{RS(0)+j}, v{RS(w)+j}")
    a(f"v_cvt_pk_bf16_f32 v4, v{RS(0)}, v{RS(0)+1}"); a(f"v_cvt_pk_bf16_f32 v5, v{RS(0)+2}, v{RS(0)+2}")
    a(f"ds_write_b16 v9, v4 offset:{LDS_OB}"); a(f"ds_write_b16_d16_hi v9, v4 offset:{LDS_OB+2}"); a(f"ds_write_b16 v9, v5 offset:{LDS_OB+4}")
    a.waitl()
    OP = [S(48 + i) for i in range(4)]
    for i in range(4): a(f"ds_read_b128 {x4(OP[i])}, v29 offset:{LDS_OB+16*i}", tag=("ob", i))
    for k in range(16):
        a.waitl(("ob", k // 4))
        for j in range(8): a(f"v_dot2c_f32_bf16 v{ACC[j]}, v{WP[k][j]}, v{OP[k//4]+k%4}")
    for j in range(4): a(f"v_permlane32_swap_b32 v{ACC[j]}, v{ACC[j+4]}")
    for j in range(4): a(f"v_add_f32 v{ACC[j]}, v{ACC[j]}, v{ACC[j+4]}")
    for j in range(4): a(f"v_add_f32_dpp v{4+j}, v{ACC[j]}, v{ACC[j]} row_shl:5 row_mask:0xf bank_mask:0xf")
    for j in range(4): a(f"v_add_f32_dpp v{4+j}, v{ACC[j]}, v{4+j} row_shl:10 row_mask:0xf bank_mask:0xf")
    for j in range(4): a(f"v_min_u32 v{4+j}, -2, v{4+j}")
    a("s_mov_b32 exec_lo, 0x001f001f"); a("s_mov_b32 exec_hi, 0x001f001f")
    a(f"buffer_store_dwordx4 v[4:7], v31, {srd(P)}, 0 offen sc1")
    a("s_mov_b64 exec, -1")
    stamp()
    a("s_cmp_lg_u32 s3, 0"); a("s_cbranch_scc1 L_fin")
    a("s_cmp_ge_u32 s2, 160"); a("s_cbranch_scc1 L_fin")
    a.label("L_poll")
    for i in range(4):
        a(f"buffer_load_dwordx4 {x4(32+4*i)}, v20, {srd(RP)}, {['0','s25','s26','s27'][i]} offen sc1")
    a.waitv_all()
    a("v_max3_u32 v4, v32, v33, v34")
    for i in range(35, 47, 2): a(f"v_max3_u32 v4, v4, v{i}, v{i+1}")
    a("v_max_u32 v4, v4, v47")
    a("v_cmp_eq_u32 vcc, -1, v4")
    a("s_sub_u32 s28, s28, 1"); a("s_cbranch_scc1 L_red")
    a("s_cbranch_vccnz L_poll")
    a.label("L_red")
    for j in range(4):
        a(f"v_add_f32 v{32+j}, v{32+j}, v{36+j}"); a(f"v_add_f32 v{40+j}, v{40+j}, v{44+j}")
    for j in range(4): a(f"v_add_f32 v{32+j}, v{32+j}, v{40+j}")
    a("v_permlane32_swap_b32 v32, v34"); a("v_permlane32_swap_b32 v33, v35")
    a("v_add_f32 v32, v32, v34"); a("v_add_f32 v33, v33, v35")
    a("v_permlane16_swap_b32 v32, v33"); a("v_add_f32 v32, v32, v33")
    a("v_add_f32_dpp v32, v32, v32 row_ror:8 row_mask:0xf bank_mask:0xf")
    a("v_add_f32_dpp v32, v32, v32 row_ror:4 row_mask:0xf bank_mask:0xf")
    a("v_cvt_pk_bf16_f32 v32, v32, v32")
    a("s_mov_b32 exec_lo, 0x000f000f"); a("s_mov_b32 exec_hi, 0x000f000f")
    a(f"buffer_store_short v32, v21, {srd(OUT)}, 0 offen")
    a("s_mov_b64 exec, -1")
    if stamps:
        a.waitv_all()
        a("s_memrealtime s[14:15]"); a.waitl(); a(f"v_writelane_b32 v3, s14, {nst[0]}")
    a.label("L_fin")
    if stamps:
        a("s_lshl_b32 s13, s2, 3"); a("s_add_u32 s13, s13, s3"); a("s_lshl_b32 s13, s13, 5"); a(f"s_add_u32 s13, s13, {STOFF}")
        mk(RP, 38, "s13"); a(f"s_mov_b32 s{RP+2}, 32"); a(f"s_mov_b32 s{RP+3}, 0x20000")
        a("v_lshlrev_b32 v1, 2, v0")
        a(f"buffer_store_dword v3, v1, {srd(RP)}, 0 offen")
        if stamps > 1:
            a("s_cmp_lg_u32 s3, 0"); a("s_cbranch_scc1 L_end")
            a("v_mov_b32_dpp v4, v3 row_shr:8 row_mask:0xf bank_mask:0xf")
            a("v_cmp_eq_u32 vcc, 0, v4"); a("v_not_b32 v4, v4"); a("v_cndmask_b32_e64 v4, v4, 0, vcc")
            a("v_cmp_gt_u32 vcc, 8, v0"); a("v_cndmask_b32 v4, v4, v3, vcc")
            a("s_mov_b64 exec, 0x7f7f")
            a(f"buffer_atomic_umax v4, v1, {srd(DBG)}, 0 offen offset:4 sc1")
    if probe >= 0:
        a("s_cmp_lg_u32 s3, 0"); a("s_cbranch_scc1 L_end");
        if pwg >= 0: a(f"s_cmp_lg_u32 s2, {pwg}"); a("s_cbranch_scc1 L_end")
        a(f"v_readlane_b32 s8, v3, {probe}"); a("s_add_u32 s8, s8, 12000"); a("s_mov_b32 s9, 100000")
        a.label("L_pr")
        a("s_memrealtime s[14:15]"); a.waitl()
        a("s_sub_u32 s9, s9, 1"); a("s_cbranch_scc1 L_end")
        a("s_sub_u32 s10, s14, s8"); a("s_cmp_lt_i32 s10, 0"); a("s_cbranch_scc1 L_pr")
    a.label("L_end")
    a("s_endpgm")
    if proto:
        a.vm = []; a.lg = []; a.pend = {}
        a.label("L_flag_slow")
        a(f"s_mov_b32 s28, {spin}")
        a.label("L_flag_loop")
        a("s_sleep 8")
        a(f"buffer_load_dword v28, off, {srd(DBG)}, 0 sc1"); a.waitv_all()
        a("v_readfirstlane_b32 s13, v28")
        a("s_sub_u32 s28, s28, 1"); a("s_cbranch_scc1 L_flag_ok")
        a("s_cmp_ge_u32 s13, 256"); a("s_cbranch_scc0 L_flag_loop")
        a("s_branch L_flag_ok")
        a.label("L_ml_slow")
        a(f"s_mov_b32 s28, {spin}")
        a.label("L_ml_loop")
        a("s_sleep 8")
        a("v_lshlrev_b32 v8, 3, v0")
        a(f"buffer_load_dwordx2 v[8:9], v8, {srd(ML)}, 0 offen sc1"); a.waitv_all()
        a(f"v_max_u32 v{HR[12]}, v8, v9"); a(f"v_cmp_eq_u32 vcc, -1, v{HR[12]}")
        a("s_sub_u32 s28, s28, 1"); a("s_cbranch_scc1 L_ml_ok")
        a("s_cbranch_vccnz L_ml_loop")
        a("s_branch L_ml_ok")
    a.raw('.section .rodata,"a"'); a.raw(".p2align 6"); a.raw(f".amdhsa_kernel {KN}_kernel")
    for l in ["next_free_vgpr 256", "next_free_sgpr 102", "accum_offset 256", "group_segment_fixed_size 0", "kernarg_size 96", "user_sgpr_count 2",
              "user_sgpr_kernarg_segment_ptr 1", "system_sgpr_workgroup_id_x 1"]: a.raw("  .amdhsa_" + l)
    a.raw(".end_amdhsa_kernel")
    sys.stderr.write(f"slots {a.n} nops {a.nops} maxv {a.maxv} tf1 {tf1} tf2 {tf2}\n")
    return a.text()

if __name__ == "__main__":
    out = sys.argv[1]
    kw = {}
    for kv in sys.argv[2:]:
        k, v = kv.split("=")
        kw[k] = int(v) if v.lstrip("-").isdigit() else v.replace("+", " ")
    open(out, "w").write(gen(**kw))
```

```python
import sys, struct
from asmlib import Asm
KN = "gated_mix__gqa_block_cached__dense_activation_silu__decode"
def f2u(f): return struct.unpack("<I", struct.pack("<f", f))[0]
LOG2E = f2u(1.4426950408889634)
SCALE = f2u(192 ** -0.5)
MLOFF = 1 << 20
STOFF = 2 << 20
LDS_Q, LDS_O, LDS_F, LDS_P, LDS_OB, LDS_H = 0, 8192, 16384, 17408, 21504, 25600
LDS_SIZE = 26112

def gen(D=16, NP=48, WR=8, k0=2, pbar=2, bar=16, shr=3, stamps=0, kflags="nt", vflags="nt", wflags="nt", vsw=0, ksw=128, spin=200000,
        f1st=40, f1step=2, wost=60, wostep=4, mlld=30, mlpr=50, proto=1, npair=20, touch=0, xmap=0, probe=-1, pwg=0, early=0, skip='', hmap=0, rot=0, G2=0, stag=0, sg=0, f0=0, r128=0, flt=100, xk=0, NL=0, lpf=2, fine=0):
    a = Asm()
    hdr = open("cdna_kernels/" + KN + ".s.ref").read().split("; Override launch")[0]
    a.raw(hdr.rstrip())
    a.raw(f"; @launch grid=(256,1,1) block=(512,1,1) lds={LDS_SIZE+8192*NL}")
    assert LDS_SIZE + 8192 * NL <= 163840
    NPR = NP; NP = NP + NL
    a.raw('.amdgcn_target "amdgcn-amd-amdhsa--gfx950"')
    a.raw(".text"); a.raw(f".globl {KN}_kernel"); a.raw(".p2align 8"); a.raw(f".type {KN}_kernel,@function"); a.raw(f"{KN}_kernel:")
    K, V, WQ, WO, W1, W2, XQ, XF, GW, P, ML, DBG, RP, OUT = [40 + 4 * i for i in range(14)]
    def srd(n): return f"s[{n}:{n+3}]"
    SLO, SHI, MB1, MB0 = 96, 97, 98, 100
    S = lambda s: 32 + 4 * s
    H = lambda s: 32 + 4 * s + 3
    def x2(r): return f"v[{r}:{r+1}]"
    def x3(r): return f"v[{r}:{r+2}]"
    def x4(r): return f"v[{r}:{r+3}]"
    HR = [H(56 - 16 + i) for i in range(16)]
    nst = [0]
    def stamp():
        if not stamps: return
        a("s_memrealtime s[14:15]"); a.waitl()
        a(f"v_writelane_b32 v3, s14, {nst[0]}")
        nst[0] += 1

    fn = [8]; flist = []
    def fstamp():
        if not fine: return
        out = [t[1] for t in a.vm if isinstance(t, tuple) and t[0] == "kv"]
        landed = min(out) if out else kn[0]
        a("s_memrealtime s[14:15]"); a.waitl()
        a(f"v_writelane_b32 v3, s14, {fn[0]}")
        fn[0] += 1; flist.append(landed); assert fn[0] <= 64
    if early: a("s_memrealtime s[92:93]")
    a("s_cmp_ge_u32 s2, 256"); a("s_cbranch_scc1 L_end")
    a("s_load_dwordx16 s[16:31], s[0:1], 0")
    a("s_load_dwordx8 s[32:39], s[0:1], 64")
    a("v_lshrrev_b32 v1, 6, v0")
    a("v_lshlrev_b32 v11, 8, v0")
    a("v_readfirstlane_b32 s3, v1")
    a("v_and_b32 v0, 63, v0")
    a("s_and_b32 s8, s2, 7"); a("s_lshr_b32 s9, s2, 3")
    if not xmap:
        a("s_and_b32 s10, s9, 7")
        a("s_lshr_b32 s4, s10, 1"); a("s_and_b32 s6, s10, 1")
        if hmap == 0: a("s_andn2_b32 s5, s9, 7"); a("s_add_u32 s5, s5, s8")
        else: a("s_lshr_b32 s5, s9, 3"); a("s_lshl2_add_u32 s5, s8, s5")
        if rot: a(f"s_mul_i32 s92, s10, {rot*12288}")
    else:
        a("s_and_b32 s4, s9, 3")
        a("s_lshr_b32 s6, 0x3c, s8"); a("s_and_b32 s6, s6, 1")
        a("s_lshl_b32 s10, s8, 1"); a("s_lshr_b32 s5, 0xbe14, s10"); a("s_and_b32 s5, s5, 3")
        a("s_andn2_b32 s10, s9, 3"); a("s_add_u32 s5, s5, s10")
    a("s_lshl_b32 s7, s5, 1"); a("s_add_u32 s7, s7, s6")
    a("s_lshl_b32 s11, s4, 6"); a("s_add_u32 s11, s11, s7")
    STEP = 12288 if G2 else 6144
    SPAN = (1572864 - 6144 if G2 else 786432) - 7 * 768
    if G2:
        a("s_lshr_b32 s12, s11, 1"); a("s_mul_i32 s12, s12, 1572864"); a("s_lshl3_add_u32 s13, s6, s3"); a("s_mul_i32 s13, s13, 768"); a("s_add_u32 s12, s12, s13")
    else:
        a("s_mul_i32 s12, s11, 786432"); a("s_mul_i32 s13, s3, 768"); a("s_add_u32 s12, s12, s13")
    if stag:
        if sg: a(f"s_lshr_b32 s15, s11, {sg}"); a(f"s_mul_i32 s15, s15, {stag}")
        else: a(f"s_mul_i32 s15, s11, {stag}")
        a("s_and_b32 s15, s15, 127"); a(f"s_mul_i32 s15, s15, {STEP}")
    a("v_mul_u32_u24 v1, 12, v0")
    a("v_lshrrev_b32 v6, 5, v0")
    a("v_and_b32 v7, 31, v0")
    a("v_mul_u32_u24 v7, 12, v7")
    a(f"v_mul_u32_u24 v2, {40*12288}, v6"); a("v_add_u32 v2, v2, v7")
    a("v_mul_u32_u24 v10, 80, v6")
    for n in (K, WQ, XQ): a(f"s_mov_b32 s{n+3}, 0x20000")
    a(f"s_mov_b32 s{K+2}, {SPAN}")
    a(f"s_mov_b32 s{WQ+2}, {79*12288+384}")
    a(f"s_mov_b32 s{XQ+2}, 160")
    if not xmap:
        a("s_lshl_b32 s7, s8, 3"); a("s_lshr_b32 s9, s9, 3"); a("s_lshl_b32 s9, s9, 1"); a("s_add_u32 s7, s7, s9"); a("s_add_u32 s7, s7, s6")
    else:
        a("s_lshl_b32 s7, s8, 3"); a("s_lshr_b32 s9, s9, 2"); a("s_add_u32 s7, s7, s9")
    a("s_mul_i32 s8, s3, 160")
    a("s_mul_i32 s9, s4, 1280")
    a(f"s_mul_i32 s13, s3, {80*12288}"); a("s_mul_i32 s10, s5, 384"); a("s_add_u32 s13, s13, s10")
    a("s_add_u32 s10, s9, s8")
    if stamps: a("v_mov_b32 v3, 0")
    a.waitl()
    def mk(n, ptr, off):
        a(f"s_add_u32 s{n}, s{ptr}, {off}"); a(f"s_addc_u32 s{n+1}, s{ptr+1}, 0")
    mk(K, 18, "s12")
    if stag: a("s_mov_b32 s18, s15")
    stamp()
    if early: a("v_writelane_b32 v3, s92, 7")
    free = []; slot = {}
    init = list(range(56 - D, 56)) + list(range(55 - D, WR - 1, -1))
    assert NPR <= len(init)
    init = init[:NPR] + [-1 - j for j in range(NL)]
    kn = [0]
    def kvf(t):
        fl = (kflags if t < ksw else "nt") if t < 128 else (vflags if t - 128 >= vsw else "nt")
        return "" if fl == "-" else fl
    if wflags == "-": wflags = ""
    def kload(sl):
        t = kn[0]
        if t >= 256: return
        kn[0] += 1; slot[t] = sl
        if not stag: a(f"s_mov_b32 s18, {(t%128)*STEP}")
        if sl < 0:
            a(f"buffer_load_dwordx3 v1, {srd(K)}, s18 offen {kvf(t)} lds", tag=("kv", t))
            a("s_add_u32 m0, m0, 8192")
        else: a(f"buffer_load_dwordx3 {x3(S(sl))}, v1, {srd(K if t < 128 else V)}, s18 offen {kvf(t)}", tag=("kv", t))
        if stag and t < 255: a(f"s_add_u32 s18, s18, {STEP}"); a(f"s_cmp_eq_u32 s18, {128*STEP}"); a("s_cselect_b32 s18, 0, s18")
    def wqload(i):
        if rot:
            a(f"s_add_u32 s19, s92, {i*12288}"); a(f"s_sub_u32 s93, s19, {40*12288}"); a("s_cselect_b32 s19, s19, s93")
        else: a(f"s_mov_b32 s19, {i*12288}")
        a(f"buffer_load_dwordx3 {x3(S(i%WR))}, v2, {srd(WQ)}, s19 offen {wflags}", tag=("wq", i))
    for t in range(k0): kload(init[kn[0]])
    mk(XQ, 16, "s10"); mk(WQ, 22, "s13")
    for i in range(5): a(f"buffer_load_dwordx4 {x4(12+4*i)}, v10, {srd(XQ)}, 0 offen offset:{16*i} {wflags}", tag=("xq", i))
    def kfill(p):
        tgt = min(NP, k0 + (NP - k0) * (p + 1) // (npair + xk))
        while kn[0] < tgt: kload(init[kn[0]])
    def setup2():
        a(f"s_mov_b32 s{SLO}, 0x05040100"); a(f"s_mov_b32 s{SHI}, 0x07060302")
        a(f"s_mov_b32 s{MB1}, 0xcccccccc"); a(f"s_mov_b32 s{MB1+1}, 0xcccccccc")
        a(f"s_mov_b32 s{MB0}, 0xaaaaaaaa"); a(f"s_mov_b32 s{MB0+1}, 0xaaaaaaaa")
        for n in (V, WO, W1, W2, XF, GW, P, ML, DBG): a(f"s_mov_b32 s{n+3}, 0x20000")
        a(f"s_mov_b32 s{V+2}, {SPAN}")
        a(f"s_mov_b32 s{WO+2}, {191*1280+160}")
        a("s_mul_i32 s13, s7, 48"); a(f"s_sub_u32 s{W1+2}, {640*3072}, s13"); mk(W1, 28, "s13")
        a(f"s_mov_b32 s{W2+2}, {23*1280+160}")
        a(f"s_mov_b32 s{XF+2}, 1280"); a(f"s_mov_b32 s{GW+2}, 1280")
        a(f"s_mov_b32 s{P+2}, 320"); a(f"s_mov_b32 s{ML+2}, 128"); a(f"s_mov_b32 s{DBG+2}, 256")
        mk(XF, 16, "s9"); mk(GW, 32, "0"); mk(V, 20, "s12")
        a(f"s_mul_i32 s13, s5, {192*1280}"); a("s_add_u32 s13, s13, s8"); mk(WO, 24, "s13")
        a(f"s_mul_i32 s13, s7, {24*1280}"); a("s_add_u32 s13, s13, s8"); mk(W2, 30, "s13")
        a("s_mul_i32 s13, s11, 2560"); a("s_lshl_b32 s14, s8, 1"); a("s_add_u32 s13, s13, s14"); mk(P, 38, "s13")
        a("s_lshr_b32 s13, s11, 1"); a("s_lshl_b32 s13, s13, 7"); a(f"s_add_u32 s13, s13, {MLOFF}"); mk(ML, 38, "s13")
        mk(DBG, 36, "0")
        if NL: a("s_lshl_b32 m0, s3, 10"); a(f"s_add_u32 m0, m0, {LDS_SIZE}")
        for i in range(6, 10): a(f"v_mov_b32 v{i}, -1")
        a("v_lshlrev_b32 v10, 4, v0")
        a("s_lshl_b32 s13, s6, 3"); a("s_add_u32 s13, s13, s3"); a("s_lshl_b32 s13, s13, 3")
        a("v_lshlrev_b32 v5, 7, v0"); a("v_add_u32 v5, s13, v5")
        if touch:
            a("v_mov_b32 v4, 0"); a(f"v_mov_b32 v{HR[15]}, {786432-8*768}")
            a("s_mov_b64 exec, 1")
            a(f"buffer_load_dword v{HR[14]}, v4, {srd(V)}, 0 offen nt"); a.pend.pop(HR[14])
            a(f"buffer_load_dword v{HR[14]}, v{HR[15]}, {srd(V)}, 0 offen nt"); a.pend.pop(HR[14])
            a(f"buffer_load_dword v{HR[14]}, v{HR[15]}, {srd(K)}, 0 offen nt"); a.pend.pop(HR[14])
            if touch > 1:
                a(f"buffer_load_dword v{HR[14]}, v4, {srd(WO)}, 0 offen"); a.pend.pop(HR[14])
                a(f"buffer_load_dword v{HR[14]}, v4, {srd(W1)}, 0 offen"); a.pend.pop(HR[14])
                a(f"buffer_load_dword v{HR[14]}, v4, {srd(W2)}, 0 offen"); a.pend.pop(HR[14])
            a("s_mov_b64 exec, -1")
        if proto:
            a(f"buffer_store_dwordx4 v[6:9], v10, {srd(P)}, 0 offen sc1", tag="clr0")
            a(f"buffer_store_dwordx2 v[6:7], v5, {srd(ML)}, 0 offen sc1", tag="clr1")
    for p in range(min(npair, WR // 2)):
        wqload(2 * p); wqload(2 * p + 1); kfill(p)
        if p == 0: setup2()
        if pbar and p % pbar == pbar - 1: a("s_barrier")
    T = HR[0:6]; QA = [6, 7, 8, 9, HR[6], HR[7]]
    for j in range(6): a(f"v_mov_b32 v{QA[j]}, 0")
    stamp()
    for k in range(npair):
        a.waitv(("wq", 2 * k + 1))
        fstamp()
        A_, B_ = S((2 * k) % WR), S((2 * k + 1) % WR)
        for d in range(3):
            a(f"v_perm_b32 v{T[2*d]}, v{B_+d}, v{A_+d}, s{SLO}"); a(f"v_perm_b32 v{T[2*d+1]}, v{B_+d}, v{A_+d}, s{SHI}")
        pn = k + WR // 2
        if pn < npair:
            wqload(2 * pn); wqload(2 * pn + 1); kfill(pn)
        elif xk: kfill(pn)
        for j in range(6): a(f"v_dot2c_f32_bf16 v{QA[j]}, v{T[j]}, v{12+k}")
        if pbar and pn < npair and pn % pbar == pbar - 1: a("s_barrier")
    for j in range(3): a(f"v_permlane32_swap_b32 v{QA[j]}, v{QA[j+3]}")
    for j in range(3): a(f"v_add_f32 v{QA[j]}, v{QA[j]}, v{QA[j+3]}")
    a("s_lshl_b32 s13, s3, 10"); a(f"v_add_u32 v{T[0]}, s13, v10")
    a(f"ds_write_b128 v{T[0]}, v[6:9] offset:{LDS_Q}")
    if proto: a.waitv("clr1")
    kfill(npair + WR // 2)
    a.waitl()
    a("s_barrier")
    kfill(npair + WR // 2 + 1)
    for w in range(8): a(f"ds_read_b96 {x3(S(w))}, v10 offset:{LDS_Q+1024*w}", tag=("qr", w))
    if proto:
        a("v_mov_b32 v12, 1")
        a(f"buffer_atomic_add v12, v11, {srd(DBG)}, 0 offen sc1", tag="flag")
    a("v_and_b32 v13, 15, v0"); a("v_mul_u32_u24 v14, 52, v13"); a("v_lshrrev_b32 v14, 8, v14")
    a("v_mul_u32_u24 v15, 5, v14"); a("v_sub_u32 v13, v13, v15")
    a("v_bfe_u32 v15, v0, 4, 1"); a("v_mad_u32_u24 v13, v15, 5, v13")
    a("v_lshrrev_b32 v15, 5, v0"); a("v_mad_u32_u24 v16, v15, 3, v14")
    a("v_cmp_eq_u32 vcc, 3, v14"); a("v_cndmask_b32_e64 v16, v16, 6, vcc")
    a("v_lshlrev_b32 v17, 4, v13")
    a(f"v_mul_u32_u24 v2, {32*1280}, v16"); a("v_add_u32 v2, v2, v17")
    a(f"v_mul_u32_u24 v11, {4*1280}, v16"); a("v_add_u32 v11, v11, v17")
    a("v_lshlrev_b32 v17, 1, v17"); a("v_lshl_add_u32 v31, v15, 4, v17")
    a("v_mov_b32 v30, v16")
    for w in range(1, 8):
        a.waitl(("qr", w))
        for j in range(3): a(f"v_add_f32 v{S(0)+j}, v{S(0)+j}, v{S(w)+j}")
    for j in range(3): a(f"v_mov_b32 v{S(1)+j}, v{S(0)+j}")
    for j in range(3): a(f"v_permlane32_swap_b32 v{S(0)+j}, v{S(1)+j}")
    Q = [20, 21, 22]
    kfill(1000)
    a(f"v_cvt_pk_bf16_f32 v20, v{S(0)}, v{S(0)+1}")
    a(f"v_cvt_pk_bf16_f32 v21, v{S(0)+2}, v{S(1)}")
    a(f"v_cvt_pk_bf16_f32 v22, v{S(1)+1}, v{S(1)+2}")
    stamp()
    ACC = list(range(12, 20)); SC = [24, 25, 26, 27]
    X = HR[0:4]; Y = HR[4:6]; Z = HR[6:8]; W_ = HR[8:10]; U = HR[10:12]
    hooks = {t: [] for t in range(256)}
    FS = list(range(0, 8))
    def f1addr():
        a("v_lshrrev_b32 v6, 2, v0"); a("v_mul_u32_u24 v6, 6, v6")
        a("s_mul_i32 s13, s3, 96"); a("v_add_u32 v6, s13, v6")
        a("v_lshlrev_b32 v7, 1, v6")
        a("v_mul_u32_u24 v6, 3072, v6"); a("v_and_b32 v8, 3, v0"); a("v_mad_u32_u24 v6, v8, 12, v6")
        a(f"buffer_load_dwordx3 {x3(S(FS[6]))}, v7, {srd(XF)}, 0 offen {wflags}", tag="xf")
        a(f"buffer_load_dwordx3 {x3(S(FS[7]))}, v7, {srd(GW)}, 0 offen {wflags}", tag="gw")
    hooks[f1st].append(f1addr)
    def w1load(i):
        def f():
            a(f"s_mov_b32 s19, {i*3072}")
            a(f"buffer_load_dwordx3 {x3(S(FS[i]))}, v6, {srd(W1)}, s19 offen {wflags}", tag=("w1", i))
        return f
    for i in range(6):
        if "w1" not in skip: hooks[f1st + 1 + f1step * i].append(w1load(i))
    tf1 = f1st + 1 + f1step * 5 + D + 2
    def ffn1():
        a.waitv(("w1", 5)); a.waitv("gw")
        F = [H(FS[i]) for i in range(8)]
        T = [4, 6, 7, 8, 9, 29]
        for k in range(3):
            for d in range(3):
                A_, B_ = S(FS[2 * k]) + d, S(FS[2 * k + 1]) + d
                a(f"v_perm_b32 v{T[2*d]}, v{B_}, v{A_}, s{SLO}"); a(f"v_perm_b32 v{T[2*d+1]}, v{B_}, v{A_}, s{SHI}")
            for j in range(6):
                a(f"v_dot2_f32_bf16 v{F[j]}, v{T[j]}, v{S(FS[6])+k}, {'0' if k == 0 else 'v%d' % F[j]}")
        a("s_mov_b32 s13, 0x3f803f80"); a("s_mov_b32 s14, 0xffff0000")
        for k in range(3):
            xr, gr = S(FS[6]) + k, S(FS[7]) + k
            a(f"v_lshlrev_b32 v{T[0]}, 16, v{xr}"); a(f"v_and_b32 v{T[1]}, s14, v{xr}")
            a(f"v_lshlrev_b32 v{T[2]}, 16, v{gr}"); a(f"v_and_b32 v{T[3]}, s14, v{gr}")
            a(f"v_mul_f32 v{T[0]}, v{T[0]}, v{T[2]}"); a(f"v_mul_f32 v{T[1]}, v{T[1]}, v{T[3]}")
            a(f"v_cvt_pk_bf16_f32 v{T[4]}, v{T[0]}, v{T[1]}")
            a(f"v_dot2_f32_bf16 v{F[6]}, v{T[4]}, s13, {'0' if k == 0 else 'v%d' % F[6]}")
        a(f"v_mov_b32 v{F[7]}, 0")
        for j in range(4): a(f"v_permlane32_swap_b32 v{F[j]}, v{F[j+4]}")
        for j in range(4): a(f"v_add_f32 v{T[j]}, v{F[j]}, v{F[j+4]}")
        for j in range(2): a(f"v_permlane16_swap_b32 v{T[j]}, v{T[j+2]}")
        for j in range(2): a(f"v_add_f32 v{T[j]}, v{T[j]}, v{T[j+2]}")
        a(f"v_lshrrev_b32 v{T[2]}, 3, v0"); a(f"v_lshlrev_b32 v{T[2]}, 4, v{T[2]}")
        a(f"v_add_f32_dpp v{T[0]}, v{T[0]}, v{T[0]} row_ror:8 row_mask:0xf bank_mask:0x3")
        a(f"v_and_b32 v{T[3]}, 3, v0"); a(f"v_lshl_add_u32 v{T[2]}, v{T[3]}, 2, v{T[2]}")
        a(f"v_add_f32_dpp v{T[0]}, v{T[1]}, v{T[1]} row_ror:8 row_mask:0xf bank_mask:0xc")
        a("s_lshl_b32 s13, s3, 7"); a(f"v_add_u32 v{T[2]}, s13, v{T[2]}")
        a(f"v_add_f32_dpp v{T[1]}, v{T[0]}, v{T[0]} row_shl:4 row_mask:0xf bank_mask:0x5")
        a(f"v_add_f32_dpp v{T[1]}, v{T[0]}, v{T[0]} row_shr:4 row_mask:0xf bank_mask:0xa")
        a(f"ds_write_b32 v{T[2]}, v{T[1]} offset:{LDS_F}")
        a.waitl()
    hooks[tf1].append(ffn1)
    def w2load(i):
        def f(): a(f"buffer_load_dwordx4 {x4(S(FS[i]))}, v11, {srd(W2)}, 0 offen offset:{1280*i} {wflags}", tag=("w2", i))
        return f
    for i in range(4):
        if "w2" not in skip: hooks[tf1 + 1 + 2 * i].append(w2load(i))
    tf2 = tf1 + 8 + D + 2
    assert bar and (tf2 // bar) > (tf1 // bar) and tf2 < 127, (tf1, tf2)
    def ffn2():
        a.waitv(("w2", 3))
        a("v_and_b32 v4, 31, v0"); a("v_lshlrev_b32 v4, 2, v4")
        for w in range(8): a(f"ds_read_b32 v{ACC[w]}, v4 offset:{LDS_F+128*w}")
        a("v_and_b32 v6, 3, v0"); a("v_mul_u32_u24 v6, 12, v6"); a("v_bfe_u32 v7, v0, 2, 3"); a("v_lshl_add_u32 v6, v7, 1, v6")
        a("v_cmp_lt_u32 vcc, 5, v7"); a("v_cndmask_b32_e64 v6, v6, 56, vcc")
        a("s_lshl_b32 s13, s3, 6"); a("v_add_u32 v6, s13, v6")
        a("v_lshl_add_u32 v4, v30, 3, s13")
        a.waitl()
        for w in range(1, 8): a(f"v_add_f32 v{ACC[0]}, v{ACC[0]}, v{ACC[w]}")
        a(f"v_cvt_pk_bf16_f32 v7, v{ACC[0]}, v{ACC[0]}"); a("v_lshlrev_b32 v7, 16, v7")
        a(f"v_mul_f32 v8, {LOG2E ^ 0x80000000:#x}, v7"); a("v_exp_f32 v8, v8"); a("v_add_f32 v8, 1.0, v8"); a("v_rcp_f32 v8, v8")
        a("v_mul_f32 v9, v7, v8"); a("v_cvt_pk_bf16_f32 v9, v9, v9")
        a(f"ds_write_b16 v6, v9 offset:{LDS_H}")
        a("v_cvt_pk_bf16_f32 v8, v8, v8"); a("v_lshlrev_b32 v8, 16, v8")
        a("v_sub_f32 v29, 1.0, v8"); a("v_cvt_pk_bf16_f32 v29, v29, v29"); a("v_lshlrev_b32 v29, 16, v29")
        a("v_readlane_b32 s22, v8, 24"); a("v_readlane_b32 s23, v29, 24")
        a.waitl()
        a(f"ds_read_b64 v[6:7], v4 offset:{LDS_H}")
        a.waitl()
        for k in range(2):
            for d in range(4):
                A_, B_ = S(FS[2 * k]) + d, S(FS[2 * k + 1]) + d
                a(f"v_perm_b32 v8, v{B_}, v{A_}, s{SLO}"); a(f"v_perm_b32 v9, v{B_}, v{A_}, s{SHI}")
                a(f"v_dot2_f32_bf16 v{ACC[2*d]}, v8, v{6+k}, {'0' if k == 0 else 'v%d' % ACC[2*d]}")
                a(f"v_dot2_f32_bf16 v{ACC[2*d+1]}, v9, v{6+k}, {'0' if k == 0 else 'v%d' % ACC[2*d+1]}")
        for j in range(8): a(f"v_mul_f32 v{ACC[j]}, s23, v{ACC[j]}")
    hooks[tf2].append(ffn2)
    WS = list(range(8, 40))
    assert wost >= NPR
    WP = [[None] * 8 for _ in range(16)]
    spare = [23]
    def woload(i):
        def f():
            a(f"s_mov_b32 s19, {i*1280}")
            a(f"buffer_load_dwordx4 {x4(S(WS[i]))}, v2, {srd(WO)}, s19 offen {wflags}", tag=("wo", i))
        return f
    def woperm(k):
        def f():
            a.waitv(("wo", 2 * k + 1))
            for d in range(4):
                A_, B_ = S(WS[2 * k]) + d, S(WS[2 * k + 1]) + d
                s = spare[0]
                a(f"v_perm_b32 v{s}, v{B_}, v{A_}, s{SLO}"); a(f"v_perm_b32 v{B_}, v{B_}, v{A_}, s{SHI}")
                WP[k][2 * d] = s; WP[k][2 * d + 1] = B_; spare[0] = A_
        return f
    for i in range(32):
        if "wo" not in skip: hooks[wost + wostep * i].append(woload(i))
    for k in range(16): hooks[min(255, wost + wostep * (2 * k + 1) + D + 3)].append(woperm(k))
    def flagld():
        if f0: a("s_lshl_b32 s13, s3, 8"); a(f"buffer_load_dword v28, off, {srd(DBG)}, s13 sc1", tag="flagld")
        else: a(f"buffer_load_dword v28, off, {srd(DBG)}, 0 sc1", tag="flagld")
    if proto: hooks[flt].append(flagld)
    def release(t):
        if slot[t] >= 56 - D: free.append(slot[t])
        if free and (kn[0] - t - 1 < D or t % shr == shr - 1): kload(free.pop(0))
    def lvl(s_, t):
        if s_ % 2 == 1:
            x, y = X[(s_ - 1) % 4], X[s_ % 4]
            a(f"v_permlane16_swap_b32 v{x}, v{y}"); a(f"v_add_f32 v{Y[(s_>>1)&1]}, v{x}, v{y}")
        if s_ % 4 == 3:
            z = Z[(s_ >> 2) & 1]
            a(f"v_add_f32_dpp v{z}, v{Y[0]}, v{Y[0]} row_ror:8 row_mask:0xf bank_mask:0x3")
            a(f"v_add_f32_dpp v{z}, v{Y[1]}, v{Y[1]} row_ror:8 row_mask:0xf bank_mask:0xc")
        if s_ % 8 == 7:
            w = W_[(s_ >> 3) & 1]
            a(f"v_add_f32_dpp v{w}, v{Z[0]}, v{Z[0]} row_shl:4 row_mask:0xf bank_mask:0x5")
            a(f"v_add_f32_dpp v{w}, v{Z[1]}, v{Z[1]} row_shr:4 row_mask:0xf bank_mask:0xa")
            a(f"v_add_f32_dpp v{w}, v{w}, v{w} quad_perm:[2,3,0,1] row_mask:0xf bank_mask:0xf")
        if s_ % 16 == 15:
            u = U[(s_ >> 4) & 1]
            a(f"v_cndmask_b32_e64 v{u}, v{W_[0]}, v{W_[1]}, s[{MB1}:{MB1+1}]")
            a(f"v_add_f32_dpp v{u}, v{u}, v{u} quad_perm:[1,0,3,2] row_mask:0xf bank_mask:0xf")
        if s_ == 31:
            a(f"v_cndmask_b32_e64 v{SC[t//32]}, v{U[0]}, v{U[1]}, s[{MB0}:{MB0+1}]")
    if NL:
        a("s_lshl_b32 s13, s3, 10"); a(f"s_add_u32 s13, s13, {LDS_SIZE}"); a("v_add_u32 v23, s13, v10"); a("v_add_u32 v28, 0x10000, v23")
        assert NPR + NL < min(flt, wost + wostep + D + 3) and NPR - lpf >= 2 * D
    for t in range(128):
        tp = t + lpf
        if tp in slot and slot[tp] < 0:
            j = -1 - slot[tp]; slot[tp] = 55 - D - (j % 8)
            a.waitv(("kv", tp))
            a(f"ds_read_b96 {x3(S(slot[tp]))}, v{23 if j < 8 else 28} offset:{(j%8)*8192}", tag=("kl", tp))
        a.waitl(("kl", t))
        r = S(slot[t]); hreg = X[t % 4]
        a.waitv(("kv", t))
        if t % 8 == 7: fstamp()
        a(f"v_dot2_f32_bf16 v{hreg}, v{r}, v{Q[0]}, 0")
        a(f"v_dot2_f32_bf16 v{hreg}, v{r+1}, v{Q[1]}, v{hreg}")
        a(f"v_dot2_f32_bf16 v{hreg}, v{r+2}, v{Q[2]}, v{hreg}")
        release(t)
        if t > 0: lvl((t - 1) % 32, t - 1)
        if t == 127: lvl(31, t)
        for f in hooks[t]: f()
        if bar and t % bar == bar - 1: a("s_barrier")
    stamp()
    a("s_mov_b32 s14, 0xffff0000")
    for j in (0, 2):
        a(f"v_cvt_pk_bf16_f32 v6, v{SC[j]}, v{SC[j+1]}")
        a(f"v_lshlrev_b32 v{SC[j]}, 16, v6"); a(f"v_and_b32 v{SC[j+1]}, s14, v6")
        a(f"v_mul_f32 v{SC[j]}, {SCALE:#x}, v{SC[j]}"); a(f"v_mul_f32 v{SC[j+1]}, {SCALE:#x}, v{SC[j+1]}")
        a(f"v_cvt_pk_bf16_f32 v6, v{SC[j]}, v{SC[j+1]}")
        a(f"v_lshlrev_b32 v{SC[j]}, 16, v6"); a(f"v_and_b32 v{SC[j+1]}, s14, v6")
    def wave_red(op, r, sdst):
        for m in ("quad_perm:[1,0,3,2] row_mask:0xf", "quad_perm:[2,3,0,1] row_mask:0xf", "row_half_mirror row_mask:0xf", "row_mirror row_mask:0xf",
                  "row_bcast:15 row_mask:0xa", "row_bcast:31 row_mask:0xc"):
            a(f"{op}_dpp v{r}, v{r}, v{r} {m} bank_mask:0xf")
        a(f"v_readlane_b32 s{sdst}, v{r}, 63")
    a(f"v_max3_f32 v6, v{SC[0]}, v{SC[1]}, v{SC[2]}"); a(f"v_max_f32 v6, v6, v{SC[3]}")
    wave_red("v_max_f32", 6, 20)
    a(f"v_mov_b32 v7, {LOG2E:#x}")
    a("v_mul_f32 v6, s20, v7")
    for j in range(4): a(f"v_fma_f32 v{SC[j]}, v{SC[j]}, v7, -v6")
    for j in range(4): a(f"v_exp_f32 v{SC[j]}, v{SC[j]}")
    a("v_bfrev_b32 v4, v0"); a("v_lshrrev_b32 v4, 27, v4"); a("v_lshlrev_b32 v4, 1, v4")
    a("v_lshrrev_b32 v11, 5, v0"); a("v_lshlrev_b32 v11, 8, v11"); a("s_lshl_b32 s13, s3, 9"); a("v_add_u32 v11, s13, v11")
    a("v_add_u32 v4, v4, v11")
    a(f"v_cvt_pk_bf16_f32 v8, v{SC[0]}, v{SC[1]}"); a(f"v_cvt_pk_bf16_f32 v9, v{SC[2]}, v{SC[3]}")
    a(f"ds_write_b16 v4, v8 offset:{LDS_P}"); a(f"ds_write_b16_d16_hi v4, v8 offset:{LDS_P+64}")
    a(f"ds_write_b16 v4, v9 offset:{LDS_P+128}"); a(f"ds_write_b16_d16_hi v4, v9 offset:{LDS_P+192}")
    a(f"v_add_f32 v6, v{SC[0]}, v{SC[1]}"); a(f"v_add_f32 v7, v{SC[2]}, v{SC[3]}"); a("v_add_f32 v6, v6, v7")
    wave_red("v_add_f32", 6, 21)
    a("v_mov_b32 v20, s20"); a("v_mov_b32 v21, s21")
    a(f"buffer_store_dwordx2 v[20:21], v5, {srd(ML)}, 0 offen sc1", tag="mlst")
    if proto:
        a.waitv("flagld")
        a("v_readfirstlane_b32 s13, v28")
        if f0: a("s_lshl_b32 s14, s3, 8"); a("s_add_u32 s13, s13, s14")
        a("s_cmp_ge_u32 s13, 256"); a("s_cbranch_scc0 L_flag_slow")
        a.label("L_flag_ok")
    PB = [4, 24]
    VA = HR[6:12]; T = HR[0:6]; R_ = HR[12]
    a.waitl()
    a(f"ds_read_b128 {x4(PB[0])}, v11 offset:{LDS_P}", tag=("pb", 0))
    a(f"ds_read_b128 {x4(PB[1])}, v11 offset:{LDS_P+16}", tag=("pb", 1))
    for j in range(6): a(f"v_mov_b32 v{VA[j]}, 0")
    def mlload():
        a("v_lshlrev_b32 v8, 3, v0")
        a(f"buffer_load_dwordx2 v[8:9], v8, {srd(ML)}, 0 offen sc1", tag="ml")
    hooks[128 + 2 * mlld + 1].append(mlload)
    def mlproc():
        a.waitv("ml")
        r = R_
        if proto:
            a(f"v_max_u32 v{r}, v8, v9"); a(f"v_cmp_eq_u32 vcc, -1, v{r}")
            a("s_cbranch_vccnz L_ml_slow")
            a.label("L_ml_ok")
        a(f"v_mov_b32 v{r}, v8")
        for m in ("quad_perm:[1,0,3,2]", "quad_perm:[2,3,0,1]", "row_half_mirror", "row_mirror"):
            a(f"v_max_f32_dpp v{r}, v{r}, v{r} {m} row_mask:0xf bank_mask:0xf")
        a(f"v_sub_f32 v8, v8, v{r}"); a(f"v_mul_f32 v8, {LOG2E:#x}, v8"); a("v_exp_f32 v8, v8"); a("v_mul_f32 v8, v8, v9")
        for m in ("quad_perm:[1,0,3,2]", "quad_perm:[2,3,0,1]", "row_half_mirror", "row_mirror"):
            a(f"v_add_f32_dpp v8, v8, v8 {m} row_mask:0xf bank_mask:0xf")
        a(f"v_sub_f32 v{r}, s20, v{r}"); a(f"v_mul_f32 v{r}, {LOG2E:#x}, v{r}"); a(f"v_exp_f32 v{r}, v{r}")
        a("v_rcp_f32 v8, v8"); a(f"v_mul_f32 v{r}, v{r}, v8"); a(f"v_mul_f32 v{r}, s22, v{r}")
        a(f"v_readfirstlane_b32 s24, v{r}")
        a("s_lshl_b32 s13, s3, 10"); a("v_add_u32 v8, s13, v10")
        a("v_and_b32 v9, 31, v0"); a("v_lshlrev_b32 v9, 1, v9"); a(f"v_lshrrev_b32 v{r}, 5, v0"); a(f"v_add_u32 v9, v9, v{r}"); a("v_mul_u32_u24 v9, 6, v9")
        a("s_lshl_b32 s13, s3, 9"); a("v_add_u32 v9, s13, v9")
        a("v_lshl_add_u32 v29, v30, 6, s13")
        a("s_mul_i32 s8, s2, 1639"); a("s_lshr_b32 s8, s8, 16")
        a("s_mul_i32 s9, s8, 40"); a("s_sub_u32 s9, s2, s9")
        a(f"s_mul_i32 s13, s8, {64*2560}"); a("s_lshl_b32 s14, s9, 6"); a("s_add_u32 s13, s13, s14"); mk(RP, 38, "s13")
        a(f"s_mov_b32 s{RP+2}, {63*2560+64}"); a(f"s_mov_b32 s{RP+3}, 0x20000")
        a("s_mul_i32 s13, s8, 1280"); a("s_lshl_b32 s14, s9, 5"); a("s_add_u32 s13, s13, s14")
        mk(OUT, 34, "s13"); a(f"s_mov_b32 s{OUT+2}, 32"); a(f"s_mov_b32 s{OUT+3}, 0x20000")
        a("v_lshrrev_b32 v20, 2, v0"); a("v_mul_u32_u24 v20, 2560, v20"); a("v_and_b32 v21, 3, v0"); a("v_lshl_add_u32 v20, v21, 4, v20")
        a("v_lshrrev_b32 v22, 4, v0"); a("v_lshl_add_u32 v21, v21, 2, v22"); a("v_lshlrev_b32 v21, 1, v21")
        a("s_mov_b32 s25, 40960"); a("s_mov_b32 s26, 81920"); a("s_mov_b32 s27, 122880")
        a(f"s_mov_b32 s28, {spin}")
    hooks[128 + 2 * mlpr + 1].append(mlproc)
    for k in range(64):
        t = 128 + 2 * k
        a.waitv(("kv", t + 1))
        if t % 8 == 6: fstamp()
        A_, B_ = S(slot[t]), S(slot[t + 1])
        for d in range(3):
            a(f"v_perm_b32 v{T[2*d]}, v{B_+d}, v{A_+d}, s{SLO}"); a(f"v_perm_b32 v{T[2*d+1]}, v{B_+d}, v{A_+d}, s{SHI}")
        release(t); release(t + 1)
        j4 = k // 4
        a.waitl(("pb", j4))
        pr = PB[j4 % 2] + k % 4
        for j in range(6): a(f"v_dot2c_f32_bf16 v{VA[j]}, v{T[j]}, v{pr}")
        if k % 4 == 3 and j4 + 2 < 16:
            a(f"ds_read_b128 {x4(PB[j4%2])}, v11 offset:{LDS_P+16*(j4+2)}", tag=("pb", j4 + 2))
        for f in hooks[t] + hooks[t + 1]: f()
        if bar and (t + 1) % bar == bar - 1 and t + 1 < 255 - D: a("s_barrier")
    stamp()
    for j in range(3): a(f"v_permlane32_swap_b32 v{VA[j]}, v{VA[j+3]}")
    for j in range(3): a(f"v_add_f32 v{VA[j]}, v{VA[j]}, v{VA[j+3]}")
    for j in range(3): a(f"v_mul_f32 v{4+j}, s24, v{VA[j]}")
    a(f"ds_write_b96 v8, v[4:6] offset:{LDS_O}")
    a.waitl(); a("s_barrier")
    RS = lambda w: S(40 + w)
    for w in range(8):
        if r128: a(f"ds_read_b128 {x4(RS(w))}, v10 offset:{LDS_O+1024*w}", tag=("or", w))
        else: a(f"ds_read_b96 {x3(RS(w))}, v10 offset:{LDS_O+1024*w}", tag=("or", w))
    for w in range(1, 8):
        a.waitl(("or", w))
        for j in range(3): a(f"v_add_f32 v{RS(0)+j}, v{RS(0)+j}, v{RS(w)+j}")
    a(f"v_cvt_pk_bf16_f32 v4, v{RS(0)}, v{RS(0)+1}"); a(f"v_cvt_pk_bf16_f32 v5, v{RS(0)+2}, v{RS(0)+2}")
    a(f"ds_write_b16 v9, v4 offset:{LDS_OB}"); a(f"ds_write_b16_d16_hi v9, v4 offset:{LDS_OB+2}"); a(f"ds_write_b16 v9, v5 offset:{LDS_OB+4}")
    a.waitl()
    OP = [S(48 + i) for i in range(4)]
    for i in range(4): a(f"ds_read_b128 {x4(OP[i])}, v29 offset:{LDS_OB+16*i}", tag=("ob", i))
    for k in range(16):
        a.waitl(("ob", k // 4))
        for j in range(8): a(f"v_dot2c_f32_bf16 v{ACC[j]}, v{WP[k][j]}, v{OP[k//4]+k%4}")
    for j in range(4): a(f"v_permlane32_swap_b32 v{ACC[j]}, v{ACC[j+4]}")
    for j in range(4): a(f"v_add_f32 v{ACC[j]}, v{ACC[j]}, v{ACC[j+4]}")
    for j in range(4): a(f"v_add_f32_dpp v{4+j}, v{ACC[j]}, v{ACC[j]} row_shl:5 row_mask:0xf bank_mask:0xf")
    for j in range(4): a(f"v_add_f32_dpp v{4+j}, v{ACC[j]}, v{4+j} row_shl:10 row_mask:0xf bank_mask:0xf")
    for j in range(4): a(f"v_min_u32 v{4+j}, -2, v{4+j}")
    a("s_mov_b32 exec_lo, 0x001f001f"); a("s_mov_b32 exec_hi, 0x001f001f")
    a(f"buffer_store_dwordx4 v[4:7], v31, {srd(P)}, 0 offen sc1")
    a("s_mov_b64 exec, -1")
    stamp()
    a("s_cmp_lg_u32 s3, 0"); a("s_cbranch_scc1 L_fin")
    a("s_cmp_ge_u32 s2, 160"); a("s_cbranch_scc1 L_fin")
    a.label("L_poll")
    for i in range(4):
        a(f"buffer_load_dwordx4 {x4(32+4*i)}, v20, {srd(RP)}, {['0','s25','s26','s27'][i]} offen sc1")
    a.waitv_all()
    a("v_max3_u32 v4, v32, v33, v34")
    for i in range(35, 47, 2): a(f"v_max3_u32 v4, v4, v{i}, v{i+1}")
    a("v_max_u32 v4, v4, v47")
    a("v_cmp_eq_u32 vcc, -1, v4")
    a("s_sub_u32 s28, s28, 1"); a("s_cbranch_scc1 L_red")
    a("s_cbranch_vccnz L_poll")
    a.label("L_red")
    for j in range(4):
        a(f"v_add_f32 v{32+j}, v{32+j}, v{36+j}"); a(f"v_add_f32 v{40+j}, v{40+j}, v{44+j}")
    for j in range(4): a(f"v_add_f32 v{32+j}, v{32+j}, v{40+j}")
    a("v_permlane32_swap_b32 v32, v34"); a("v_permlane32_swap_b32 v33, v35")
    a("v_add_f32 v32, v32, v34"); a("v_add_f32 v33, v33, v35")
    a("v_permlane16_swap_b32 v32, v33"); a("v_add_f32 v32, v32, v33")
    a("v_add_f32_dpp v32, v32, v32 row_ror:8 row_mask:0xf bank_mask:0xf")
    a("v_add_f32_dpp v32, v32, v32 row_ror:4 row_mask:0xf bank_mask:0xf")
    a("v_cvt_pk_bf16_f32 v32, v32, v32")
    a("s_mov_b32 exec_lo, 0x000f000f"); a("s_mov_b32 exec_hi, 0x000f000f")
    a(f"buffer_store_short v32, v21, {srd(OUT)}, 0 offen")
    a("s_mov_b64 exec, -1")
    if stamps:
        a.waitv_all()
        a("s_memrealtime s[14:15]"); a.waitl(); a(f"v_writelane_b32 v3, s14, {nst[0]}")
    a.label("L_fin")
    if stamps:
        a("s_lshl_b32 s13, s2, 3"); a("s_add_u32 s13, s13, s3"); a(f"s_lshl_b32 s13, s13, {8 if fine else 5}"); a(f"s_add_u32 s13, s13, {STOFF}")
        mk(RP, 38, "s13"); a(f"s_mov_b32 s{RP+2}, {256 if fine else 32}"); a(f"s_mov_b32 s{RP+3}, 0x20000")
        if fine: a.comment("FLIST " + " ".join(map(str, flist)))
        a("v_lshlrev_b32 v1, 2, v0")
        a(f"buffer_store_dword v3, v1, {srd(RP)}, 0 offen")
        if stamps > 1:
            a("s_cmp_lg_u32 s3, 0"); a("s_cbranch_scc1 L_end")
            a("v_mov_b32_dpp v4, v3 row_shr:8 row_mask:0xf bank_mask:0xf")
            a("v_cmp_eq_u32 vcc, 0, v4"); a("v_not_b32 v4, v4"); a("v_cndmask_b32_e64 v4, v4, 0, vcc")
            a("v_cmp_gt_u32 vcc, 8, v0"); a("v_cndmask_b32 v4, v4, v3, vcc")
            a("s_mov_b64 exec, 0x7f7f")
            a(f"buffer_atomic_umax v4, v1, {srd(DBG)}, 0 offen offset:4 sc1")
    if probe >= 0:
        a("s_cmp_lg_u32 s3, 0"); a("s_cbranch_scc1 L_end");
        if pwg >= 0: a(f"s_cmp_lg_u32 s2, {pwg}"); a("s_cbranch_scc1 L_end")
        a(f"v_readlane_b32 s8, v3, {probe}"); a("s_add_u32 s8, s8, 12000"); a("s_mov_b32 s9, 100000")
        a.label("L_pr")
        a("s_memrealtime s[14:15]"); a.waitl()
        a("s_sub_u32 s9, s9, 1"); a("s_cbranch_scc1 L_end")
        a("s_sub_u32 s10, s14, s8"); a("s_cmp_lt_i32 s10, 0"); a("s_cbranch_scc1 L_pr")
    a.label("L_end")
    a("s_endpgm")
    if proto:
        a.vm = []; a.lg = []; a.pend = {}
        a.label("L_flag_slow")
        a(f"s_mov_b32 s28, {spin}")
        a.label("L_flag_loop")
        a("s_sleep 8")
        a(f"buffer_load_dword v28, off, {srd(DBG)}, 0 sc1"); a.waitv_all()
        a("v_readfirstlane_b32 s13, v28")
        a("s_sub_u32 s28, s28, 1"); a("s_cbranch_scc1 L_flag_ok")
        a("s_cmp_ge_u32 s13, 256"); a("s_cbranch_scc0 L_flag_loop")
        a("s_branch L_flag_ok")
        a.label("L_ml_slow")
        a(f"s_mov_b32 s28, {spin}")
        a.label("L_ml_loop")
        a("s_sleep 8")
        a("v_lshlrev_b32 v8, 3, v0")
        a(f"buffer_load_dwordx2 v[8:9], v8, {srd(ML)}, 0 offen sc1"); a.waitv_all()
        a(f"v_max_u32 v{HR[12]}, v8, v9"); a(f"v_cmp_eq_u32 vcc, -1, v{HR[12]}")
        a("s_sub_u32 s28, s28, 1"); a("s_cbranch_scc1 L_ml_ok")
        a("s_cbranch_vccnz L_ml_loop")
        a("s_branch L_ml_ok")
    a.raw('.section .rodata,"a"'); a.raw(".p2align 6"); a.raw(f".amdhsa_kernel {KN}_kernel")
    for l in ["next_free_vgpr 256", "next_free_sgpr 102", "accum_offset 256", "group_segment_fixed_size 0", "kernarg_size 96", "user_sgpr_count 2",
              "user_sgpr_kernarg_segment_ptr 1", "system_sgpr_workgroup_id_x 1"]: a.raw("  .amdhsa_" + l)
    a.raw(".end_amdhsa_kernel")
    sys.stderr.write(f"slots {a.n} nops {a.nops} maxv {a.maxv} tf1 {tf1} tf2 {tf2}\n")
    return a.text()

if __name__ == "__main__":
    out = sys.argv[1]
    kw = {}
    for kv in sys.argv[2:]:
        k, v = kv.split("=")
        kw[k] = int(v) if v.lstrip("-").isdigit() else v.replace("+", " ")
    open(out, "w").write(gen(**kw))
```

```python
import sys, struct
from asmlib import Asm
KN = "gated_mix__gqa_block_cached__dense_activation_silu__decode"
def f2u(f): return struct.unpack("<I", struct.pack("<f", f))[0]
LOG2E = f2u(1.4426950408889634)
SCALE = f2u(192 ** -0.5)
MLOFF = 1 << 20
STOFF = 2 << 20
QOFF = 3 << 20
LDS_Q, LDS_O, LDS_P, LDS_OB, LDS_H = 0, 8192, 17408, 21504, 25600
LDS_SIZE = 32768

def gen(D=8, D0=8, k0=2, kq=1, pbar=4, bar=16, shr=3, stamps=0, kflags="nt", vflags="nt", wflags="-", spin=200000,
        nack=6, nflag=28, fl1=0, fl2=0, w2st=50, wost=60, wostep=4, mlld=30, mlpr=50, probe=-1, pwg=0, skip='', stag=13, flt=100, fine=0,
        gst=20, fw0=0):
    a = Asm()
    hdr = open("cdna_kernels/" + KN + ".s.ref").read().split("; Override launch")[0]
    a.raw(hdr.rstrip())
    a.raw(f"; @launch grid=(256,1,1) block=(512,1,1) lds={LDS_SIZE}")
    a.raw('.amdgcn_target "amdgcn-amd-amdhsa--gfx950"')
    a.raw(".text"); a.raw(f".globl {KN}_kernel"); a.raw(".p2align 8"); a.raw(f".type {KN}_kernel,@function"); a.raw(f"{KN}_kernel:")
    K, V, WQ, WO, W1, W2, QS, XF, GW, P, ML, DBG, RP, OUT = [40 + 4 * i for i in range(14)]
    QL = WQ
    def srd(n): return f"s[{n}:{n+3}]"
    SLO, SHI, MB1, MB0 = 96, 97, 98, 100
    S = lambda s: 32 + 4 * s
    H = lambda s: 32 + 4 * s + 3
    def x2(r): return f"v[{r}:{r+1}]"
    def x3(r): return f"v[{r}:{r+2}]"
    def x4(r): return f"v[{r}:{r+3}]"
    HR = [H(56 - 16 + i) for i in range(16)]
    nst = [0]
    def stamp():
        if not stamps: return
        a("s_memrealtime s[14:15]"); a.waitl()
        a(f"v_writelane_b32 v3, s14, {nst[0]}")
        nst[0] += 1
    def xstamp(i):
        if not fine: return
        a("s_memrealtime s[14:15]"); a.waitl()
        a(f"v_writelane_b32 v3, s14, {i}")
    fn = [8]; flist = []
    def fstamp():
        if not fine: return
        out = [t[1] for t in a.vm if isinstance(t, tuple) and t[0] == "kv"]
        landed = min(out) if out else kn[0]
        a("s_memrealtime s[14:15]"); a.waitl()
        a(f"v_writelane_b32 v3, s14, {fn[0]}")
        fn[0] += 1; flist.append(landed); assert fn[0] <= 56
    a("s_cmp_ge_u32 s2, 256"); a("s_cbranch_scc1 L_end")
    a("s_load_dwordx16 s[16:31], s[0:1], 0")
    a("s_load_dwordx8 s[32:39], s[0:1], 64")
    a("v_lshrrev_b32 v1, 6, v0")
    a("v_lshlrev_b32 v11, 8, v0")
    a("v_readfirstlane_b32 s3, v1")
    a("v_and_b32 v0, 63, v0")
    a("s_and_b32 s8, s2, 7"); a("s_lshr_b32 s9, s2, 3")
    a("s_and_b32 s10, s9, 7")
    a("s_lshr_b32 s4, s10, 1"); a("s_and_b32 s6, s10, 1")
    a("s_lshr_b32 s5, s9, 3"); a("s_lshl2_add_u32 s5, s8, s5")
    a("s_lshl1_add_u32 s7, s5, s6")
    a("s_lshl_b32 s11, s4, 6"); a("s_add_u32 s11, s11, s7")
    STEP = 12288
    SPAN = 1572864 - 6144 - 7 * 768
    a("s_lshr_b32 s12, s11, 1"); a("s_mul_i32 s12, s12, 1572864"); a("s_lshl3_add_u32 s13, s6, s3"); a("s_mul_i32 s13, s13, 768"); a("s_add_u32 s12, s12, s13")
    a(f"s_mul_i32 s15, s11, {stag}"); a("s_and_b32 s15, s15, 127"); a(f"s_mul_i32 s15, s15, {STEP}")
    a("v_mul_u32_u24 v1, 12, v0")
    a("v_lshlrev_b32 v2, 3, v0")
    a("v_subrev_u32 v6, 384, v2")
    for n in (K, WQ, W1): a(f"s_mov_b32 s{n+3}, 0x20000")
    a(f"s_mov_b32 s{K+2}, {SPAN}")
    a(f"s_mov_b32 s{WQ+2}, {9*12288+384}")
    a(f"s_mov_b32 s{W1+2}, {9*3072+96}")
    a("s_lshl3_add_u32 s9, s10, s3")
    a(f"s_mul_i32 s13, s9, {10*12288}"); a("s_mul_i32 s14, s5, 384"); a("s_add_u32 s13, s13, s14")
    a("s_lshr_b32 s8, s13, 2")
    a("s_mul_i32 s9, s9, 20")
    if stamps: a("v_mov_b32 v3, 0")
    a.waitl()
    def mk(n, ptr, off):
        a(f"s_add_u32 s{n}, s{ptr}, {off}"); a(f"s_addc_u32 s{n+1}, s{ptr+1}, 0")
    mk(K, 18, "s12")
    a("s_mov_b32 s18, s15")
    stamp()
    free = []; slot = {}
    init = list(range(56 - D, 56)) + list(range(55 - D, 7, -1))
    kn = [0]
    def kvf(t):
        fl = kflags if t < 128 else vflags
        return "" if fl == "-" else fl
    if wflags == "-": wflags = ""
    def kload(sl):
        t = kn[0]
        if t >= 256: return
        kn[0] += 1; slot[t] = sl
        a(f"buffer_load_dwordx3 {x3(S(sl))}, v1, {srd(K if t < 128 else V)}, s18 offen {kvf(t)}", tag=("kv", t))
        if t < 255: a(f"s_add_u32 s18, s18, {STEP}"); a(f"s_cmp_eq_u32 s18, {128*STEP}"); a("s_cselect_b32 s18, 0, s18")
    def kpre(): kload(init[kn[0]])
    for t in range(k0): kpre()
    mk(WQ, 22, "s13"); mk(W1, 28, "s8"); mk(26, 16, "s9")
    XS = [[88, 89, 90, 91, 60], [92, 93, 94, 95, 61], [68, 69, 70, 71, 62], [72, 73, 74, 75, 63]]
    WR_ = lambda i: 32 + 2 * i
    for p in range(5):
        a("s_mov_b32 exec_hi, 0xffff")
        if p: a("s_mov_b32 exec_lo, -1")
        for i in (2 * p, 2 * p + 1):
            if i: a(f"s_mov_b32 s19, {i*12288}")
            a(f"buffer_load_dwordx2 {x2(WR_(i))}, v2, {srd(WQ)}, {'s19' if i else 0} offen {wflags}", tag=("wq", i))
            a.pend.pop(WR_(i)); a.pend.pop(WR_(i) + 1)
        a("s_mov_b32 exec_lo, 0"); a("s_mov_b32 exec_hi, 0x0fff0000")
        if p: a(f"s_mov_b32 s19, {p*6144}")
        for i in (2 * p, 2 * p + 1):
            a(f"buffer_load_dwordx2 {x2(WR_(i))}, v6, {srd(W1)}, {'s19' if p else 0} offen offset:{3072*(i&1)} {wflags}", tag=("w1", i))
        if p == 0:
            for b in range(4):
                a(f"s_load_dwordx4 s[{XS[b][0]}:{XS[b][3]}], s[26:27], {1280*b}")
                a(f"s_load_dword s{XS[b][4]}, s[26:27], {1280*b+16}")
    a("s_mov_b64 exec, -1")
    a("s_mul_i32 s8, s3, 160")
    a("s_mul_i32 s9, s4, 1280")
    for n in (P, ML): a(f"s_mov_b32 s{n+3}, 0x20000")
    a(f"s_mov_b32 s{P+2}, 320"); a(f"s_mov_b32 s{ML+2}, 128")
    a("s_mul_i32 s13, s11, 2560"); a("s_lshl_b32 s14, s8, 1"); a("s_add_u32 s13, s13, s14"); mk(P, 38, "s13")
    a("s_lshr_b32 s13, s11, 1"); a("s_lshl_b32 s13, s13, 7"); a(f"s_add_u32 s13, s13, {MLOFF}"); mk(ML, 38, "s13")
    for i in range(6, 10): a(f"v_mov_b32 v{i}, -1")
    a("v_lshlrev_b32 v10, 4, v0")
    a("s_lshl_b32 s13, s6, 3"); a("s_add_u32 s13, s13, s3"); a("s_lshl_b32 s13, s13, 3")
    a("v_lshlrev_b32 v5, 7, v0"); a("v_add_u32 v5, s13, v5")
    a(f"buffer_store_dwordx4 v[6:9], v10, {srd(P)}, 0 offen sc1", tag="clr0")
    a(f"buffer_store_dwordx2 v[6:7], v5, {srd(ML)}, 0 offen sc1", tag="clr1")
    while kn[0] < D0: kpre()
    a(f"s_mov_b32 s{SLO}, 0x05040100"); a(f"s_mov_b32 s{SHI}, 0x07060302")
    a(f"s_mov_b32 s{MB1}, 0xcccccccc"); a(f"s_mov_b32 s{MB1+1}, 0xcccccccc")
    a(f"s_mov_b32 s{MB0}, 0xaaaaaaaa"); a(f"s_mov_b32 s{MB0+1}, 0xaaaaaaaa")
    for n in (V, WO, QS, DBG): a(f"s_mov_b32 s{n+3}, 0x20000")
    a(f"s_mov_b32 s{V+2}, {SPAN}")
    a(f"s_mov_b32 s{WO+2}, {191*1280+160}")
    a(f"s_mov_b32 s{DBG+2}, 256"); a(f"s_mov_b32 s{QS+2}, 512")
    mk(V, 20, "s12")
    a(f"s_mul_i32 s13, s5, {192*1280}"); a("s_add_u32 s13, s13, s8"); mk(WO, 24, "s13")
    mk(DBG, 36, "0")
    a("s_lshl_b32 s12, s5, 15"); a(f"s_add_u32 s12, s12, {QOFF}")
    a("s_lshr_b32 s13, s3, 1"); a("s_lshl3_add_u32 s13, s13, s10"); a("s_and_b32 s14, s3, 1"); a("s_lshl1_add_u32 s13, s13, s14"); a("s_lshl_b32 s13, s13, 9")
    a("s_add_u32 s13, s13, s12"); mk(QS, 38, "s13")
    a("s_lshl3_add_u32 s13, s4, s3"); a("s_lshl_b32 s13, s13, 10"); a("s_add_u32 s13, s13, s12"); mk(QL, 38, "s13")
    a(f"s_mov_b32 s{QL+2}, 1024")
    a("s_lshl3_add_u32 s29, s5, s10")
    a("s_lshl_b32 s21, s5, 3")
    a("s_lshl_b32 s13, s3, 12"); a("v_add_u32 v4, s13, v10")
    a("s_lshl_b32 s13, s3, 9"); a("v_add_u32 v28, s13, v2")
    stamp()
    a.waitl()
    T = HR[0:4]; QA = lambda b, c: 12 + 4 * b + c
    for p in range(5):
        a.waitv(("w1", 2 * p + 1))
        A_, B_ = WR_(2 * p), WR_(2 * p + 1)
        for d in range(2):
            a(f"v_perm_b32 v{T[2*d]}, v{B_+d}, v{A_+d}, s{SLO}"); a(f"v_perm_b32 v{T[2*d+1]}, v{B_+d}, v{A_+d}, s{SHI}")
        for i in range(kq): kpre()
        for b in range(4):
            for c in range(4):
                if p == 0: a(f"v_dot2_f32_bf16 v{QA(b,c)}, v{T[c]}, s{XS[b][p]}, 0")
                else: a(f"v_dot2c_f32_bf16 v{QA(b,c)}, s{XS[b][p]}, v{T[c]}")
    for b in range(4): a(f"ds_write_b128 v4, {x4(QA(b,0))} offset:{1024*b}")
    a.waitv("clr1")
    xstamp(56)
    a.waitl()
    a("s_barrier")
    for w in range(8): a(f"ds_read_b64 {x2(12+2*w)}, v28 offset:{4096*w}", tag=("pr", w))
    for n in (W2, XF, GW): a(f"s_mov_b32 s{n+3}, 0x20000")
    a(f"s_mov_b32 s{W2+2}, {23*1280+160}"); a(f"s_mov_b32 s{XF+2}, 160"); a(f"s_mov_b32 s{GW+2}, 160")
    a("s_add_u32 s13, s9, s8"); mk(XF, 16, "s13"); mk(GW, 32, "s8")
    a(f"s_mul_i32 s13, s7, {24*1280}"); a("s_add_u32 s13, s13, s8"); mk(W2, 30, "s13")
    for w in range(1, 8):
        a.waitl(("pr", w))
        a(f"v_pk_add_f32 v[12:13], v[12:13], {x2(12+2*w)}")
    a(f"buffer_store_dwordx2 v[12:13], v2, {srd(QS)}, 0 offen sc1", tag="qst")
    xstamp(57)
    ev = {}
    def at(n, f): ev.setdefault(n, []).append(f)
    n0 = kn[0]
    def e_ack():
        a.waitv("qst")
        a("s_barrier")
        a("v_mov_b32 v14, 1")
        a(f"buffer_store_byte v14, v11, {srd(DBG)}, s29 offen sc1", tag="flag")
        xstamp(58)
    at(n0 + nack, e_ack)
    def e_map():
        a("v_and_b32 v13, 15, v0"); a("v_mul_u32_u24 v18, 52, v13"); a("v_lshrrev_b32 v18, 8, v18")
        a("v_mul_u32_u24 v15, 5, v18"); a("v_sub_u32 v13, v13, v15")
        a("v_bfe_u32 v15, v0, 4, 1"); a("v_mad_u32_u24 v13, v15, 5, v13")
        a("v_lshrrev_b32 v15, 5, v0"); a("v_mad_u32_u24 v16, v15, 3, v18")
        a("v_cmp_eq_u32 vcc, 3, v18"); a("v_cndmask_b32_e64 v16, v16, 6, vcc")
        a("v_lshlrev_b32 v17, 4, v13")
        a(f"v_mul_u32_u24 v2, {32*1280}, v16"); a("v_add_u32 v2, v2, v17")
        a(f"v_mul_u32_u24 v11, {4*1280}, v16"); a("v_add_u32 v11, v11, v17")
        a("v_lshlrev_b32 v17, 1, v17"); a("v_lshl_add_u32 v31, v15, 4, v17")
        a("v_mov_b32 v30, v16")
        a("v_and_b32 v6, 31, v0"); a("v_mul_u32_u24 v6, 24, v6"); a("v_mad_u32_u24 v6, v15, 12, v6")
        a("v_lshlrev_b32 v7, 2, v0"); a("v_subrev_u32 v8, 96, v7")
        a(f"buffer_load_dword v{S(1)}, v8, {srd(XF)}, 0 offen {wflags}", tag="xf")
        a(f"buffer_load_dword v{S(1)+1}, v8, {srd(GW)}, 0 offen {wflags}", tag="gw")
        a("s_mul_i32 s20, s6, 96")
        a("s_lshl_b32 s13, s3, 10"); a("v_add_u32 v4, s13, v10")
    assert gst > n0 + nack
    at(gst, e_map)
    def e_gate():
        a.waitv("gw")
        xr, gr = S(1), S(1) + 1
        a("s_mov_b32 s13, 0x3f803f80"); a("s_mov_b32 s14, 0xffff0000")
        a(f"v_lshlrev_b32 v12, 16, v{xr}"); a(f"v_and_b32 v13, s14, v{xr}")
        a(f"v_lshlrev_b32 v14, 16, v{gr}"); a(f"v_and_b32 v15, s14, v{gr}")
        a("v_mul_f32 v12, v12, v14"); a("v_mul_f32 v13, v13, v15")
        a("v_cvt_pk_bf16_f32 v12, v12, v13")
        a("v_dot2_f32_bf16 v9, v12, s13, 0")
    at(gst + D + 1, e_gate)
    def e_flag():
        if fw0: a("s_lshl_b32 s13, s3, 8"); a("s_add_u32 s13, s13, s21"); a(f"buffer_load_dwordx2 v[20:21], off, {srd(DBG)}, s13 sc1", tag="qflag")
        else: a(f"buffer_load_dwordx2 v[20:21], off, {srd(DBG)}, s21 sc1", tag="qflag")
    at(nflag, e_flag)
    def e_chk():
        a.waitv("qflag")
        xstamp(59)
        if fw0: a("s_cmp_lg_u32 s3, 0"); a("s_cbranch_scc1 L_q_ok")
        a("v_and_b32 v20, v20, v21"); a("v_readfirstlane_b32 s13, v20")
        a("s_cmp_eq_u32 s13, 0x01010101"); a("s_cbranch_scc0 L_q_slow")
        a.label("L_q_ok")
        if fw0: a("s_barrier")
        xstamp(60)
        a(f"buffer_load_dwordx3 {x3(S(0))}, v6, {srd(QL)}, 0 offen sc1", tag="qp")
        a(f"buffer_load_dword v{H(0)}, v7, {srd(QL)}, s20 offen offset:768 sc1", tag="hp")
    nchk = nflag + (fl1 or D)
    at(nchk, e_chk)
    NP = nchk + (fl2 or D)
    assert NP <= len(init), (NP, len(init))
    assert gst + D + 1 < NP
    while kn[0] < NP:
        n = kn[0]
        a.waitv(("kv", n - D))
        if n % 4 == 0: fstamp()
        kpre()
        for f in ev.pop(n, []): f()
        if pbar and n % pbar == pbar - 1: a("s_barrier")
    assert not ev, ev
    a.waitv("hp")
    xstamp(61)
    a("v_cmp_gt_u32 vcc, 24, v0"); a(f"v_cndmask_b32 v{H(0)}, v9, v{H(0)}, vcc")
    a(f"ds_write_b128 v4, {x4(S(0))} offset:{LDS_Q}")
    a.waitl()
    a("s_barrier")
    for w in range(8): a(f"ds_read_b128 {x4(S(w))}, v10 offset:{LDS_Q+1024*w}", tag=("qr", w))
    for w in range(1, 8):
        a.waitl(("qr", w))
        a(f"v_pk_add_f32 {x2(S(0))}, {x2(S(0))}, {x2(S(w))}"); a(f"v_pk_add_f32 {x2(S(0)+2)}, {x2(S(0)+2)}, {x2(S(w)+2)}")
    for j in range(3): a(f"v_mov_b32 v{S(1)+j}, v{S(0)+j}")
    a(f"v_mov_b32 v29, v{H(0)}")
    for j in range(3): a(f"v_permlane32_swap_b32 v{S(0)+j}, v{S(1)+j}")
    Q = [20, 21, 22]
    a(f"v_cvt_pk_bf16_f32 v20, v{S(0)}, v{S(0)+1}")
    a(f"v_cvt_pk_bf16_f32 v21, v{S(0)+2}, v{S(1)}")
    a(f"v_cvt_pk_bf16_f32 v22, v{S(1)+1}, v{S(1)+2}")
    stamp()
    ACC = list(range(12, 20)); SC = [24, 25, 26, 27]
    X = HR[0:4]; Y = HR[4:6]; Z = HR[6:8]; W_ = HR[8:10]; U = HR[10:12]
    hooks = {t: [] for t in range(256)}
    FS = list(range(0, 8))
    def wave_red(op, r, sdst):
        for m in ("quad_perm:[1,0,3,2] row_mask:0xf", "quad_perm:[2,3,0,1] row_mask:0xf", "row_half_mirror row_mask:0xf", "row_mirror row_mask:0xf",
                  "row_bcast:15 row_mask:0xa", "row_bcast:31 row_mask:0xc"):
            a(f"{op}_dpp v{r}, v{r}, v{r} {m} bank_mask:0xf")
        a(f"v_readlane_b32 s{sdst}, v{r}, 63")
    def w2load(i):
        def f(): a(f"buffer_load_dwordx4 {x4(S(FS[i]))}, v11, {srd(W2)}, 0 offen offset:{1280*i} {wflags}", tag=("w2", i))
        return f
    for i in range(4):
        if "w2" not in skip: hooks[w2st + 2 * i].append(w2load(i))
    tf2 = w2st + 6 + D + 2
    def ffn1():
        a("v_cmp_gt_u32 vcc, 24, v0"); a("v_cndmask_b32_e64 v6, v29, 0, vcc")
        wave_red("v_add_f32", 6, 13)
        a("v_mov_b32 v6, s13"); a("v_cndmask_b32 v29, v6, v29, vcc")
        a("s_lshl_b32 s13, s3, 7"); a("v_lshl_add_u32 v6, v0, 1, s13")
        a("v_lshl_add_u32 v4, v30, 3, s13")
        a("v_cvt_pk_bf16_f32 v7, v29, v29"); a("v_lshlrev_b32 v7, 16, v7")
        a(f"v_mul_f32 v8, {LOG2E ^ 0x80000000:#x}, v7"); a("v_exp_f32 v8, v8"); a("v_add_f32 v8, 1.0, v8"); a("v_rcp_f32 v8, v8")
        a("v_mul_f32 v9, v7, v8"); a("v_cvt_pk_bf16_f32 v9, v9, v9")
        a(f"ds_write_b16 v6, v9 offset:{LDS_H}")
        a("v_cvt_pk_bf16_f32 v8, v8, v8"); a("v_lshlrev_b32 v8, 16, v8")
        a("v_sub_f32 v29, 1.0, v8"); a("v_cvt_pk_bf16_f32 v29, v29, v29"); a("v_lshlrev_b32 v29, 16, v29")
        a("v_readlane_b32 s22, v8, 24"); a("v_readlane_b32 s23, v29, 24")
        a.waitl()
        a(f"ds_read_b64 v[6:7], v4 offset:{LDS_H}", tag="hrd")
    hooks[tf2 - 2].append(ffn1)
    def ffn2():
        a.waitv(("w2", 3))
        a.waitl("hrd")
        for k in range(2):
            for d in range(4):
                A_, B_ = S(FS[2 * k]) + d, S(FS[2 * k + 1]) + d
                a(f"v_perm_b32 v8, v{B_}, v{A_}, s{SLO}"); a(f"v_perm_b32 v9, v{B_}, v{A_}, s{SHI}")
                a(f"v_dot2_f32_bf16 v{ACC[2*d]}, v8, v{6+k}, {'0' if k == 0 else 'v%d' % ACC[2*d]}")
                a(f"v_dot2_f32_bf16 v{ACC[2*d+1]}, v9, v{6+k}, {'0' if k == 0 else 'v%d' % ACC[2*d+1]}")
        for j in range(8): a(f"v_mul_f32 v{ACC[j]}, s23, v{ACC[j]}")
    hooks[tf2].append(ffn2)
    assert tf2 < 127
    WS = list(range(8, 40))
    assert wost >= NP
    WP = [[None] * 8 for _ in range(16)]
    spare = [23]
    def woload(i):
        def f():
            a(f"s_mov_b32 s19, {i*1280}")
            a(f"buffer_load_dwordx4 {x4(S(WS[i]))}, v2, {srd(WO)}, s19 offen {wflags}", tag=("wo", i))
        return f
    def woperm(k):
        def f():
            a.waitv(("wo", 2 * k + 1))
            for d in range(4):
                A_, B_ = S(WS[2 * k]) + d, S(WS[2 * k + 1]) + d
                s = spare[0]
                a(f"v_perm_b32 v{s}, v{B_}, v{A_}, s{SLO}"); a(f"v_perm_b32 v{B_}, v{B_}, v{A_}, s{SHI}")
                WP[k][2 * d] = s; WP[k][2 * d + 1] = B_; spare[0] = A_
        return f
    for i in range(32):
        if "wo" not in skip: hooks[wost + wostep * i].append(woload(i))
    for k in range(16): hooks[min(255, wost + wostep * (2 * k + 1) + D + 3)].append(woperm(k))
    def flagld():
        a("v_lshlrev_b32 v28, 2, v0"); a("s_lshl_b32 s13, s3, 8")
        a(f"buffer_load_dword v28, v28, {srd(DBG)}, s13 offen sc1", tag="flagld")
    hooks[flt].append(flagld)
    def release(t):
        if slot[t] >= 56 - D: free.append(slot[t])
        if free and (kn[0] - t - 1 < D or t % shr == shr - 1): kload(free.pop(0))
    def lvl(s_, t):
        if s_ % 2 == 1:
            x, y = X[(s_ - 1) % 4], X[s_ % 4]
            a(f"v_permlane16_swap_b32 v{x}, v{y}"); a(f"v_add_f32 v{Y[(s_>>1)&1]}, v{x}, v{y}")
        if s_ % 4 == 3:
            z = Z[(s_ >> 2) & 1]
            a(f"v_add_f32_dpp v{z}, v{Y[0]}, v{Y[0]} row_ror:8 row_mask:0xf bank_mask:0x3")
            a(f"v_add_f32_dpp v{z}, v{Y[1]}, v{Y[1]} row_ror:8 row_mask:0xf bank_mask:0xc")
        if s_ % 8 == 7:
            w = W_[(s_ >> 3) & 1]
            a(f"v_add_f32_dpp v{w}, v{Z[0]}, v{Z[0]} row_shl:4 row_mask:0xf bank_mask:0x5")
            a(f"v_add_f32_dpp v{w}, v{Z[1]}, v{Z[1]} row_shr:4 row_mask:0xf bank_mask:0xa")
            a(f"v_add_f32_dpp v{w}, v{w}, v{w} quad_perm:[2,3,0,1] row_mask:0xf bank_mask:0xf")
        if s_ % 16 == 15:
            u = U[(s_ >> 4) & 1]
            a(f"v_cndmask_b32_e64 v{u}, v{W_[0]}, v{W_[1]}, s[{MB1}:{MB1+1}]")
            a(f"v_add_f32_dpp v{u}, v{u}, v{u} quad_perm:[1,0,3,2] row_mask:0xf bank_mask:0xf")
        if s_ == 31:
            a(f"v_cndmask_b32_e64 v{SC[t//32]}, v{U[0]}, v{U[1]}, s[{MB0}:{MB0+1}]")
    for t in range(128):
        r = S(slot[t]); hreg = X[t % 4]
        a.waitv(("kv", t))
        if t % 8 == 7 and t >= NP - D: fstamp()
        a(f"v_dot2_f32_bf16 v{hreg}, v{r}, v{Q[0]}, 0")
        a(f"v_dot2_f32_bf16 v{hreg}, v{r+1}, v{Q[1]}, v{hreg}")
        a(f"v_dot2_f32_bf16 v{hreg}, v{r+2}, v{Q[2]}, v{hreg}")
        release(t)
        if t > 0: lvl((t - 1) % 32, t - 1)
        if t == 127: lvl(31, t)
        for f in hooks[t]: f()
        if bar and t % bar == bar - 1 and t >= NP - D: a("s_barrier")
    stamp()
    a("s_mov_b32 s14, 0xffff0000")
    for j in (0, 2):
        a(f"v_cvt_pk_bf16_f32 v6, v{SC[j]}, v{SC[j+1]}")
        a(f"v_lshlrev_b32 v{SC[j]}, 16, v6"); a(f"v_and_b32 v{SC[j+1]}, s14, v6")
        a(f"v_mul_f32 v{SC[j]}, {SCALE:#x}, v{SC[j]}"); a(f"v_mul_f32 v{SC[j+1]}, {SCALE:#x}, v{SC[j+1]}")
        a(f"v_cvt_pk_bf16_f32 v6, v{SC[j]}, v{SC[j+1]}")
        a(f"v_lshlrev_b32 v{SC[j]}, 16, v6"); a(f"v_and_b32 v{SC[j+1]}, s14, v6")
    a(f"v_max3_f32 v6, v{SC[0]}, v{SC[1]}, v{SC[2]}"); a(f"v_max_f32 v6, v6, v{SC[3]}")
    wave_red("v_max_f32", 6, 20)
    a(f"v_mov_b32 v7, {LOG2E:#x}")
    a("v_mul_f32 v6, s20, v7")
    for j in range(4): a(f"v_fma_f32 v{SC[j]}, v{SC[j]}, v7, -v6")
    for j in range(4): a(f"v_exp_f32 v{SC[j]}, v{SC[j]}")
    a("v_bfrev_b32 v4, v0"); a("v_lshrrev_b32 v4, 27, v4"); a("v_lshlrev_b32 v4, 1, v4")
    a("v_lshrrev_b32 v11, 5, v0"); a("v_lshlrev_b32 v11, 8, v11"); a("s_lshl_b32 s13, s3, 9"); a("v_add_u32 v11, s13, v11")
    a("v_add_u32 v4, v4, v11")
    a(f"v_cvt_pk_bf16_f32 v8, v{SC[0]}, v{SC[1]}"); a(f"v_cvt_pk_bf16_f32 v9, v{SC[2]}, v{SC[3]}")
    a(f"ds_write_b16 v4, v8 offset:{LDS_P}"); a(f"ds_write_b16_d16_hi v4, v8 offset:{LDS_P+64}")
    a(f"ds_write_b16 v4, v9 offset:{LDS_P+128}"); a(f"ds_write_b16_d16_hi v4, v9 offset:{LDS_P+192}")
    a(f"v_add_f32 v6, v{SC[0]}, v{SC[1]}"); a(f"v_add_f32 v7, v{SC[2]}, v{SC[3]}"); a("v_add_f32 v6, v6, v7")
    wave_red("v_add_f32", 6, 21)
    a("v_mov_b32 v20, s20"); a("v_mov_b32 v21, s21")
    a(f"buffer_store_dwordx2 v[20:21], v5, {srd(ML)}, 0 offen sc1", tag="mlst")
    a.waitv("flagld")
    a("s_cmp_lg_u32 s3, 0"); a("s_cbranch_scc1 L_flag_ok")
    a("v_cmp_ne_u32 vcc, 0x01010101, v28"); a("s_cbranch_vccnz L_flag_slow")
    a.label("L_flag_ok")
    PB = [4, 24]
    VA = HR[6:12]; T = HR[0:6]; R_ = HR[12]
    a.waitl()
    a(f"ds_read_b128 {x4(PB[0])}, v11 offset:{LDS_P}", tag=("pb", 0))
    a(f"ds_read_b128 {x4(PB[1])}, v11 offset:{LDS_P+16}", tag=("pb", 1))
    for j in range(6): a(f"v_mov_b32 v{VA[j]}, 0")
    def mlload():
        a("v_lshlrev_b32 v8, 3, v0")
        a(f"buffer_load_dwordx2 v[8:9], v8, {srd(ML)}, 0 offen sc1", tag="ml")
    hooks[128 + 2 * mlld + 1].append(mlload)
    def mlproc():
        a.waitv("ml")
        r = R_
        a(f"v_max_u32 v{r}, v8, v9"); a(f"v_cmp_eq_u32 vcc, -1, v{r}")
        a("s_cbranch_vccnz L_ml_slow")
        a.label("L_ml_ok")
        a(f"v_mov_b32 v{r}, v8")
        for m in ("quad_perm:[1,0,3,2]", "quad_perm:[2,3,0,1]", "row_half_mirror", "row_mirror"):
            a(f"v_max_f32_dpp v{r}, v{r}, v{r} {m} row_mask:0xf bank_mask:0xf")
        a(f"v_sub_f32 v8, v8, v{r}"); a(f"v_mul_f32 v8, {LOG2E:#x}, v8"); a("v_exp_f32 v8, v8"); a("v_mul_f32 v8, v8, v9")
        for m in ("quad_perm:[1,0,3,2]", "quad_perm:[2,3,0,1]", "row_half_mirror", "row_mirror"):
            a(f"v_add_f32_dpp v8, v8, v8 {m} row_mask:0xf bank_mask:0xf")
        a(f"v_sub_f32 v{r}, s20, v{r}"); a(f"v_mul_f32 v{r}, {LOG2E:#x}, v{r}"); a(f"v_exp_f32 v{r}, v{r}")
        a("v_rcp_f32 v8, v8"); a(f"v_mul_f32 v{r}, v{r}, v8"); a(f"v_mul_f32 v{r}, s22, v{r}")
        a(f"v_readfirstlane_b32 s24, v{r}")
        a("s_lshl_b32 s13, s3, 10"); a("v_add_u32 v8, s13, v10")
        a("v_and_b32 v9, 31, v0"); a("v_lshlrev_b32 v9, 1, v9"); a(f"v_lshrrev_b32 v{r}, 5, v0"); a(f"v_add_u32 v9, v9, v{r}"); a("v_mul_u32_u24 v9, 6, v9")
        a("s_lshl_b32 s13, s3, 9"); a("v_add_u32 v9, s13, v9")
        a("v_lshl_add_u32 v29, v30, 6, s13")
        a("s_mul_i32 s8, s2, 1639"); a("s_lshr_b32 s8, s8, 16")
        a("s_mul_i32 s9, s8, 40"); a("s_sub_u32 s9, s2, s9")
        a(f"s_mul_i32 s13, s8, {64*2560}"); a("s_lshl_b32 s14, s9, 6"); a("s_add_u32 s13, s13, s14"); mk(RP, 38, "s13")
        a(f"s_mov_b32 s{RP+2}, {63*2560+64}"); a(f"s_mov_b32 s{RP+3}, 0x20000")
        a("s_mul_i32 s13, s8, 1280"); a("s_lshl_b32 s14, s9, 5"); a("s_add_u32 s13, s13, s14")
        mk(OUT, 34, "s13"); a(f"s_mov_b32 s{OUT+2}, 32"); a(f"s_mov_b32 s{OUT+3}, 0x20000")
        a("v_lshrrev_b32 v20, 2, v0"); a("v_mul_u32_u24 v20, 2560, v20"); a("v_and_b32 v21, 3, v0"); a("v_lshl_add_u32 v20, v21, 4, v20")
        a("v_lshrrev_b32 v22, 4, v0"); a("v_lshl_add_u32 v21, v21, 2, v22"); a("v_lshlrev_b32 v21, 1, v21")
        a("s_mov_b32 s25, 40960"); a("s_mov_b32 s26, 81920"); a("s_mov_b32 s27, 122880")
        a(f"s_mov_b32 s28, {spin}")
    hooks[128 + 2 * mlpr + 1].append(mlproc)
    for k in range(64):
        t = 128 + 2 * k
        a.waitv(("kv", t + 1))
        if t % 8 == 6: fstamp()
        A_, B_ = S(slot[t]), S(slot[t + 1])
        for d in range(3):
            a(f"v_perm_b32 v{T[2*d]}, v{B_+d}, v{A_+d}, s{SLO}"); a(f"v_perm_b32 v{T[2*d+1]}, v{B_+d}, v{A_+d}, s{SHI}")
        release(t); release(t + 1)
        j4 = k // 4
        a.waitl(("pb", j4))
        pr = PB[j4 % 2] + k % 4
        for j in range(6): a(f"v_dot2c_f32_bf16 v{VA[j]}, v{T[j]}, v{pr}")
        if k % 4 == 3 and j4 + 2 < 16:
            a(f"ds_read_b128 {x4(PB[j4%2])}, v11 offset:{LDS_P+16*(j4+2)}", tag=("pb", j4 + 2))
        for f in hooks[t] + hooks[t + 1]: f()
        if bar and (t + 1) % bar == bar - 1 and t + 1 < 255 - D: a("s_barrier")
    stamp()
    for j in range(3): a(f"v_permlane32_swap_b32 v{VA[j]}, v{VA[j+3]}")
    for j in range(3): a(f"v_add_f32 v{VA[j]}, v{VA[j]}, v{VA[j+3]}")
    for j in range(3): a(f"v_mul_f32 v{4+j}, s24, v{VA[j]}")
    a(f"ds_write_b96 v8, v[4:6] offset:{LDS_O}")
    a.waitl(); a("s_barrier")
    RS = lambda w: S(40 + w)
    for w in range(8): a(f"ds_read_b128 {x4(RS(w))}, v10 offset:{LDS_O+1024*w}", tag=("or", w))
    for w in range(1, 8):
        a.waitl(("or", w))
        for j in range(3): a(f"v_add_f32 v{RS(0)+j}, v{RS(0)+j}, v{RS(w)+j}")
    a(f"v_cvt_pk_bf16_f32 v4, v{RS(0)}, v{RS(0)+1}"); a(f"v_cvt_pk_bf16_f32 v5, v{RS(0)+2}, v{RS(0)+2}")
    a(f"ds_write_b16 v9, v4 offset:{LDS_OB}"); a(f"ds_write_b16_d16_hi v9, v4 offset:{LDS_OB+2}"); a(f"ds_write_b16 v9, v5 offset:{LDS_OB+4}")
    a.waitl()
    OP = [S(48 + i) for i in range(4)]
    for i in range(4): a(f"ds_read_b128 {x4(OP[i])}, v29 offset:{LDS_OB+16*i}", tag=("ob", i))
    for k in range(16):
        a.waitl(("ob", k // 4))
        for j in range(8): a(f"v_dot2c_f32_bf16 v{ACC[j]}, v{WP[k][j]}, v{OP[k//4]+k%4}")
    for j in range(4): a(f"v_permlane32_swap_b32 v{ACC[j]}, v{ACC[j+4]}")
    for j in range(4): a(f"v_add_f32 v{ACC[j]}, v{ACC[j]}, v{ACC[j+4]}")
    for j in range(4): a(f"v_add_f32_dpp v{4+j}, v{ACC[j]}, v{ACC[j]} row_shl:5 row_mask:0xf bank_mask:0xf")
    for j in range(4): a(f"v_add_f32_dpp v{4+j}, v{ACC[j]}, v{4+j} row_shl:10 row_mask:0xf bank_mask:0xf")
    for j in range(4): a(f"v_min_u32 v{4+j}, -2, v{4+j}")
    a("s_mov_b32 exec_lo, 0x001f001f"); a("s_mov_b32 exec_hi, 0x001f001f")
    a(f"buffer_store_dwordx4 v[4:7], v31, {srd(P)}, 0 offen sc1")
    a("s_mov_b64 exec, -1")
    stamp()
    a("s_cmp_lg_u32 s3, 0"); a("s_cbranch_scc1 L_fin")
    a("s_cmp_ge_u32 s2, 160"); a("s_cbranch_scc1 L_fin")
    a.label("L_poll")
    for i in range(4):
        a(f"buffer_load_dwordx4 {x4(32+4*i)}, v20, {srd(RP)}, {['0','s25','s26','s27'][i]} offen sc1")
    a.waitv_all()
    a("v_max3_u32 v4, v32, v33, v34")
    for i in range(35, 47, 2): a(f"v_max3_u32 v4, v4, v{i}, v{i+1}")
    a("v_max_u32 v4, v4, v47")
    a("v_cmp_eq_u32 vcc, -1, v4")
    a("s_sub_u32 s28, s28, 1"); a("s_cbranch_scc1 L_red")
    a("s_cbranch_vccnz L_poll")
    a.label("L_red")
    for j in range(4):
        a(f"v_add_f32 v{32+j}, v{32+j}, v{36+j}"); a(f"v_add_f32 v{40+j}, v{40+j}, v{44+j}")
    for j in range(4): a(f"v_add_f32 v{32+j}, v{32+j}, v{40+j}")
    a("v_permlane32_swap_b32 v32, v34"); a("v_permlane32_swap_b32 v33, v35")
    a("v_add_f32 v32, v32, v34"); a("v_add_f32 v33, v33, v35")
    a("v_permlane16_swap_b32 v32, v33"); a("v_add_f32 v32, v32, v33")
    a("v_add_f32_dpp v32, v32, v32 row_ror:8 row_mask:0xf bank_mask:0xf")
    a("v_add_f32_dpp v32, v32, v32 row_ror:4 row_mask:0xf bank_mask:0xf")
    a("v_cvt_pk_bf16_f32 v32, v32, v32")
    a("s_mov_b32 exec_lo, 0x000f000f"); a("s_mov_b32 exec_hi, 0x000f000f")
    a(f"buffer_store_short v32, v21, {srd(OUT)}, 0 offen")
    a("s_mov_b64 exec, -1")
    if stamps:
        a.waitv_all()
        a("s_memrealtime s[14:15]"); a.waitl(); a(f"v_writelane_b32 v3, s14, {nst[0]}")
    a.label("L_fin")
    if stamps:
        a("s_lshl_b32 s13, s2, 3"); a("s_add_u32 s13, s13, s3"); a(f"s_lshl_b32 s13, s13, {8 if fine else 5}"); a(f"s_add_u32 s13, s13, {STOFF}")
        mk(RP, 38, "s13"); a(f"s_mov_b32 s{RP+2}, {256 if fine else 32}"); a(f"s_mov_b32 s{RP+3}, 0x20000")
        if fine: a.comment("FLIST " + " ".join(map(str, flist)))
        a("v_lshlrev_b32 v1, 2, v0")
        a(f"buffer_store_dword v3, v1, {srd(RP)}, 0 offen")
    if probe >= 0:
        a("s_cmp_lg_u32 s3, 0"); a("s_cbranch_scc1 L_end")
        if pwg >= 0: a(f"s_cmp_lg_u32 s2, {pwg}"); a("s_cbranch_scc1 L_end")
        a(f"v_readlane_b32 s8, v3, {probe}"); a("s_add_u32 s8, s8, 12000"); a("s_mov_b32 s9, 100000")
        a.label("L_pr")
        a("s_memrealtime s[14:15]"); a.waitl()
        a("s_sub_u32 s9, s9, 1"); a("s_cbranch_scc1 L_end")
        a("s_sub_u32 s10, s14, s8"); a("s_cmp_lt_i32 s10, 0"); a("s_cbranch_scc1 L_pr")
    a.label("L_end")
    a("s_endpgm")
    a.vm = []; a.lg = []; a.pend = {}
    a.label("L_q_slow")
    a(f"s_mov_b32 s28, {spin}")
    a.label("L_q_loop")
    a("s_sleep 4")
    a(f"buffer_load_dwordx2 v[20:21], off, {srd(DBG)}, s21 sc1"); a.waitv_all()
    a("v_and_b32 v20, v20, v21"); a("v_readfirstlane_b32 s13, v20")
    a("s_sub_u32 s28, s28, 1"); a("s_cbranch_scc1 L_q_ok")
    a("s_cmp_eq_u32 s13, 0x01010101"); a("s_cbranch_scc0 L_q_loop")
    a("s_branch L_q_ok")
    a.label("L_flag_slow")
    a(f"s_mov_b32 s28, {spin}")
    a.label("L_flag_loop")
    a("s_sleep 8")
    a("v_lshlrev_b32 v28, 2, v0")
    a(f"buffer_load_dword v28, v28, {srd(DBG)}, 0 offen sc1"); a.waitv_all()
    a("v_cmp_ne_u32 vcc, 0x01010101, v28")
    a("s_sub_u32 s28, s28, 1"); a("s_cbranch_scc1 L_flag_ok")
    a("s_cbranch_vccnz L_flag_loop")
    a("s_branch L_flag_ok")
    a.label("L_ml_slow")
    a(f"s_mov_b32 s28, {spin}")
    a.label("L_ml_loop")
    a("s_sleep 8")
    a("v_lshlrev_b32 v8, 3, v0")
    a(f"buffer_load_dwordx2 v[8:9], v8, {srd(ML)}, 0 offen sc1"); a.waitv_all()
    a(f"v_max_u32 v{HR[12]}, v8, v9"); a(f"v_cmp_eq_u32 vcc, -1, v{HR[12]}")
    a("s_sub_u32 s28, s28, 1"); a("s_cbranch_scc1 L_ml_ok")
    a("s_cbranch_vccnz L_ml_loop")
    a("s_branch L_ml_ok")
    a.raw('.section .rodata,"a"'); a.raw(".p2align 6"); a.raw(f".amdhsa_kernel {KN}_kernel")
    for l in ["next_free_vgpr 256", "next_free_sgpr 102", "accum_offset 256", "group_segment_fixed_size 0", "kernarg_size 96", "user_sgpr_count 2",
              "user_sgpr_kernarg_segment_ptr 1", "system_sgpr_workgroup_id_x 1"]: a.raw("  .amdhsa_" + l)
    a.raw(".end_amdhsa_kernel")
    sys.stderr.write(f"slots {a.n} nops {a.nops} maxv {a.maxv} n0 {n0} NP {NP} tf2 {tf2}\n")
    return a.text()

if __name__ == "__main__":
    out = sys.argv[1]
    kw = {}
    for kv in sys.argv[2:]:
        k, v = kv.split("=")
        kw[k] = int(v) if v.lstrip("-").isdigit() else v.replace("+", " ")
    open(out, "w").write(gen(**kw))
```
